```python
import torch

def _softmax(x, axis=-1):
    return torch.softmax(x, dim=axis)
def _gelu(x):
    return torch.nn.functional.gelu(x, approximate="tanh")
def _silu(x):
    return torch.nn.functional.silu(x)
def _sigmoid(x):
    return torch.sigmoid(x)
def _layernorm(x, axis=-1, eps=1e-5):
    m = x.mean(dim=axis, keepdim=True)
    v = x.var(dim=axis, keepdim=True, unbiased=False)
    return (x - m) / torch.sqrt(v + eps)
def _scatter_add(tgt, idx, src, axis=0):
    return tgt.clone().index_add_(axis, idx, src)
def _segment_sum(src, seg, n):
    out = torch.zeros((n,) + src.shape[1:], dtype=src.dtype)
    return out.index_add_(0, seg, src)
def _pad(x, pw):
    flat = tuple(v for pair in reversed(pw) for v in pair)
    return torch.nn.functional.pad(x, flat)

kernel_name = 'standalone__edge_featured_mpnn_gatedgcn__graph'

def setup_inputs():

    _w = (lambda a: (lambda t: t.to(torch.bfloat16) if t.is_floating_point() else t)(torch.as_tensor(a)))
    N, deg, D, De = 25000, 16, 128, max(4, 1)
    E = N * deg
    return {
        "x": _w((lambda *s: torch.randn(*s, dtype=torch.bfloat16) * 0.4)(N, D)),
        "e_attr": _w((lambda *s: torch.randn(*s, dtype=torch.bfloat16) * 0.8)(E, De)),
        "src": _w((lambda lo, hi, *s: torch.randint(lo, hi, s))(0, N, E).to(torch.int64)),
        "dst": _w((lambda lo, hi, *s: torch.randint(lo, hi, s))(0, N, E).to(torch.int64)),
        "w_a": _w((lambda *s: torch.randn(*s, dtype=torch.bfloat16) * 0.4)(D, D)),
        "w_b": _w((lambda *s: torch.randn(*s, dtype=torch.bfloat16) * 0.4)(D, D)),
        "w_c": _w((lambda *s: torch.randn(*s, dtype=torch.bfloat16) * 0.8)(De, D)),
        "w_u": _w((lambda *s: torch.randn(*s, dtype=torch.bfloat16) * 0.05)(D, D)),
        "w_v": _w((lambda *s: torch.randn(*s, dtype=torch.bfloat16) * 0.05)(D, D)),
    }

def reference(x, e_attr, src, dst, w_a, w_b, w_c, w_u, w_v):
    N, D = x.shape
    hv = x @ w_v
    g = x[dst] @ w_a + x[src] @ w_b + e_attr @ w_c
    eta = _sigmoid(g)
    denom = _segment_sum(eta, dst, N) + 1e-6
    eta_n = eta / denom[dst]
    agg = _segment_sum(eta_n * hv[src], dst, N)
    z = x @ w_u + agg
    relu_z = torch.where(z > 0, z, 0 * z)
    return x + relu_z
```

```python
import re
TRANS = ('v_exp_f32','v_rcp_f32','v_log_f32','v_rsq_f32','v_sqrt_f32')
def regs(tok):
    tok = tok.strip()
    m = re.fullmatch(r'([vs])(\d+)', tok)
    if m: return {(m.group(1), int(m.group(2)))}
    m = re.fullmatch(r'([vs])\[(\d+):(\d+)\]', tok)
    if m: return {(m.group(1), i) for i in range(int(m.group(2)), int(m.group(3))+1)}
    if tok == 'vcc': return {('s','vcc')}
    if tok == 'exec': return {('s','exec')}
    if tok == 'm0': return {('s','m0')}
    return set()
class I:
    def __init__(s, text):
        s.text = text
        p = text.split(None, 1)
        s.op = p[0]
        rest = p[1] if len(p) > 1 else ''
        ops = []
        depth = 0; cur = ''
        for ch in rest:
            if ch == '[': depth += 1
            if ch == ']': depth -= 1
            if ch == ',' and depth == 0: ops.append(cur); cur = ''
            else: cur += ch
        if cur: ops.append(cur)
        s.mods = ''
        if ops:
            last = ops[-1].strip().split(None, 1)
            ops[-1] = last[0] if last else ''
            s.mods = last[1] if len(last) > 1 else ''
        s.ops = [o.strip() for o in ops]
        op = s.op
        s.mfma = op.startswith('v_mfma')
        s.valu = op.startswith('v_') and not s.mfma
        s.trans = op.replace('_e32','').replace('_e64','') in TRANS
        s.vmem = op.startswith('buffer_') or op.startswith('global_')
        s.ds = op.startswith('ds_')
        s.salu = op.startswith('s_')
        s.dpp = '_dpp' in op
        s.lds_dma = s.vmem and re.search(r'\blds\b', s.mods) is not None
        s.w = set(); s.r = set()
        R = [regs(o) for o in s.ops]
        if s.mfma:
            s.w = R[0]; s.a = R[1]; s.b = R[2]; s.c = R[3]; s.r = s.a | s.b | s.c
            s.passes = 2 if '4x4x4' in op else (4 if '16x16x32' in op else 8)
        elif s.valu:
            s.w = set(R[0]);
            for x in R[1:]: s.r |= x
            if op.startswith('v_cmpx'): s.w |= {('s','exec')}
            if op.startswith('v_cndmask') and len(R) == 3: s.r |= {('s','vcc')}
            if op.startswith('v_fmac') or op.startswith('v_writelane') or s.dpp: s.r |= R[0]
        elif s.vmem:
            if 'store' in op or 'atomic' in op or s.lds_dma:
                for x in R: s.r |= x
                s.data = R[0] if not s.lds_dma else set()
            else:
                s.w = R[0]
                for x in R[1:]: s.r |= x
        elif s.ds:
            if 'read' in op or 'rtn' in op or 'permute' in op:
                s.w = R[0]
                for x in R[1:]: s.r |= x
            else:
                for x in R: s.r |= x
        elif s.salu:
            if R and not op.startswith('s_cmp') and not op.startswith('s_cbranch'):
                s.w = set(R[0])
                for x in R[1:]: s.r |= x
            if 'saveexec' in op: s.w |= {('s','exec')}
        s.states = 1
        if op == 's_nop': s.states = int(s.ops[0]) + 1
def need(p, c):
    n = 0
    vw = {x for x in p.w if x[0] == 'v'}; sw = {x for x in p.w if x[0] == 's'}
    if p.valu:
        if c.mfma and vw & c.r: n = max(n, 2)
        if p.trans and c.valu and not c.trans and vw & c.r: n = max(n, 1)
        if c.vmem and (sw - {('s','exec')}) & c.r: n = max(n, 5)
        if c.valu and (sw - {('s','exec')}) & c.r:
            n = max(n, 2)
            if c.op.startswith('v_readlane') or c.op.startswith('v_writelane'): n = max(n, 4)
        if (c.op.startswith('v_readlane') or c.op.startswith('v_readfirstlane')) and vw & c.r: n = max(n, 1)
        if c.dpp and vw & c.r: n = max(n, 2)
        if ('s','exec') in sw:
            if c.dpp: n = max(n, 5)
            if c.mfma: n = max(n, 4)
            if c.op.startswith('v_readlane') or c.op.startswith('v_readfirstlane') or c.op.startswith('v_writelane'): n = max(n, 4)
        if 'op_sel' in p.mods and p.op.startswith('v_mad_u32_u16'): pass
    if p.mfma:
        big = {2:5, 4:8, 8:12}[p.passes]
        if c.mfma:
            if p.w & (c.a | c.b): n = max(n, big)
            if p.w & c.c:
                if p.w == c.c and p.passes == c.passes: n = max(n, 2 if p.passes == 2 else 0)
                else: n = max(n, {2:4, 4:6, 8:10}[p.passes])
        elif (c.valu or c.vmem or c.ds) and p.w & (c.r | c.w): n = max(n, big)
        if c.valu and p.c & c.w: n = max(n, {2:1, 4:3, 8:7}[p.passes])
    if p.vmem and 'store' in p.op and ('x4' in p.op or 'x3' in p.op):
        if p.data & c.w: n = max(n, 2 if (c.valu or c.mfma) else 1)
    if p.salu and ('s','m0') in p.w and c.lds_dma: n = max(n, 1)
    return n
def check_seq(seq, errs, start=0):
    for j in range(max(start,1), len(seq)):
        d = 0
        for i in range(j-1, max(-1, j-16), -1):
            k = need(seq[i], seq[j])
            if k > d: errs.add(f"hazard: '{seq[i].text}' -> '{seq[j].text}' need {k} have {d}")
            d += seq[i].states
            if d >= 13: break
def check(lines):
    ins = []; labels = {}
    for l in lines:
        l = l.split(';')[0].strip()
        if not l or l.startswith('.'): continue
        if l.endswith(':'): labels[l[:-1]] = len(ins); continue
        ins.append(I(l))
    errs = set()
    seg = []
    for x in ins:
        seg.append(x)
        if x.op in ('s_branch', 's_endpgm'):
            check_seq(seg, errs); seg = []
    check_seq(seg, errs)
    for k, x in enumerate(ins):
        if x.op.startswith('s_cbranch') or x.op == 's_branch':
            t = labels[x.ops[0]]
            pre = ins[max(0, k-14):k+1]
            for q in range(len(pre)-2, -1, -1):
                if pre[q].op in ('s_branch', 's_endpgm'): pre = pre[q+1:]; break
            post = []
            for y in ins[t:t+14]:
                post.append(y)
                if y.op in ('s_branch', 's_endpgm'): break
            check_seq(pre + post, errs, start=len(pre))
    return sorted(errs)
```

```python
import sys, struct, argparse
import hz

NAME = "standalone__edge_featured_mpnn_gatedgcn__graph"
N, E = 25000, 400000
BN = 392
CH = 1564
MARK = 0x800007FC
DUMMY = 25100
OVF = 8 << 20
TABOFF = 16 << 20
TABSL = 25600 * 128
PROFOFF = 64 << 20
PCNT, HIST, LEN, FLAG, TRASH, PERM, CNT = 0, 256, 512, 768, 800, 1024, 2048
XT = 4096
WL = XT + 100352
IMG = WL + 32768
LDS_SIZE = 163840
AUS = 6288
AU = LDS_SIZE - 8 * AUS
STG = WL
EALO = 4096
EASZ = 37120
EAHI = EALO + EASZ
ELL = EAHI + EASZ
ROWCAP = 1008
ZSLOT = 9216 * 4
ACC = 4096
WCF = WL
assert ELL + 32768 <= AU and STG + 8192 <= AU and IMG + 24576 <= LDS_SIZE
NLOG2E = struct.unpack('<I', struct.pack('<f', -1.4426950408889634))[0]
EPS = struct.unpack('<I', struct.pack('<f', 1e-6))[0]

class G:
    def __init__(s, D=8, prof=False, force_slow=False):
        s.L = []; s.D = D; s.prof = prof; s.force_slow = force_slow; s.nst = 0
    def __call__(s, txt):
        for l in txt.strip('\n').split('\n'):
            l = l.strip()
            if l: s.L.append(('' if l.endswith(':') else '    ') + l)
    def srd(s, d, p, n, extra1=None):
        s(f"s_mov_b32 s{d}, s{p}")
        if extra1 is None: s(f"s_mov_b32 s{d+1}, s{p+1}")
        else: s(f"s_or_b32 s{d+1}, s{p+1}, {extra1:#x}")
        s(f"s_mov_b32 s{d+2}, {n:#x}\ns_mov_b32 s{d+3}, 0x20000")
    def stamp(s, k):
        if s.prof:
            s(f"s_memrealtime s[100:101]\ns_waitcnt lgkmcnt(0)\ns_mov_b32 s{84+k}, s100")
    def scan(s, v):
        for m in ("row_shr:1 row_mask:0xf bank_mask:0xf bound_ctrl:0", "row_shr:2 row_mask:0xf bank_mask:0xf bound_ctrl:0",
                  "row_shr:4 row_mask:0xf bank_mask:0xf bound_ctrl:0", "row_shr:8 row_mask:0xf bank_mask:0xf bound_ctrl:0",
                  "row_bcast:15 row_mask:0xa bank_mask:0xf", "row_bcast:31 row_mask:0xc bank_mask:0xf"):
            s(f"s_nop 1\nv_add_u32_dpp v{v}, v{v}, v{v} {m}")

SX, SEA, SSRC, SDST, SW, SOUT, SDBG, SSEG, STABW, STAB, SWC = 40, 44, 48, 52, 56, 60, 64, 68, 72, 76, 80
def R(d): return f"s[{d}:{d+3}]"

def prologue(a):
    a(f"""
    s_cmp_ge_u32 s2, 256
    s_cbranch_scc1 L_end
    s_load_dwordx16 s[16:31], s[0:1], 0
    s_load_dwordx8 s[32:39], s[0:1], 64
    """)
    if a.prof: a("s_memrealtime s[84:85]")
    a(f"""
    v_lshrrev_b32 v2, 6, v0
    v_and_b32 v1, 63, v0
    s_and_b32 s4, s2, 3
    v_readfirstlane_b32 s3, v2
    s_lshr_b32 s5, s2, 3
    s_bfe_u32 s6, s2, 0x10002
    s_lshl_b32 s6, s6, 5
    s_add_u32 s5, s5, s6
    v_lshlrev_b32 v3, 3, v0
    v_lshlrev_b32 v4, 4, v0
    s_mul_i32 s6, s2, {CH*4}
    s_lshl_b32 s7, s6, 1
    s_movk_i32 s8, {CH//2}
    s_cmp_eq_u32 s2, 255
    s_cselect_b32 s8, {(E-255*CH)//2}, s8
    v_cmp_gt_u32 s[10:11], s8, v0
    v_and_b32 v5, 0x18, v1
    v_lshrrev_b32 v6, 5, v1
    v_lshlrev_b32 v6, 2, v6
    v_bfe_u32 v7, v1, 1, 2
    v_add3_u32 v5, v5, v6, v7
    v_and_b32 v6, 1, v1
    v_lshlrev_b32 v6, 4, v6
    v_lshl_or_b32 v5, v5, 8, v6
    s_waitcnt lgkmcnt(0)
    """)
    a.srd(SDST, 22, E*4); a.srd(SSRC, 20, E*4); a.srd(SEA, 18, E*8)
    a(f"""
    s_cmp_eq_u64 s[10:11], 0
    s_cbranch_scc1 L_noedge
    s_mov_b64 exec, s[10:11]
    buffer_load_dwordx2 v[8:9], v3, {R(SDST)}, s6 offen
    buffer_load_dwordx2 v[10:11], v3, {R(SSRC)}, s6 offen
    buffer_load_dwordx4 v[12:15], v4, {R(SEA)}, s7 offen
    s_mov_b64 exec, -1
L_noedge:
    s_lshr_b32 s9, s3, 2
    s_cmp_eq_u32 s9, 0
    s_cselect_b64 s[12:13], s[26:27], s[32:33]
    s_cmp_eq_u32 s9, 2
    s_cselect_b64 s[12:13], s[24:25], s[12:13]
    s_cmp_eq_u32 s9, 3
    s_cselect_b64 s[12:13], s[30:31], s[12:13]
    """)
    a.srd(SW, 12, 32768)
    a(f"""
    s_and_b32 s14, s3, 3
    s_lshl_b32 s15, s9, 13
    s_lshl_b32 s9, s14, 10
    s_add_u32 s15, s15, s9
    s_add_u32 m0, s15, {WL}
    s_lshl_b32 s14, s14, 13
    s_lshl_b32 s9, s4, 6
    s_add_u32 s14, s14, s9
    buffer_load_dwordx4 v5, {R(SW)}, s14 offen lds
    s_add_u32 m0, s15, {WL+4096}
    s_add_u32 s14, s14, 32
    buffer_load_dwordx4 v5, {R(SW)}, s14 offen lds
    """)
    a.srd(SX, 16, N*256)
    a(f"""
    s_cmp_lt_u32 s3, 13
    s_cbranch_scc1 L_nox
    v_lshrrev_b32 v6, 4, v1
    v_and_b32 v7, 15, v1
    v_xor_b32 v7, v7, v6
    v_lshlrev_b32 v6, 8, v6
    v_lshl_or_b32 v16, v7, 4, v6
    v_xor_b32 v17, 64, v16
    v_xor_b32 v18, 0x80, v16
    v_xor_b32 v19, 0xc0, v16
    s_sub_u32 s9, s3, 13
    s_lshl_b32 s9, s9, 12
    s_mul_i32 s14, s5, {BN*256}
L_xl:
    s_add_u32 m0, s9, {XT}
    s_add_u32 s15, s14, s9
    buffer_load_dwordx4 v16, {R(SX)}, s15 offen lds
    buffer_load_dwordx4 v17, {R(SX)}, s15 offen offset:1024 lds
    s_cmp_eq_u32 s9, {24*4096}
    s_cbranch_scc1 L_nox
    buffer_load_dwordx4 v18, {R(SX)}, s15 offen offset:2048 lds
    buffer_load_dwordx4 v19, {R(SX)}, s15 offen offset:3072 lds
    s_add_u32 s9, s9, {3*4096}
    s_cmp_le_u32 s9, {24*4096}
    s_cbranch_scc1 L_xl
L_nox:
    """)
    a.srd(SOUT, 34, N*256); a.srd(SDBG, 36, 256); a.srd(SWC, 28, 1024)
    a.srd(SSEG, 38, (PROFOFF + (1 << 20)) if a.prof else TABOFF)
    a(f"""
    s_mul_i32 s9, s4, {TABSL}
    s_add_u32 s9, s9, {TABOFF}
    s_add_u32 s12, s38, s9
    s_addc_u32 s13, s39, 0
    """)
    a.srd(STABW, 12, TABSL); a.srd(STAB, 12, 25600, extra1=128 << 16)
    a(f"""
    s_cmp_lt_u32 s3, 8
    s_cselect_b32 s9, {MARK:#x}, 0
    v_mov_b32 v20, s9
    v_mov_b32 v21, s9
    v_mov_b32 v22, s9
    v_mov_b32 v23, s9
    v_lshrrev_b32 v6, 3, v0
    v_mul_u32_u24 v6, 384, v6
    v_and_b32 v7, 7, v0
    v_lshl_add_u32 v6, v7, 4, v6
    v_add_u32 v6, {IMG+256}, v6
    v_subrev_u32 v7, {512*16}, v4
    s_cbranch_scc1 L_i1
    v_mov_b32 v6, v7
L_i1:
    s_cmp_ge_u32 s3, 12
    s_cbranch_scc1 L_i2
    ds_write_b128 v6, v[20:23]
L_i2:
    s_waitcnt lgkmcnt(0)
    s_barrier
    """)

def phase_p(a):
    a.stamp(1)
    a(f"""
    s_cmp_eq_u64 s[10:11], 0
    s_cbranch_scc1 L_p_done
    s_mov_b64 exec, s[10:11]
    s_mov_b32 s16, 42800
    s_mov_b32 s17, {(-MARK) & 0xffffffff:#x}
    s_movk_i32 s18, 384
    v_mov_b32 v2, 1
    v_mov_b32 v3, {IMG}
    s_waitcnt vmcnt(4)
    v_mul_u32_u24 v16, s16, v8
    v_mul_u32_u24 v17, s16, v9
    v_lshrrev_b32 v16, 24, v16
    v_lshrrev_b32 v17, 24, v17
    v_lshlrev_b32 v18, 2, v16
    v_lshlrev_b32 v19, 2, v17
    ds_add_rtn_u32 v20, v18, v2 offset:{PCNT}
    ds_add_rtn_u32 v21, v19, v2 offset:{PCNT}
    v_mul_u32_u24 v18, {BN*4}, v16
    v_mul_u32_u24 v19, {BN*4}, v17
    v_lshl_add_u32 v8, v8, 2, s17
    v_lshl_add_u32 v9, v9, 2, s17
    v_sub_u32 v8, v8, v18
    v_sub_u32 v9, v9, v19
    v_mad_u32_u24 v18, v16, s18, v3
    v_mad_u32_u24 v19, v17, s18, v3
    s_waitcnt vmcnt(3)
    v_lshl_add_u32 v8, v10, 16, v8
    v_lshl_add_u32 v9, v11, 16, v9
    s_waitcnt lgkmcnt(0)
    v_add_u32 v22, v20, v16
    v_add_u32 v23, v21, v17
    v_and_b32 v22, 31, v22
    v_and_b32 v23, 31, v23
    v_lshl_add_u32 v22, v22, 2, v18
    v_lshl_add_u32 v23, v23, 2, v19
    v_cmp_gt_u32 s[12:13], 32, v20
    v_cmp_gt_u32 s[14:15], 32, v21
    s_waitcnt vmcnt(2)
    s_mov_b64 exec, s[12:13]
    ds_write2_b32 v22, v12, v13 offset0:0 offset1:32
    ds_add_u32 v22, v8 offset:256
    s_mov_b64 exec, s[14:15]
    ds_write2_b32 v23, v14, v15 offset0:0 offset1:32
    ds_add_u32 v23, v9 offset:256
    s_waitcnt vmcnt(0)
    """)
    for j in range(2):
        m = ("s[12:13]", "s[14:15]")[j]
        rk, bk, base, sd, lo, hi = 20+j, 16+j, 18+j, 8+j, 12+2*j, 13+2*j
        a(f"""
        s_andn2_b64 exec, s[10:11], {m}
        s_cbranch_execz L_po{j}
        v_cmp_lt_u32 vcc, 62, v{rk}
        s_andn2_b64 s[20:21], exec, vcc
        s_mov_b64 exec, vcc
        v_mov_b32 v24, {FLAG}
        ds_or_b32 v24, v2
        s_mov_b64 exec, s[20:21]
        s_cbranch_execz L_po{j}
        v_mov_b32 v24, 0x800
        ds_add_u32 v{base}, v24 offset:256
        v_mov_b32 v24, v{lo}
        v_mov_b32 v25, v{hi}
        v_add_u32 v26, {MARK:#x}, v{sd}
        v_mov_b32 v27, 0
        v_lshlrev_b32 v28, 9, v{bk}
        v_lshl_add_u32 v28, v{rk}, 4, v28
        s_lshl_b32 s19, s2, 15
        s_add_u32 s19, s19, {OVF-512}
        buffer_store_dwordx4 v[24:27], v28, {R(SSEG)}, s19 offen sc1
        s_nop 1
L_po{j}:
        """)
    a(f"""
    s_mov_b64 exec, -1
    s_branch L_pw1
L_p_done:
    s_cmp_lt_u32 s3, 13
    s_cbranch_scc1 L_pw0
    s_waitcnt vmcnt(32)
    s_branch L_pw1
L_pw0:
    s_waitcnt vmcnt(0)
L_pw1:
    s_waitcnt lgkmcnt(0)
    s_barrier
    """)
    a.stamp(2)
    a(f"""
    s_cmp_ge_u32 s3, 12
    s_cbranch_scc1 L_ps
    v_add_u32 v2, {IMG}, v4
    ds_read_b128 v[8:11], v2
    ds_read_b128 v[12:15], v2 offset:12288
    s_mul_i32 s16, s2, 24576
    s_add_u32 s17, s16, 12288
    s_waitcnt lgkmcnt(1)
    buffer_store_dwordx4 v[8:11], v4, {R(SSEG)}, s16 offen sc1
    s_waitcnt lgkmcnt(0)
    buffer_store_dwordx4 v[12:15], v4, {R(SSEG)}, s17 offen sc1
L_ps:
    """)

def phase_g(a):
    a(f"""
    s_and_b32 s16, s3, 1
    s_lshr_b32 s17, s3, 1
    s_lshl_b32 s18, s16, 14
    s_add_u32 s18, s18, {WL}
    v_lshl_add_u32 v2, v1, 3, s18
    v_mov_b32 v3, {FLAG}
    ds_read_b32 v3, v3
    """)
    for mm in range(2):
        for ft in range(2):
            for ks in range(4):
                r = 64 + ((mm*2+ft)*4+ks)*4
                o = mm*8192 + ft*4096 + ks*1024
                a(f"ds_read_b64_tr_b16 v[{r}:{r+1}], v2 offset:{o}\nds_read_b64_tr_b16 v[{r+2}:{r+3}], v2 offset:{o+512}")
    a(f"""
    v_and_b32 v16, 15, v1
    v_lshrrev_b32 v17, 4, v1
    v_xor_b32 v18, v16, v17
    v_lshlrev_b32 v18, 4, v18
    v_lshl_or_b32 v18, v16, 8, v18
    s_lshl_b32 s18, s17, 12
    s_add_u32 s18, s18, {XT}
    v_add_u32 v4, s18, v18
    v_xor_b32 v5, 64, v4
    v_xor_b32 v6, 0x80, v4
    v_xor_b32 v7, 0xc0, v4
    v_bfe_u32 v18, v16, 1, 2
    v_xor_b32 v18, v18, v17
    v_lshlrev_b32 v18, 4, v18
    v_lshl_or_b32 v18, v16, 6, v18
    s_lshl_b32 s18, s17, 10
    s_add_u32 s18, s18, {STG}
    v_add_u32 v48, s18, v18
    v_lshl_add_u32 v49, v1, 4, s18
    v_bfe_u32 v18, v1, 3, 2
    v_and_b32 v19, 3, v1
    v_xor_b32 v18, v18, v19
    v_lshlrev_b32 v18, 4, v18
    v_lshrrev_b32 v19, 2, v1
    v_lshl_or_b32 v50, v19, 7, v18
    v_mul_u32_u24 v18, {AUS}, v17
    v_lshl_add_u32 v18, v16, 4, v18
    s_lshl_b32 s18, s17, 8
    s_add_u32 s18, s18, {AU}
    v_add_u32 v51, s18, v18
    s_mul_i32 s19, s5, {BN*128}
    s_lshl_b32 s18, s17, 11
    s_add_u32 s19, s19, s18
    s_mov_b32 s20, {NLOG2E:#x}
    s_mov_b32 s21, {NLOG2E:#x}
    s_mov_b32 s22, 0x07060100
    s_mov_b32 s23, 0x07060302
    s_mov_b32 s24, s17
    s_waitcnt vmcnt(0) lgkmcnt(0)
    s_barrier
    """)
    a.stamp(3)
    a(f"""
    ds_read_b128 v[32:35], v4
    ds_read_b128 v[36:39], v5
    ds_read_b128 v[40:43], v6
    ds_read_b128 v[44:47], v7
    s_cmp_lg_u32 s3, 15
    s_cbranch_scc1 L_g
    v_lshl_add_u32 v3, v3, 16, 1
    v_mov_b32 v2, 0
    s_lshl_b32 s18, s4, 6
    s_mov_b64 exec, 1
    buffer_atomic_add v3, v2, {R(SDBG)}, s18 offen sc1
    s_mov_b64 exec, -1
L_g:
    """)
    for ks in range(4):
        a(f"s_waitcnt lgkmcnt({3-ks})")
        for mm in range(2):
            for ft in range(2):
                d = 16 + (mm*2+ft)*4
                w = 64 + ((mm*2+ft)*4+ks)*4
                c = "0" if ks == 0 else f"v[{d}:{d+3}]"
                a(f"v_mfma_f32_16x16x32_bf16 v[{d}:{d+3}], v[{w}:{w+3}], v[{32+4*ks}:{35+4*ks}], {c}")
    a(f"""
    v_add_u32 v4, 0x8000, v4
    v_add_u32 v5, 0x8000, v5
    v_add_u32 v6, 0x8000, v6
    v_add_u32 v7, 0x8000, v7
    s_cmp_eq_u32 s24, 24
    s_cselect_b32 s26, 0x00ff00ff, -1
    s_cselect_b32 s27, 0x00ff00ff, -1
    s_cselect_b32 s29, 0, -1
    s_mov_b32 s28, -1
    v_pk_mul_f32 v[16:17], v[16:17], s[20:21]
    v_pk_mul_f32 v[18:19], v[18:19], s[20:21]
    v_pk_mul_f32 v[20:21], v[20:21], s[20:21]
    v_pk_mul_f32 v[22:23], v[22:23], s[20:21]
    v_cvt_pk_bf16_f32 v12, v16, v17
    v_cvt_pk_bf16_f32 v13, v18, v19
    v_cvt_pk_bf16_f32 v14, v20, v21
    v_cvt_pk_bf16_f32 v15, v22, v23
    v_perm_b32 v24, v24, v12, s22
    v_perm_b32 v25, v25, v12, s23
    v_perm_b32 v26, v26, v13, s22
    v_perm_b32 v27, v27, v13, s23
    v_perm_b32 v28, v28, v14, s22
    v_perm_b32 v29, v29, v14, s23
    v_perm_b32 v30, v30, v15, s22
    v_perm_b32 v31, v31, v15, s23
    s_cmp_eq_u32 s16, 1
    s_cbranch_scc1 L_g_au
    ds_write_b128 v48, v[24:27]
    ds_read_b128 v[52:55], v49
    ds_write_b128 v48, v[28:31]
    ds_read_b128 v[56:59], v49
    s_add_u32 s18, s19, 64
    s_mov_b64 exec, s[28:29]
    s_waitcnt lgkmcnt(2)
    buffer_store_dwordx4 v[52:55], v50, {R(STABW)}, s19 offen sc1
    s_waitcnt lgkmcnt(0)
    buffer_store_dwordx4 v[56:59], v50, {R(STABW)}, s18 offen sc1
    s_mov_b64 exec, -1
    s_add_u32 s19, s19, {8*2048}
    s_branch L_g_next
L_g_au:
    s_mov_b64 exec, s[26:27]
    ds_write_b128 v51, v[24:27]
    ds_write_b128 v51, v[28:31] offset:{4*AUS}
    s_mov_b64 exec, -1
    v_add_u32 v51, {8*256}, v51
L_g_next:
    s_add_u32 s24, s24, 8
    s_cmp_gt_u32 s24, 24
    s_cbranch_scc1 L_g_done
    s_waitcnt lgkmcnt(0)
    ds_read_b128 v[32:35], v4
    ds_read_b128 v[36:39], v5
    ds_read_b128 v[40:43], v6
    ds_read_b128 v[44:47], v7
    s_branch L_g
L_g_done:
    """)
    a.stamp(4)
    a(f"""
    s_cmp_eq_u32 s5, 63
    s_cselect_b32 s18, s3, 0
    s_cmp_lg_u32 s18, 2
    s_cbranch_scc1 L_nodum
    v_mov_b32 v8, 0x7180
    v_mov_b32 v9, 0x7180
    v_mov_b32 v10, 0x7180
    v_mov_b32 v11, 0x7180
    v_lshlrev_b32 v12, 4, v1
    s_mov_b32 s18, {DUMMY*128}
    s_mov_b64 exec, 0xff
    buffer_store_dwordx4 v[8:11], v12, {R(STABW)}, s18 offen sc1
    s_mov_b64 exec, -1
L_nodum:
    s_cmp_lg_u32 s3, 15
    s_cbranch_scc1 L_np1
    v_lshlrev_b32 v2, 6, v1
    s_mov_b32 s18, 0x40000
    s_mov_b64 exec, 15
L_poll1:
    buffer_load_dword v3, v2, {R(SDBG)}, 0 offen sc1
    s_waitcnt vmcnt(0)
    v_and_b32 v4, 0xffff, v3
    v_cmp_ne_u32 vcc, 64, v4
    s_sub_u32 s18, s18, 1
    s_cbranch_scc1 L_poll1d
    s_cbranch_vccz L_poll1d
    s_sleep 2
    s_branch L_poll1
L_poll1d:
    v_lshrrev_b32 v3, 16, v3
    v_mov_b32 v4, {FLAG}
    ds_or_b32 v4, v3
    s_mov_b64 exec, -1
L_np1:
    s_waitcnt lgkmcnt(0)
    s_barrier
    """)

def phase_s(a):
    a.stamp(5)
    a(f"""
    v_lshrrev_b32 v32, 3, v1
    v_mul_u32_u24 v33, 24576, v32
    v_and_b32 v34, 7, v1
    v_lshl_add_u32 v33, v34, 4, v33
    s_mul_i32 s18, s3, {16*24576}
    s_mul_i32 s19, s5, 384
    s_add_u32 s18, s18, s19
    s_add_u32 s19, s18, {8*24576}
    buffer_load_dwordx4 v[2:5], v33, {R(SSEG)}, s18 offen offset:256 sc1
    buffer_load_dwordx4 v[6:9], v33, {R(SSEG)}, s19 offen offset:256 sc1
    v_lshrrev_b32 v35, 4, v1
    v_lshl_add_u32 v36, v34, 2, v35
    v_lshlrev_b32 v36, 1, v36
    s_lshl_b32 s20, s4, 6
    buffer_load_ushort v40, v36, {R(SWC)}, s20 offen
    buffer_load_ushort v41, v36, {R(SWC)}, s20 offen offset:256
    buffer_load_ushort v42, v36, {R(SWC)}, s20 offen offset:512
    buffer_load_ushort v43, v36, {R(SWC)}, s20 offen offset:768
    s_cmp_eq_u32 s16, 0
    s_cbranch_scc1 L_s_nodma
    s_sub_u32 s20, s18, {16*24576}
    s_lshl_b32 s21, s17, 12
    """)
    for i in range(4):
        for h in range(2):
            a(f"""
            s_add_u32 m0, s21, {(EALO, EAHI)[h] + i*1024}
            s_add_u32 s22, s20, {i*8*24576 + h*128}
            buffer_load_dwordx4 v33, {R(SSEG)}, s22 offen sc1 lds
            """)
    a(f"""
L_s_nodma:
    v_mov_b32 v44, {(DUMMY << 16) | ZSLOT:#x}
    v_mov_b32 v45, v44
    v_mov_b32 v46, v44
    v_mov_b32 v47, v44
    v_lshlrev_b32 v37, 4, v0
    v_add_u32 v37, {ELL}, v37
    ds_write_b128 v37, v[44:47]
    ds_write_b128 v37, v[44:47] offset:16384
    v_mov_b32 v38, {ZSLOT}
    v_mov_b32 v39, 0
    ds_write2st64_b32 v38, v39, v39 offset0:{EALO//256} offset1:{EAHI//256}
    v_mov_b32 v30, {MARK:#x}
    v_mov_b32 v34, 1
    """)
    for j in range(9): a(f"v_mov_b32 v{18+j}, 0")
    a(f"""
    s_cmp_eq_u32 s16, 0
    s_cbranch_scc1 L_s_w0
    s_waitcnt vmcnt(12)
    s_branch L_s_w1
L_s_w0:
    s_waitcnt vmcnt(0)
L_s_w1:
    v_bfe_u32 v36, v2, 11, 5
    v_bfe_u32 v37, v6, 11, 5
    s_mov_b32 s24, 0
    v_cmp_ne_u32 s[20:21], 0, v36
    v_cmp_ne_u32 s[22:23], 0, v37
    v_lshlrev_b32 v38, 4, v1
    """)
    for i in range(2):
        m = ("s[20:21]", "s[22:23]")[i]
        a(f"""
L_ov{i}:
        s_cmp_eq_u64 {m}, 0
        s_cbranch_scc1 L_ov{i}d
        s_ff1_i32_b64 s25, {m}
        s_bitset0_b64 {m}, s25
        v_readlane_b32 s26, v{36+i}, s25
        s_lshr_b32 s25, s25, 3
        s_lshl_b32 s27, s3, 4
        s_add_u32 s25, s25, s27
        s_lshl_b32 s25, s25, 15
        s_lshl_b32 s27, s5, 9
        s_add_u32 s25, s25, s27
        s_lshl_b32 s27, s24, 4
        s_sub_u32 s25, s25, s27
        s_add_u32 s25, s25, {OVF + i*8*32768}
        s_bfm_b64 exec, s26, s24
        s_add_u32 s24, s24, s26
        s_cmp_gt_u32 s24, 64
        s_cbranch_scc1 L_ovbad
        buffer_load_dwordx4 v[28:31], v38, {R(SSEG)}, s25 offen sc1
        s_branch L_ov{i}
L_ov{i}d:
        """)
    a(f"""
    s_branch L_ovd
L_ovbad:
    s_mov_b64 exec, 1
    v_mov_b32 v39, {FLAG}
    ds_or_b32 v39, v34
L_ovd:
    s_mov_b64 exec, -1
    """)
    for j in range(8):
        a(f"""
        v_and_b32 v{10+j}, 0x7ff, v{2+j}
        v_cmpx_le_i32 vcc, 0, v{2+j}
        ds_add_rtn_u32 v{18+j}, v{10+j}, v34 offset:{CNT}
        s_mov_b64 exec, -1
        """)
    a(f"""
    v_mov_b32 v27, 0x7fc
    s_cmp_eq_u32 s24, 0
    s_cbranch_scc1 L_s_noov
    s_waitcnt vmcnt(0)
    v_and_b32 v27, 0x7ff, v30
    v_lshlrev_b32 v39, 2, v0
    v_add_u32 v39, 0x8000, v39
    v_cmpx_le_i32 vcc, 0, v30
    ds_add_rtn_u32 v26, v27, v34 offset:{CNT}
    ds_write2st64_b32 v39, v28, v29 offset0:{EALO//256} offset1:{EAHI//256}
    s_mov_b64 exec, -1
L_s_noov:
    s_waitcnt lgkmcnt(0)
    s_barrier
    """)
    a.stamp(6)
    a(f"""
    s_cmp_lg_u32 s3, 14
    s_cbranch_scc1 L_nsig2
    v_mov_b32 v39, 0
    s_lshl_b32 s18, s4, 6
    s_mov_b64 exec, 1
    buffer_atomic_add v34, v39, {R(SDBG)}, s18 offen offset:32 sc1
    s_mov_b64 exec, -1
L_nsig2:
    s_movk_i32 s18, {BN}
    v_cmp_gt_u32 s[10:11], s18, v0
    v_lshlrev_b32 v48, 2, v0
    v_lshlrev_b32 v49, 2, v1
    s_cmp_gt_u32 s3, 6
    s_cbranch_scc1 L_s2d
    ds_read_b32 v50, v48 offset:{CNT}
    s_waitcnt lgkmcnt(0)
    v_min_u32 v51, 63, v50
    v_sub_u32 v51, 63, v51
    v_lshlrev_b32 v51, 2, v51
    s_mov_b64 exec, s[10:11]
    ds_add_rtn_u32 v52, v51, v34 offset:{HIST}
    s_mov_b64 exec, -1
L_s2d:
    """)
    a(f"""
    s_waitcnt vmcnt(8)
    s_mov_b32 s20, {NLOG2E:#x}
    v_lshlrev_b32 v40, 16, v40
    v_lshlrev_b32 v41, 16, v41
    v_lshlrev_b32 v42, 16, v42
    v_lshlrev_b32 v43, 16, v43
    v_mul_f32 v40, s20, v40
    v_mul_f32 v41, s20, v41
    v_mul_f32 v42, s20, v42
    v_mul_f32 v43, s20, v43
    v_and_b32 v44, 8, v1
    v_cmp_eq_u32 vcc, 0, v44
    v_cvt_pk_bf16_f32 v40, v40, v41
    v_cvt_pk_bf16_f32 v41, v42, v43
    v_cndmask_b32 v96, 0, v40, vcc
    v_cndmask_b32 v97, 0, v41, vcc
    v_xor_b32 v98, v96, v40
    v_xor_b32 v99, v97, v41
    s_waitcnt lgkmcnt(0)
    s_barrier
    """)
    a(f"""
    s_cmp_gt_u32 s3, 6
    s_cbranch_scc1 L_s3d
    ds_read_b32 v53, v49 offset:{HIST}
    s_waitcnt lgkmcnt(0)
    v_mov_b32 v54, v53
    """)
    a.scan(54)
    a(f"""
    v_sub_u32 v54, v54, v53
    ds_bpermute_b32 v54, v51, v54
    v_max_u32 v50, 1, v50
    s_waitcnt lgkmcnt(0)
    v_add_u32 v54, v54, v52
    v_and_b32 v55, 7, v54
    v_lshrrev_b32 v56, 7, v54
    v_bfe_u32 v57, v54, 3, 4
    v_bfe_i32 v58, v54, 7, 1
    v_and_b32 v58, 15, v58
    v_xor_b32 v57, v57, v58
    v_lshl_add_u32 v58, v57, 2, v56
    v_lshlrev_b32 v58, 2, v58
    v_lshl_add_u32 v57, v57, 3, v55
    v_lshlrev_b32 v57, 3, v57
    v_lshl_add_u32 v57, v56, 1, v57
    s_mov_b64 exec, s[10:11]
    ds_max_u32 v58, v50 offset:{LEN}
    ds_write_b16 v57, v0 offset:{PERM}
    s_mov_b64 exec, -1
L_s3d:
    s_waitcnt lgkmcnt(0)
    s_barrier
    """)
    a.stamp(7)
    a(f"""
    ds_read_b32 v53, v49 offset:{LEN}
    v_mov_b32 v59, {FLAG}
    ds_read_b32 v59, v59
    s_lshl_b32 s18, s3, 2
    s_add_u32 s19, s18, 1
    s_add_u32 s20, s18, 2
    s_add_u32 s21, s18, 3
    s_waitcnt lgkmcnt(0)
    v_mov_b32 v54, v53
    v_readfirstlane_b32 s22, v59
    """)
    a.scan(54)
    a(f"""
    s_nop 0
    v_readlane_b32 s23, v54, 63
    v_sub_u32 v54, v54, v53
    v_readlane_b32 s30, v53, s18
    v_readlane_b32 s31, v53, s19
    v_readlane_b32 s32, v53, s20
    v_readlane_b32 s33, v53, s21
    v_readlane_b32 s34, v54, s18
    s_cmp_gt_u32 s23, {ROWCAP}
    s_cselect_b32 s22, 1, s22
    s_cmp_lg_u32 s22, 0
    s_cbranch_scc1 L_slow
    """)
    if a.force_slow: a("s_branch L_slow")
    a(f"""
    s_cmp_gt_u32 s3, 6
    s_cbranch_scc1 L_s4d
    ds_bpermute_b32 v54, v58, v54
    v_lshlrev_b32 v55, 2, v55
    v_add_u32 v55, {ELL}, v55
    v_mov_b32 v56, {CNT+0x7fc}
    v_mov_b32 v57, {TRASH}
    ds_write_b32 v56, v57
    s_waitcnt lgkmcnt(0)
    v_lshl_add_u32 v54, v54, 5, v55
    s_mov_b64 exec, s[10:11]
    ds_write_b32 v48, v54 offset:{CNT}
    s_mov_b64 exec, -1
L_s4d:
    s_waitcnt lgkmcnt(0)
    s_barrier
    """)
    a.stamp(8)
    for j in range(8): a(f"ds_read_b32 v{10+j}, v{10+j} offset:{CNT}")
    a(f"""
    ds_read_b32 v27, v27 offset:{CNT}
    s_mov_b32 s18, 0xffff0000
    s_lshl_b32 s19, s3, 11
    v_lshl_add_u32 v36, v1, 4, s19
    """)
    for j in range(8):
        off = (j >> 2) * 1024 + (j & 3) * 4
        if off:
            a(f"v_add_u32 v37, {off}, v36\nv_and_or_b32 v{2+j}, v{2+j}, s18, v37")
        else:
            a(f"v_and_or_b32 v{2+j}, v{2+j}, s18, v36")
    a(f"v_add_u32 v37, 0x8000, v48\nv_and_or_b32 v30, v30, s18, v37")
    for j in range(8):
        a(f"s_waitcnt lgkmcnt(8)\nv_lshl_add_u32 v{10+j}, v{18+j}, 5, v{10+j}\nds_write_b32 v{10+j}, v{2+j}")
    a(f"""
    s_waitcnt lgkmcnt(8)
    v_lshl_add_u32 v27, v26, 5, v27
    ds_write_b32 v27, v30
    """)
    poll2(a, "a")
    a(f"""
    s_waitcnt vmcnt(0) lgkmcnt(0)
    s_barrier
    """)

def poll2(a, sfx):
    a(f"""
    s_cmp_lg_u32 s3, 14
    s_cbranch_scc1 L_np2{sfx}
    v_mov_b32 v60, 0
    s_lshl_b32 s19, s4, 6
    s_mov_b32 s18, 0x40000
    s_mov_b64 exec, 1
L_poll2{sfx}:
    buffer_load_dword v61, v60, {R(SDBG)}, s19 offen offset:32 sc1
    s_waitcnt vmcnt(0)
    v_cmp_ne_u32 vcc, 64, v61
    s_sub_u32 s18, s18, 1
    s_cbranch_scc1 L_poll2d{sfx}
    s_cbranch_vccz L_poll2d{sfx}
    s_sleep 2
    s_branch L_poll2{sfx}
L_poll2d{sfx}:
    s_mov_b64 exec, -1
L_np2{sfx}:
    """)

DEN, NUM, AP, T0, EA0, UR, AUN, GR, WC, SEL, IDM, XR = 28, 32, 36, 40, 48, 56, 60, 64, 96, 100, 104, 106
IDX, EAD, PTR, IDS, VAU, VOUT, CAU, COUT = 108, 112, 114, 116, 118, 119, 120, 121
def v4(r): return f"v[{r}:{r+3}]"
def v2(r): return f"v[{r}:{r+1}]"
EAOFF = f"offset0:{EALO//256} offset1:{EAHI//256}"

def body(a, k, bnd):
    D = a.D
    T = T0 + 4*(k & 1); Tn = T0 + 4*((k+1) & 1)
    EAn = EA0 + 4*((k+1) & 1); EAc = EA0 + 4*(k & 1)
    Gc = GR + 4*k; Gn = GR + 4*((k+1) % D); Gl = GR + 4*((k-1) % D)
    Iu = IDX + 2*((k+1) & 1); Iw = IDX + 2*(k & 1)
    a(f"""
    s_waitcnt lgkmcnt(0)
    buffer_load_dwordx4 {v4(Gl)}, {v2(Iu)}, {R(STAB)}, 0 idxen offen sc1
    """)
    if bnd: a(f"v_mfma_f32_16x16x32_bf16 {v4(AP)}, {v4(SEL)}, {v4(AUN)}, 0")
    a(f"""
    s_mov_b64 exec, s[36:37]
    ds_read2st64_b32 {v2(EAc)}, v{EAD} {EAOFF}
    ds_read2st64_b32 {v2(EAc+2)}, v{EAD+1} {EAOFF}
    ds_read_u16 v{EAD}, v{PTR+1} offset:{(k+3)*32}
    ds_read_u16 v{EAD+1}, v{PTR+1} offset:{(k+3)*32+4}
    s_mov_b64 exec, -1
    ds_read_u16 v{Iw}, v{PTR} offset:{(k+D)*32}
    v_exp_f32 v{T}, v{T}
    v_mfma_f32_16x16x32_bf16 {v4(Tn)}, {v4(EAn)}, {v4(WC)}, {v4(AP)}
    v_exp_f32 v{T+1}, v{T+1}
    v_exp_f32 v{T+2}, v{T+2}
    v_exp_f32 v{T+3}, v{T+3}
    v_pk_add_f32 {v2(T)}, {v2(T)}, 1.0 op_sel_hi:[1,0]
    v_pk_add_f32 {v2(T+2)}, {v2(T+2)}, 1.0 op_sel_hi:[1,0]
    s_waitcnt vmcnt({D-2})
    v_rcp_f32 v{T}, v{T}
    v_mfma_f32_16x16x32_bf16 {v4(Tn)}, {v4(SEL)}, {v4(Gn)}, {v4(Tn)}
    v_rcp_f32 v{T+1}, v{T+1}
    v_rcp_f32 v{T+2}, v{T+2}
    v_rcp_f32 v{T+3}, v{T+3}
    v_pk_add_f32 {v2(DEN)}, {v2(DEN)}, {v2(T)}
    v_pk_add_f32 {v2(DEN+2)}, {v2(DEN+2)}, {v2(T+2)}
    v_pk_fma_f32 {v2(NUM)}, {v2(T)}, {v2(Gc)}, {v2(NUM)}
    v_pk_fma_f32 {v2(NUM+2)}, {v2(T+2)}, {v2(Gc+2)}, {v2(NUM+2)}
    """)
    if k == D-1: a(f"v_lshl_add_u64 {v2(PTR)}, {v2(PTR)}, 0, s[38:39]")

def phase_m(a):
    D = a.D
    a.stamp(9)
    a(f"""
    s_cmp_gt_u32 s3, 12
    s_cbranch_scc1 L_nopf
    s_lshr_b32 s18, s2, 3
    s_mul_i32 s18, s18, {784*128}
    v_lshlrev_b32 v2, 7, v0
    buffer_load_dword v127, v2, {R(STABW)}, s18 offen sc1
L_nopf:
    v_lshrrev_b32 v2, 3, v1
    v_and_b32 v3, 7, v1
    v_bfe_u32 v4, v1, 2, 2
    v_lshrrev_b32 v5, 4, v1
    v_and_b32 v6, 3, v1
    s_lshl_b32 s18, s34, 5
    s_add_u32 s18, s18, {ELL}
    s_add_u32 s19, s18, 2
    v_lshl_add_u32 v{PTR}, v2, 2, s19
    v_lshl_add_u32 v{PTR+1}, v4, 3, s18
    s_lshl_b32 s19, s3, 6
    v_lshl_add_u32 v7, v2, 3, s19
    ds_read_b64 {v2(IDS)}, v7 offset:{PERM}
    """)
    for q in range(D-1): a(f"ds_read_u16 v{8+q}, v{PTR} offset:{q*32}")
    a(f"""
    ds_read_u16 v{IDX+2}, v{PTR} offset:{(D-1)*32}
    ds_read_u16 v16, v{PTR+1}
    ds_read_u16 v17, v{PTR+1} offset:4
    ds_read_u16 v18, v{PTR+1} offset:32
    ds_read_u16 v19, v{PTR+1} offset:36
    v_cmp_eq_u32 s[36:37], v5, v6
    v_lshlrev_b32 v{IDX+1}, 4, v3
    v_lshlrev_b32 v{IDX+3}, 4, v3
    v_mul_u32_u24 v{CAU}, {AUS}, v3
    v_add_u32 v{CAU}, {AU}, v{CAU}
    s_mul_i32 s18, s5, {BN*256}
    s_lshl_b32 s19, s4, 6
    s_add_u32 s18, s18, s19
    v_lshl_add_u32 v{COUT}, v3, 3, s18
    s_movk_i32 s35, 256
    s_movk_i32 s38, {D*32}
    s_movk_i32 s39, {D*32}
    s_mov_b32 s28, {EPS:#x}
    s_mov_b32 s29, {EPS:#x}
    v_cmp_eq_u32 vcc, v4, v5
    v_mov_b32 v20, 0x3f80
    v_mov_b32 v21, 4
    v_cndmask_b32 v21, v21, v6, vcc
    """)
    for r in range(4):
        a(f"v_cmp_eq_u32 vcc, {r}, v21\ns_nop 1\nv_cndmask_b32 v{SEL+r}, 0, v20, vcc")
    a(f"""
    v_and_b32 v22, 1, v6
    v_lshlrev_b32 v22, 4, v22
    v_lshlrev_b32 v22, v22, v20
    v_cmp_gt_u32 vcc, 2, v6
    v_mov_b64 {v2(EA0)}, 0
    v_mov_b64 {v2(EA0+2)}, 0
    v_cndmask_b32 v{IDM}, 0, v22, vcc
    v_xor_b32 v{IDM+1}, v{IDM}, v22
    v_mov_b64 {v2(EA0+4)}, 0
    v_mov_b64 {v2(EA0+6)}, 0
    v_mov_b64 {v2(DEN)}, s[28:29]
    v_mov_b64 {v2(DEN+2)}, s[28:29]
    v_mov_b64 {v2(NUM)}, 0
    v_mov_b64 {v2(NUM+2)}, 0
    s_waitcnt lgkmcnt(0)
    v_mad_u32_u16 v{VOUT}, v{IDS}, s35, v{COUT}
    v_mad_u32_u16 v{VAU}, v{IDS}, 16, v{CAU}
    buffer_load_dwordx2 {v2(XR)}, v{VOUT}, {R(SX)}, 0 offen
    """)
    for q in range(D-1):
        a(f"v_lshl_add_u32 v{8+q}, v{8+q}, 7, v{IDX+1}\nbuffer_load_dwordx4 {v4(GR+4*q)}, v{8+q}, {R(STABW)}, 0 offen sc1")
    a(f"""
    ds_read_b128 {v4(UR)}, v{VAU}
    v_mad_u32_u16 v{VAU}, v{IDS}, 16, v{CAU} op_sel:[1,0,0,0]
    ds_read_b128 {v4(AUN)}, v{VAU}
    s_mov_b64 exec, s[36:37]
    ds_read2st64_b32 {v2(EA0)}, v16 {EAOFF}
    ds_read2st64_b32 {v2(EA0+2)}, v17 {EAOFF}
    ds_read2st64_b32 {v2(EA0+4)}, v18 {EAOFF}
    ds_read2st64_b32 {v2(EA0+6)}, v19 {EAOFF}
    ds_read_u16 v{EAD}, v{PTR+1} offset:64
    ds_read_u16 v{EAD+1}, v{PTR+1} offset:68
    s_mov_b64 exec, -1
    s_sub_u32 s24, s30, 1
    s_waitcnt lgkmcnt(0)
    v_mfma_f32_16x16x32_bf16 {v4(AP)}, {v4(SEL)}, {v4(UR)}, 0
    s_nop 1
    v_mfma_f32_16x16x32_bf16 {v4(T0)}, {v4(EA0)}, {v4(WC)}, {v4(AP)}
    s_waitcnt vmcnt({D-2})
    v_mfma_f32_16x16x32_bf16 {v4(T0)}, {v4(SEL)}, {v4(GR)}, {v4(T0)}
    """)
    a.stamp(10)
    for k in range(D):
        a(f"""
L_m{k}:
        s_sub_u32 s24, s24, 1
        s_cbranch_scc1 L_b{k}
        """)
        body(a, k, False)
    a("s_branch L_m0")
    for k in range(D):
        a(f"L_b{k}:")
        body(a, k, True)
        a(f"""
        v_rcp_f32 v{DEN}, v{DEN}
        v_rcp_f32 v{DEN+1}, v{DEN+1}
        v_rcp_f32 v{DEN+2}, v{DEN+2}
        v_rcp_f32 v{DEN+3}, v{DEN+3}
        s_cmp_ge_u32 s30, {D-2}
        s_cbranch_scc1 L_bx{k}
        s_waitcnt vmcnt(0)
L_bx{k}:
        v_pk_fma_f32 {v2(NUM)}, {v2(NUM)}, {v2(DEN)}, {v2(UR)}
        v_pk_fma_f32 {v2(NUM+2)}, {v2(NUM+2)}, {v2(DEN+2)}, {v2(UR+2)}
        ds_read_b128 {v4(UR)}, v{VAU}
        v_max_f32 v{NUM}, 0, v{NUM}
        v_max_f32 v{NUM+1}, 0, v{NUM+1}
        v_max_f32 v{NUM+2}, 0, v{NUM+2}
        v_max_f32 v{NUM+3}, 0, v{NUM+3}
        v_lshrrev_b64 {v2(IDS)}, 16, {v2(IDS)}
        v_mov_b64 {v2(DEN)}, s[28:29]
        v_mfma_f32_4x4x4_16b_bf16 v[122:125], {v2(IDM)}, {v2(XR)}, {v4(NUM)}
        v_mov_b64 {v2(DEN+2)}, s[28:29]
        v_mad_u32_u16 v{VAU}, v{IDS}, 16, v{CAU} op_sel:[1,0,0,0]
        v_mov_b64 {v2(NUM)}, 0
        v_mov_b64 {v2(NUM+2)}, 0
        ds_read_b128 {v4(AUN)}, v{VAU}
        v_cvt_pk_bf16_f32 v122, v122, v123
        v_cvt_pk_bf16_f32 v123, v124, v125
        s_mov_b32 s30, s31
        s_mov_b32 s31, s32
        s_mov_b32 s32, s33
        s_mov_b32 s33, 0
        buffer_store_dwordx2 v[122:123], v{VOUT}, {R(SOUT)}, 0 offen
        v_mad_u32_u16 v{VOUT}, v{IDS}, s35, v{COUT}
        s_sub_u32 s24, s30, 1
        s_cbranch_scc1 L_fin
        buffer_load_dwordx2 {v2(XR)}, v{VOUT}, {R(SX)}, 0 offen
        s_branch L_m{(k+1) % D}
        """)

def slow(a):
    a(f"""
L_slow:
    s_waitcnt vmcnt(0) lgkmcnt(0)
    s_barrier
    v_mov_b64 v[4:5], 0
    v_mov_b64 v[6:7], 0
    v_lshlrev_b32 v2, 4, v0
    v_add_u32 v2, {ACC}, v2
    s_mov_b32 s18, 0
L_sz:
    v_cmp_gt_u32 vcc, {ACC+100352}, v2
    s_mov_b64 exec, vcc
    ds_write_b128 v2, v[4:7]
    s_mov_b64 exec, -1
    v_add_u32 v2, 16384, v2
    s_add_u32 s18, s18, 1
    s_cmp_lt_u32 s18, 7
    s_cbranch_scc1 L_sz
    s_cmp_gt_u32 s3, 1
    s_cbranch_scc1 L_sw
    v_lshrrev_b32 v3, 4, v0
    v_bfe_u32 v4, v0, 2, 2
    v_and_b32 v5, 3, v0
    v_lshl_add_u32 v3, v3, 2, v5
    v_lshlrev_b32 v3, 1, v3
    v_lshl_add_u32 v3, v4, 8, v3
    s_lshl_b32 s20, s4, 6
    buffer_load_ushort v3, v3, {R(SWC)}, s20 offen
    v_lshlrev_b32 v4, 2, v0
    v_add_u32 v4, {WCF}, v4
    s_waitcnt vmcnt(0)
    v_lshlrev_b32 v3, 16, v3
    v_mul_f32 v3, {NLOG2E:#x}, v3
    ds_write_b32 v4, v3
L_sw:
    """)
    poll2(a, "b")
    a(f"""
    s_waitcnt vmcnt(0) lgkmcnt(0)
    s_barrier
    s_mul_i32 s20, s5, {BN}
    s_mov_b32 s21, {E}
    s_movk_i32 s22, {BN}
    v_mov_b32 v2, v0
    s_mov_b32 s18, 0
L_se:
    v_lshlrev_b32 v3, 2, v2
    v_lshlrev_b32 v4, 3, v2
    buffer_load_dword v5, v3, {R(SDST)}, 0 offen
    v_cmp_gt_u32 s[24:25], s21, v2
    s_waitcnt vmcnt(0)
    v_subrev_u32 v5, s20, v5
    v_cmp_gt_u32 vcc, s22, v5
    s_and_b64 exec, vcc, s[24:25]
    s_cbranch_execz L_sn
    buffer_load_dword v6, v3, {R(SSRC)}, 0 offen
    buffer_load_dwordx2 v[8:9], v4, {R(SEA)}, 0 offen
    v_lshlrev_b32 v7, 4, v5
    v_add_u32 v7, {AU}, v7
    v_lshlrev_b32 v14, 8, v5
    v_add_u32 v14, {ACC}, v14
    v_mov_b32 v15, {WCF}
    s_mov_b32 s19, 0
    s_waitcnt vmcnt(0)
    v_lshlrev_b32 v6, 7, v6
    v_lshlrev_b32 v10, 16, v8
    v_and_b32 v11, 0xffff0000, v8
    v_lshlrev_b32 v12, 16, v9
    v_and_b32 v13, 0xffff0000, v9
L_sc:
    buffer_load_dwordx4 v[16:19], v6, {R(STABW)}, s19 offen sc1
    ds_read_b128 v[20:23], v7
    ds_read_b128 v[24:27], v15
    ds_read_b128 v[28:31], v15 offset:16
    ds_read_b128 v[32:35], v15 offset:32
    ds_read_b128 v[36:39], v15 offset:48
    s_waitcnt vmcnt(0) lgkmcnt(0)
    """)
    for r in range(4):
        a(f"""
        v_lshlrev_b32 v40, 16, v{16+r}
        v_lshlrev_b32 v41, 16, v{20+r}
        v_add_f32 v40, v40, v41
        v_fmac_f32 v40, v10, v{24+r}
        v_fmac_f32 v40, v11, v{28+r}
        v_fmac_f32 v40, v12, v{32+r}
        v_fmac_f32 v40, v13, v{36+r}
        v_exp_f32 v40, v40
        s_nop 0
        v_add_f32 v40, 1.0, v40
        v_rcp_f32 v40, v40
        s_nop 0
        v_mul_f32 v41, v40, v{16+r}
        ds_add_f32 v14, v40 offset:{4*r}
        ds_add_f32 v14, v41 offset:{128+4*r}
        """)
    a(f"""
    v_add_u32 v7, {AUS}, v7
    v_add_u32 v14, 16, v14
    v_add_u32 v15, 64, v15
    s_add_u32 s19, s19, 16
    s_cmp_lt_u32 s19, 128
    s_cbranch_scc1 L_sc
L_sn:
    s_mov_b64 exec, -1
    v_add_u32 v2, 1024, v2
    s_add_u32 s18, s18, 1
    s_cmp_lt_u32 s18, {(E+1023)//1024}
    s_cbranch_scc1 L_se
    s_waitcnt lgkmcnt(0)
    s_barrier
    s_mul_i32 s20, s5, {BN*256}
    s_lshl_b32 s19, s4, 6
    s_add_u32 s20, s20, s19
    v_mov_b32 v2, v0
    s_mov_b32 s18, 0
L_so:
    v_cmp_gt_u32 vcc, {BN*8}, v2
    s_mov_b64 exec, vcc
    s_cbranch_execz L_fin
    v_lshrrev_b32 v3, 3, v2
    v_and_b32 v4, 7, v2
    v_lshlrev_b32 v5, 8, v3
    v_lshl_add_u32 v6, v4, 3, v5
    buffer_load_dwordx2 v[8:9], v6, {R(SX)}, s20 offen
    v_lshl_add_u32 v5, v4, 4, v5
    v_add_u32 v5, {ACC}, v5
    ds_read_b128 v[16:19], v5
    ds_read_b128 v[20:23], v5 offset:128
    v_mul_u32_u24 v7, {AUS}, v4
    v_lshl_add_u32 v7, v3, 4, v7
    v_add_u32 v7, {AU}, v7
    ds_read_b128 v[24:27], v7
    s_waitcnt vmcnt(0) lgkmcnt(0)
    v_lshlrev_b32 v10, 16, v8
    v_and_b32 v11, 0xffff0000, v8
    v_lshlrev_b32 v12, 16, v9
    v_and_b32 v13, 0xffff0000, v9
    """)
    for r in range(4):
        a(f"""
        v_add_f32 v{16+r}, {EPS:#x}, v{16+r}
        v_rcp_f32 v{16+r}, v{16+r}
        s_nop 0
        v_fmac_f32 v{24+r}, v{16+r}, v{20+r}
        v_max_f32 v{24+r}, 0, v{24+r}
        v_add_f32 v{24+r}, v{24+r}, v{10+r}
        """)
    a(f"""
    v_cvt_pk_bf16_f32 v8, v24, v25
    v_cvt_pk_bf16_f32 v9, v26, v27
    buffer_store_dwordx2 v[8:9], v6, {R(SOUT)}, s20 offen
    v_add_u32 v2, 1024, v2
    s_add_u32 s18, s18, 1
    s_cmp_lt_u32 s18, 4
    s_cbranch_scc1 L_so
    """)

def fin(a):
    a("L_fin:")
    if a.prof:
        a("s_mov_b64 exec, -1\ns_waitcnt vmcnt(0)")
        a.stamp(11)
        for k in range(16): a(f"v_writelane_b32 v2, s{84+k}, {k}")
        a(f"""
        s_lshl_b32 s18, s2, 10
        s_lshl_b32 s19, s3, 6
        s_add_u32 s18, s18, s19
        s_add_u32 s18, s18, {PROFOFF}
        v_lshlrev_b32 v3, 2, v1
        s_mov_b64 exec, 0xffff
        buffer_store_dword v2, v3, {R(SSEG)}, s18 offen
        """)
    a("L_end:\ns_endpgm")

def build(D=8, prof=False, force_slow=False):
    a = G(D, prof, force_slow)
    prologue(a); phase_p(a); phase_g(a); phase_s(a); phase_m(a); slow(a); fin(a)
    errs = hz.check(a.L)
    for e in errs: print("WARN", e, file=sys.stderr)
    ref = open(f"cdna_kernels/{NAME}.s.ref").read().split('\n')
    head = [l for l in ref if l.startswith(';') and '@launch' not in l]
    out = head + [f"; @launch grid=(256,1,1) block=(1024,1,1) lds={LDS_SIZE}",
        '.amdgcn_target "amdgcn-amd-amdhsa--gfx950"', '.text', f'.globl {NAME}_kernel', '.p2align 8',
        f'.type {NAME}_kernel,@function', f'{NAME}_kernel:'] + a.L + [
        '.section .rodata,"a"', '.p2align 6', f'.amdhsa_kernel {NAME}_kernel',
        '  .amdhsa_next_free_vgpr 128', '  .amdhsa_next_free_sgpr 102', '  .amdhsa_accum_offset 128',
        '  .amdhsa_group_segment_fixed_size 0', '  .amdhsa_kernarg_size 96', '  .amdhsa_user_sgpr_count 2',
        '  .amdhsa_user_sgpr_kernarg_segment_ptr 1', '  .amdhsa_system_sgpr_workgroup_id_x 1', '.end_amdhsa_kernel', '']
    return '\n'.join(out)

if __name__ == '__main__':
    ap = argparse.ArgumentParser()
    ap.add_argument('-o', default=f"cdna_kernels/{NAME}.s")
    ap.add_argument('-D', type=int, default=8)
    ap.add_argument('--prof', action='store_true')
    ap.add_argument('--slow', action='store_true')
    x = ap.parse_args()
    open(x.o, 'w').write(build(x.D, x.prof, x.slow))
```

```python
import sys, struct, argparse
import hz

NAME = "standalone__edge_featured_mpnn_gatedgcn__graph"
N, E = 25000, 400000
BN = 392
CH = 1564
MARK = 0x800007FC
DUMMY = 25100
OVF = 8 << 20
TABOFF = 16 << 20
TABSL = 25600 * 128
PROFOFF = 64 << 20
PCNT, HIST, LEN, FLAG, TRASH, PERM, CNT = 0, 256, 512, 768, 800, 1024, 2048
XT = 4096
WL = XT + 100352
IMG = WL + 32768
LDS_SIZE = 163840
AUS = 6288
AU = LDS_SIZE - 8 * AUS
STG = WL
EALO = 4096
EASZ = 37120
EAHI = EALO + EASZ
ELL = EAHI + EASZ
ROWCAP = 1008
ZSLOT = 9216 * 4
ACC = 4096
WCF = WL
assert ELL + 32768 <= AU and STG + 8192 <= AU and IMG + 24576 <= LDS_SIZE
NLOG2E = struct.unpack('<I', struct.pack('<f', -1.4426950408889634))[0]
EPS = struct.unpack('<I', struct.pack('<f', 1e-6))[0]

class G:
    def __init__(s, D=8, prof=False, force_slow=False, opt=()):
        s.opt = set(opt)
        s.L = []; s.D = D; s.prof = prof; s.force_slow = force_slow; s.nst = 0; s.names = []; s.sreg = 63
    def __call__(s, txt):
        for l in txt.strip('\n').split('\n'):
            l = l.strip()
            if l: s.L.append(('' if l.endswith(':') else '    ') + l)
    def srd(s, d, p, n, extra1=None):
        s(f"s_mov_b32 s{d}, s{p}")
        if extra1 is None: s(f"s_mov_b32 s{d+1}, s{p+1}")
        else: s(f"s_or_b32 s{d+1}, s{p+1}, {extra1:#x}")
        s(f"s_mov_b32 s{d+2}, {n:#x}\ns_mov_b32 s{d+3}, 0x20000")
    def stamp(s, k):
        if s.prof:
            s.names.append(k)
            s(f"s_memrealtime s[100:101]\ns_waitcnt lgkmcnt(0)\nv_writelane_b32 v{s.sreg}, s100, {len(s.names)}")
    def scan(s, v):
        for m in ("row_shr:1 row_mask:0xf bank_mask:0xf bound_ctrl:0", "row_shr:2 row_mask:0xf bank_mask:0xf bound_ctrl:0",
                  "row_shr:4 row_mask:0xf bank_mask:0xf bound_ctrl:0", "row_shr:8 row_mask:0xf bank_mask:0xf bound_ctrl:0",
                  "row_bcast:15 row_mask:0xa bank_mask:0xf", "row_bcast:31 row_mask:0xc bank_mask:0xf"):
            s(f"s_nop 1\nv_add_u32_dpp v{v}, v{v}, v{v} {m}")

SX, SEA, SSRC, SDST, SW, SOUT, SDBG, SSEG, STABW, STAB, SWC = 40, 44, 48, 52, 56, 60, 64, 68, 72, 76, 80
def R(d): return f"s[{d}:{d+3}]"

def prologue(a):
    a(f"""
    s_cmp_ge_u32 s2, 256
    s_cbranch_scc1 L_end
    s_load_dwordx16 s[16:31], s[0:1], 0
    s_load_dwordx8 s[32:39], s[0:1], 64
    """)
    if a.prof: a("s_memrealtime s[84:85]\nv_mov_b32 v63, 0")
    a(f"""
    v_lshrrev_b32 v2, 6, v0
    v_and_b32 v1, 63, v0
    s_and_b32 s4, s2, 3
    v_readfirstlane_b32 s3, v2
    s_lshr_b32 s5, s2, 3
    s_bfe_u32 s6, s2, 0x10002
    s_lshl_b32 s6, s6, 5
    s_add_u32 s5, s5, s6
    v_lshlrev_b32 v3, 3, v0
    v_lshlrev_b32 v4, 4, v0
    s_mul_i32 s6, s2, {CH*4}
    s_lshl_b32 s7, s6, 1
    s_movk_i32 s8, {CH//2}
    s_cmp_eq_u32 s2, 255
    s_cselect_b32 s8, {(E-255*CH)//2}, s8
    v_cmp_gt_u32 s[10:11], s8, v0
    v_and_b32 v5, 0x18, v1
    v_lshrrev_b32 v6, 5, v1
    v_lshlrev_b32 v6, 2, v6
    v_bfe_u32 v7, v1, 1, 2
    v_add3_u32 v5, v5, v6, v7
    v_and_b32 v6, 1, v1
    v_lshlrev_b32 v6, 4, v6
    v_lshl_or_b32 v5, v5, 8, v6
    s_waitcnt lgkmcnt(0)
    """)
    a.stamp('ka')
    a.srd(SDST, 22, E*4); a.srd(SSRC, 20, E*4); a.srd(SEA, 18, E*8)
    a(f"""
    s_cmp_eq_u64 s[10:11], 0
    s_cbranch_scc1 L_noedge
    s_mov_b64 exec, s[10:11]
    buffer_load_dwordx2 v[8:9], v3, {R(SDST)}, s6 offen
    buffer_load_dwordx2 v[10:11], v3, {R(SSRC)}, s6 offen
    buffer_load_dwordx4 v[12:15], v4, {R(SEA)}, s7 offen
    s_mov_b64 exec, -1
L_noedge:
    s_lshr_b32 s9, s3, 2
    s_cmp_eq_u32 s9, 0
    s_cselect_b64 s[12:13], s[26:27], s[32:33]
    s_cmp_eq_u32 s9, 2
    s_cselect_b64 s[12:13], s[24:25], s[12:13]
    s_cmp_eq_u32 s9, 3
    s_cselect_b64 s[12:13], s[30:31], s[12:13]
    """)
    a.stamp('el')
    a.srd(SW, 12, 32768)
    a(f"""
    s_and_b32 s14, s3, 3
    s_lshl_b32 s15, s9, 13
    s_lshl_b32 s9, s14, 10
    s_add_u32 s15, s15, s9
    s_add_u32 m0, s15, {WL}
    s_lshl_b32 s14, s14, 13
    s_lshl_b32 s9, s4, 6
    s_add_u32 s14, s14, s9
    buffer_load_dwordx4 v5, {R(SW)}, s14 offen lds
    s_add_u32 m0, s15, {WL+4096}
    s_add_u32 s14, s14, 32
    buffer_load_dwordx4 v5, {R(SW)}, s14 offen lds
    """)
    a.stamp('wd')
    a.srd(SX, 16, N*256)
    a(f"""
    s_cmp_lt_u32 s3, 13
    s_cbranch_scc1 L_nox
    v_lshrrev_b32 v6, 4, v1
    v_and_b32 v7, 15, v1
    v_xor_b32 v7, v7, v6
    v_lshlrev_b32 v6, 8, v6
    v_lshl_or_b32 v16, v7, 4, v6
    v_xor_b32 v17, 64, v16
    v_xor_b32 v18, 0x80, v16
    v_xor_b32 v19, 0xc0, v16
    s_sub_u32 s9, s3, 13
    s_lshl_b32 s9, s9, 12
    s_mul_i32 s14, s5, {BN*256}
L_xl:
    s_add_u32 m0, s9, {XT}
    s_add_u32 s15, s14, s9
    buffer_load_dwordx4 v16, {R(SX)}, s15 offen lds
    buffer_load_dwordx4 v17, {R(SX)}, s15 offen offset:1024 lds
    s_cmp_eq_u32 s9, {24*4096}
    s_cbranch_scc1 L_nox
    buffer_load_dwordx4 v18, {R(SX)}, s15 offen offset:2048 lds
    buffer_load_dwordx4 v19, {R(SX)}, s15 offen offset:3072 lds
    s_add_u32 s9, s9, {3*4096}
    s_cmp_le_u32 s9, {24*4096}
    s_cbranch_scc1 L_xl
L_nox:
    """)
    a.stamp('xd')
    a.srd(SOUT, 34, N*256); a.srd(SDBG, 36, 256); a.srd(SWC, 28, 1024)
    a.srd(SSEG, 38, (PROFOFF + (1 << 20)) if a.prof else TABOFF)
    a(f"""
    s_mul_i32 s9, s4, {TABSL}
    s_add_u32 s9, s9, {TABOFF}
    s_add_u32 s12, s38, s9
    s_addc_u32 s13, s39, 0
    """)
    a.srd(STABW, 12, TABSL); a.srd(STAB, 12, 25600, extra1=128 << 16)
    a(f"""
    s_cmp_lt_u32 s3, 8
    s_cselect_b32 s9, {MARK:#x}, 0
    v_mov_b32 v20, s9
    v_mov_b32 v21, s9
    v_mov_b32 v22, s9
    v_mov_b32 v23, s9
    v_lshrrev_b32 v6, 3, v0
    v_mul_u32_u24 v6, 384, v6
    v_and_b32 v7, 7, v0
    v_lshl_add_u32 v6, v7, 4, v6
    v_add_u32 v6, {IMG+256}, v6
    v_subrev_u32 v7, {512*16}, v4
    s_cbranch_scc1 L_i1
    v_mov_b32 v6, v7
L_i1:
    s_cmp_ge_u32 s3, 12
    s_cbranch_scc1 L_i2
    ds_write_b128 v6, v[20:23]
L_i2:
    s_waitcnt lgkmcnt(0)
    """)
    a.stamp('pb')
    a("s_barrier")

def phase_p(a):
    a.stamp(1)
    a(f"""
    s_cmp_eq_u64 s[10:11], 0
    s_cbranch_scc1 L_p_done
    s_mov_b64 exec, s[10:11]
    s_mov_b32 s16, 42800
    s_mov_b32 s17, {(-MARK) & 0xffffffff:#x}
    s_movk_i32 s18, 384
    v_mov_b32 v2, 1
    v_mov_b32 v3, {IMG}
    s_waitcnt vmcnt(4)
    """)
    a.stamp('p_dst')
    a(f"""
    v_mul_u32_u24 v16, s16, v8
    v_mul_u32_u24 v17, s16, v9
    v_lshrrev_b32 v16, 24, v16
    v_lshrrev_b32 v17, 24, v17
    v_lshlrev_b32 v18, 2, v16
    v_lshlrev_b32 v19, 2, v17
    ds_add_rtn_u32 v20, v18, v2 offset:{PCNT}
    ds_add_rtn_u32 v21, v19, v2 offset:{PCNT}
    v_mul_u32_u24 v18, {BN*4}, v16
    v_mul_u32_u24 v19, {BN*4}, v17
    v_lshl_add_u32 v8, v8, 2, s17
    v_lshl_add_u32 v9, v9, 2, s17
    v_sub_u32 v8, v8, v18
    v_sub_u32 v9, v9, v19
    v_mad_u32_u24 v18, v16, s18, v3
    v_mad_u32_u24 v19, v17, s18, v3
    s_waitcnt vmcnt(3)
    v_lshl_add_u32 v8, v10, 16, v8
    v_lshl_add_u32 v9, v11, 16, v9
    s_waitcnt lgkmcnt(0)
    v_add_u32 v22, v20, v16
    v_add_u32 v23, v21, v17
    v_and_b32 v22, 31, v22
    v_and_b32 v23, 31, v23
    v_lshl_add_u32 v22, v22, 2, v18
    v_lshl_add_u32 v23, v23, 2, v19
    v_cmp_gt_u32 s[12:13], 32, v20
    v_cmp_gt_u32 s[14:15], 32, v21
    s_waitcnt vmcnt(2)
    s_mov_b64 exec, s[12:13]
    ds_write2_b32 v22, v12, v13 offset0:0 offset1:32
    ds_add_u32 v22, v8 offset:256
    s_mov_b64 exec, s[14:15]
    ds_write2_b32 v23, v14, v15 offset0:0 offset1:32
    ds_add_u32 v23, v9 offset:256
    s_waitcnt vmcnt(0)
    """)
    for j in range(2):
        m = ("s[12:13]", "s[14:15]")[j]
        rk, bk, base, sd, lo, hi = 20+j, 16+j, 18+j, 8+j, 12+2*j, 13+2*j
        a(f"""
        s_andn2_b64 exec, s[10:11], {m}
        s_cbranch_execz L_po{j}
        v_cmp_lt_u32 vcc, 62, v{rk}
        s_andn2_b64 s[20:21], exec, vcc
        s_mov_b64 exec, vcc
        v_mov_b32 v24, {FLAG}
        ds_or_b32 v24, v2
        s_mov_b64 exec, s[20:21]
        s_cbranch_execz L_po{j}
        v_mov_b32 v24, 0x800
        ds_add_u32 v{base}, v24 offset:256
        v_mov_b32 v24, v{lo}
        v_mov_b32 v25, v{hi}
        v_add_u32 v26, {MARK:#x}, v{sd}
        v_mov_b32 v27, 0
        v_lshlrev_b32 v28, 9, v{bk}
        v_lshl_add_u32 v28, v{rk}, 4, v28
        s_lshl_b32 s19, s2, 15
        s_add_u32 s19, s19, {OVF-512}
        buffer_store_dwordx4 v[24:27], v28, {R(SSEG)}, s19 offen sc1
        s_nop 1
L_po{j}:
        """)
    a(f"""
    s_mov_b64 exec, -1
    s_branch L_pw1
L_p_done:
    s_cmp_lt_u32 s3, 13
    s_cbranch_scc1 L_pw0
    s_waitcnt vmcnt(32)
    s_branch L_pw1
L_pw0:
    s_waitcnt vmcnt(0)
L_pw1:
    s_waitcnt lgkmcnt(0)
    """)
    a.stamp('p_pb')
    a("s_barrier")
    a.stamp(2)
    a(f"""
    s_cmp_ge_u32 s3, 12
    s_cbranch_scc1 L_ps
    v_add_u32 v2, {IMG}, v4
    ds_read_b128 v[8:11], v2
    ds_read_b128 v[12:15], v2 offset:12288
    s_mul_i32 s16, s2, 24576
    s_add_u32 s17, s16, 12288
    s_waitcnt lgkmcnt(1)
    buffer_store_dwordx4 v[8:11], v4, {R(SSEG)}, s16 offen sc1
    s_waitcnt lgkmcnt(0)
    buffer_store_dwordx4 v[12:15], v4, {R(SSEG)}, s17 offen sc1
L_ps:
    """)

def phase_g(a):
    a(f"""
    s_and_b32 s16, s3, 1
    s_lshr_b32 s17, s3, 1
    s_lshl_b32 s18, s16, 14
    s_add_u32 s18, s18, {WL}
    v_lshl_add_u32 v2, v1, 3, s18
    v_mov_b32 v3, {FLAG}
    ds_read_b32 v3, v3
    """)
    for mm in range(2):
        for ft in range(2):
            for ks in range(4):
                r = 64 + ((mm*2+ft)*4+ks)*4
                o = mm*8192 + ft*4096 + ks*1024
                a(f"ds_read_b64_tr_b16 v[{r}:{r+1}], v2 offset:{o}\nds_read_b64_tr_b16 v[{r+2}:{r+3}], v2 offset:{o+512}")
    a(f"""
    v_and_b32 v16, 15, v1
    v_lshrrev_b32 v17, 4, v1
    v_xor_b32 v18, v16, v17
    v_lshlrev_b32 v18, 4, v18
    v_lshl_or_b32 v18, v16, 8, v18
    s_lshl_b32 s18, s17, 12
    s_add_u32 s18, s18, {XT}
    v_add_u32 v4, s18, v18
    v_xor_b32 v5, 64, v4
    v_xor_b32 v6, 0x80, v4
    v_xor_b32 v7, 0xc0, v4
    v_bfe_u32 v18, v16, 1, 2
    v_xor_b32 v18, v18, v17
    v_lshlrev_b32 v18, 4, v18
    v_lshl_or_b32 v18, v16, 6, v18
    s_lshl_b32 s18, s17, 10
    s_add_u32 s18, s18, {STG}
    v_add_u32 v48, s18, v18
    v_lshl_add_u32 v49, v1, 4, s18
    v_bfe_u32 v18, v1, 3, 2
    v_and_b32 v19, 3, v1
    v_xor_b32 v18, v18, v19
    v_lshlrev_b32 v18, 4, v18
    v_lshrrev_b32 v19, 2, v1
    v_lshl_or_b32 v50, v19, 7, v18
    v_mul_u32_u24 v18, {AUS}, v17
    v_lshl_add_u32 v18, v16, 4, v18
    s_lshl_b32 s18, s17, 8
    s_add_u32 s18, s18, {AU}
    v_add_u32 v51, s18, v18
    s_mul_i32 s19, s5, {BN*128}
    s_lshl_b32 s18, s17, 11
    s_add_u32 s19, s19, s18
    s_mov_b32 s20, {NLOG2E:#x}
    s_mov_b32 s21, {NLOG2E:#x}
    s_mov_b32 s22, 0x07060100
    s_mov_b32 s23, 0x07060302
    s_mov_b32 s24, s17
    s_waitcnt lgkmcnt(0)
    """)
    a.stamp('g_wf')
    a("s_waitcnt vmcnt(0)")
    a.stamp('g_pb')
    a("s_barrier")
    a.stamp(3)
    a(f"""
    ds_read_b128 v[32:35], v4
    ds_read_b128 v[36:39], v5
    ds_read_b128 v[40:43], v6
    ds_read_b128 v[44:47], v7
    s_cmp_lg_u32 s3, 15
    s_cbranch_scc1 L_g
    v_lshl_add_u32 v3, v3, 16, 1
    v_mov_b32 v2, 0
    s_lshl_b32 s18, s4, 6
    s_mov_b64 exec, 1
    buffer_atomic_add v3, v2, {R(SDBG)}, s18 offen sc1
    s_mov_b64 exec, -1
L_g:
    """)
    for ks in range(4):
        a(f"s_waitcnt lgkmcnt({3-ks})")
        for mm in range(2):
            for ft in range(2):
                d = 16 + (mm*2+ft)*4
                w = 64 + ((mm*2+ft)*4+ks)*4
                c = "0" if ks == 0 else f"v[{d}:{d+3}]"
                a(f"v_mfma_f32_16x16x32_bf16 v[{d}:{d+3}], v[{w}:{w+3}], v[{32+4*ks}:{35+4*ks}], {c}")
    a(f"""
    v_add_u32 v4, 0x8000, v4
    v_add_u32 v5, 0x8000, v5
    v_add_u32 v6, 0x8000, v6
    v_add_u32 v7, 0x8000, v7
    s_cmp_eq_u32 s24, 24
    s_cselect_b32 s26, 0x00ff00ff, -1
    s_cselect_b32 s27, 0x00ff00ff, -1
    s_cselect_b32 s29, 0, -1
    s_mov_b32 s28, -1
    v_pk_mul_f32 v[16:17], v[16:17], s[20:21]
    v_pk_mul_f32 v[18:19], v[18:19], s[20:21]
    v_pk_mul_f32 v[20:21], v[20:21], s[20:21]
    v_pk_mul_f32 v[22:23], v[22:23], s[20:21]
    v_cvt_pk_bf16_f32 v12, v16, v17
    v_cvt_pk_bf16_f32 v13, v18, v19
    v_cvt_pk_bf16_f32 v14, v20, v21
    v_cvt_pk_bf16_f32 v15, v22, v23
    v_perm_b32 v24, v24, v12, s22
    v_perm_b32 v25, v25, v12, s23
    v_perm_b32 v26, v26, v13, s22
    v_perm_b32 v27, v27, v13, s23
    v_perm_b32 v28, v28, v14, s22
    v_perm_b32 v29, v29, v14, s23
    v_perm_b32 v30, v30, v15, s22
    v_perm_b32 v31, v31, v15, s23
    s_cmp_eq_u32 s16, 1
    s_cbranch_scc1 L_g_au
    ds_write_b128 v48, v[24:27]
    ds_read_b128 v[52:55], v49
    ds_write_b128 v48, v[28:31]
    ds_read_b128 v[56:59], v49
    s_add_u32 s18, s19, 64
    s_mov_b64 exec, s[28:29]
    s_waitcnt lgkmcnt(2)
    buffer_store_dwordx4 v[52:55], v50, {R(STABW)}, s19 offen sc1
    s_waitcnt lgkmcnt(0)
    buffer_store_dwordx4 v[56:59], v50, {R(STABW)}, s18 offen sc1
    s_mov_b64 exec, -1
    s_add_u32 s19, s19, {8*2048}
    s_branch L_g_next
L_g_au:
    s_mov_b64 exec, s[26:27]
    ds_write_b128 v51, v[24:27]
    ds_write_b128 v51, v[28:31] offset:{4*AUS}
    s_mov_b64 exec, -1
    v_add_u32 v51, {8*256}, v51
L_g_next:
    s_add_u32 s24, s24, 8
    s_cmp_gt_u32 s24, 24
    s_cbranch_scc1 L_g_done
    s_waitcnt lgkmcnt(0)
    ds_read_b128 v[32:35], v4
    ds_read_b128 v[36:39], v5
    ds_read_b128 v[40:43], v6
    ds_read_b128 v[44:47], v7
    s_branch L_g
L_g_done:
    """)
    a.stamp(4)
    a(f"""
    s_cmp_eq_u32 s5, 63
    s_cselect_b32 s18, s3, 0
    s_cmp_lg_u32 s18, 2
    s_cbranch_scc1 L_nodum
    v_mov_b32 v8, 0x7180
    v_mov_b32 v9, 0x7180
    v_mov_b32 v10, 0x7180
    v_mov_b32 v11, 0x7180
    v_lshlrev_b32 v12, 4, v1
    s_mov_b32 s18, {DUMMY*128}
    s_mov_b64 exec, 0xff
    buffer_store_dwordx4 v[8:11], v12, {R(STABW)}, s18 offen sc1
    s_mov_b64 exec, -1
L_nodum:
    s_cmp_lg_u32 s3, 15
    s_cbranch_scc1 L_np1
    v_lshlrev_b32 v2, 6, v1
    s_mov_b32 s18, 0x40000
    s_mov_b64 exec, 15
L_poll1:
    buffer_load_dword v3, v2, {R(SDBG)}, 0 offen sc1
    s_waitcnt vmcnt(0)
    v_and_b32 v4, 0xffff, v3
    v_cmp_ne_u32 vcc, 64, v4
    s_sub_u32 s18, s18, 1
    s_cbranch_scc1 L_poll1d
    s_cbranch_vccz L_poll1d
    s_sleep 2
    s_branch L_poll1
L_poll1d:
    v_lshrrev_b32 v3, 16, v3
    v_mov_b32 v4, {FLAG}
    ds_or_b32 v4, v3
    s_mov_b64 exec, -1
L_np1:
    s_waitcnt lgkmcnt(0)
    s_barrier
    """)

def phase_s(a):
    a.stamp(5)
    a(f"""
    v_lshrrev_b32 v32, 3, v1
    v_mul_u32_u24 v33, 24576, v32
    v_and_b32 v34, 7, v1
    v_lshl_add_u32 v33, v34, 4, v33
    s_mul_i32 s18, s3, {16*24576}
    s_mul_i32 s19, s5, 384
    s_add_u32 s18, s18, s19
    s_add_u32 s19, s18, {8*24576}
    buffer_load_dwordx4 v[2:5], v33, {R(SSEG)}, s18 offen offset:256 sc1
    buffer_load_dwordx4 v[6:9], v33, {R(SSEG)}, s19 offen offset:256 sc1
    v_lshrrev_b32 v35, 4, v1
    v_lshl_add_u32 v36, v34, 2, v35
    v_lshlrev_b32 v36, 1, v36
    s_lshl_b32 s20, s4, 6
    buffer_load_ushort v40, v36, {R(SWC)}, s20 offen
    buffer_load_ushort v41, v36, {R(SWC)}, s20 offen offset:256
    buffer_load_ushort v42, v36, {R(SWC)}, s20 offen offset:512
    buffer_load_ushort v43, v36, {R(SWC)}, s20 offen offset:768
    s_cmp_eq_u32 s16, 0
    s_cbranch_scc1 L_s_nodma
    s_sub_u32 s20, s18, {16*24576}
    s_lshl_b32 s21, s17, 12
    """)
    for i in range(4):
        for h in range(2):
            a(f"""
            s_add_u32 m0, s21, {(EALO, EAHI)[h] + i*1024}
            s_add_u32 s22, s20, {i*8*24576 + h*128}
            buffer_load_dwordx4 v33, {R(SSEG)}, s22 offen sc1 lds
            """)
    a(f"""
L_s_nodma:
    v_mov_b32 v44, {(DUMMY << 16) | ZSLOT:#x}
    v_mov_b32 v45, v44
    v_mov_b32 v46, v44
    v_mov_b32 v47, v44
    v_lshlrev_b32 v37, 4, v0
    v_add_u32 v37, {ELL}, v37
    ds_write_b128 v37, v[44:47]
    ds_write_b128 v37, v[44:47] offset:16384
    v_mov_b32 v38, {ZSLOT}
    v_mov_b32 v39, 0
    ds_write2st64_b32 v38, v39, v39 offset0:{EALO//256} offset1:{EAHI//256}
    v_mov_b32 v30, {MARK:#x}
    v_mov_b32 v34, 1
    """)
    for j in range(9): a(f"v_mov_b32 v{18+j}, 0")
    a(f"""
    s_cmp_eq_u32 s16, 0
    s_cbranch_scc1 L_s_w0
    s_waitcnt vmcnt(12)
    s_branch L_s_w1
L_s_w0:
    s_waitcnt vmcnt(0)
L_s_w1:
    """)
    a.stamp('s_sd')
    a(f"""
    v_bfe_u32 v36, v2, 11, 5
    v_bfe_u32 v37, v6, 11, 5
    s_mov_b32 s24, 0
    v_cmp_ne_u32 s[20:21], 0, v36
    v_cmp_ne_u32 s[22:23], 0, v37
    v_lshlrev_b32 v38, 4, v1
    """)
    for i in range(2):
        m = ("s[20:21]", "s[22:23]")[i]
        a(f"""
L_ov{i}:
        s_cmp_eq_u64 {m}, 0
        s_cbranch_scc1 L_ov{i}d
        s_ff1_i32_b64 s25, {m}
        s_bitset0_b64 {m}, s25
        v_readlane_b32 s26, v{36+i}, s25
        s_lshr_b32 s25, s25, 3
        s_lshl_b32 s27, s3, 4
        s_add_u32 s25, s25, s27
        s_lshl_b32 s25, s25, 15
        s_lshl_b32 s27, s5, 9
        s_add_u32 s25, s25, s27
        s_lshl_b32 s27, s24, 4
        s_sub_u32 s25, s25, s27
        s_add_u32 s25, s25, {OVF + i*8*32768}
        s_bfm_b64 exec, s26, s24
        s_add_u32 s24, s24, s26
        s_cmp_gt_u32 s24, 64
        s_cbranch_scc1 L_ovbad
        buffer_load_dwordx4 v[28:31], v38, {R(SSEG)}, s25 offen sc1
        s_branch L_ov{i}
L_ov{i}d:
        """)
    a(f"""
    s_branch L_ovd
L_ovbad:
    s_mov_b64 exec, 1
    v_mov_b32 v39, {FLAG}
    ds_or_b32 v39, v34
L_ovd:
    s_mov_b64 exec, -1
    """)
    for j in range(8):
        a(f"""
        v_and_b32 v{10+j}, 0x7ff, v{2+j}
        v_cmpx_le_i32 vcc, 0, v{2+j}
        ds_add_rtn_u32 v{18+j}, v{10+j}, v34 offset:{CNT}
        s_mov_b64 exec, -1
        """)
    a(f"""
    v_mov_b32 v27, 0x7fc
    s_cmp_eq_u32 s24, 0
    s_cbranch_scc1 L_s_noov
    s_waitcnt vmcnt(0)
    v_and_b32 v27, 0x7ff, v30
    v_lshlrev_b32 v39, 2, v0
    v_add_u32 v39, 0x8000, v39
    v_cmpx_le_i32 vcc, 0, v30
    ds_add_rtn_u32 v26, v27, v34 offset:{CNT}
    ds_write2st64_b32 v39, v28, v29 offset0:{EALO//256} offset1:{EAHI//256}
    s_mov_b64 exec, -1
L_s_noov:
    s_waitcnt lgkmcnt(0)
    """)
    a.stamp('s_pb')
    a("s_barrier")
    a.stamp(6)
    a(f"""
    s_cmp_lg_u32 s3, 14
    s_cbranch_scc1 L_nsig2
    v_mov_b32 v39, 0
    s_lshl_b32 s18, s4, 6
    s_mov_b64 exec, 1
    buffer_atomic_add v34, v39, {R(SDBG)}, s18 offen offset:32 sc1
    s_mov_b64 exec, -1
L_nsig2:
    s_movk_i32 s18, {BN}
    v_cmp_gt_u32 s[10:11], s18, v0
    v_lshlrev_b32 v48, 2, v0
    v_lshlrev_b32 v49, 2, v1
    s_cmp_gt_u32 s3, 6
    s_cbranch_scc1 L_s2d
    ds_read_b32 v50, v48 offset:{CNT}
    s_waitcnt lgkmcnt(0)
    v_min_u32 v51, 63, v50
    v_sub_u32 v51, 63, v51
    v_lshlrev_b32 v51, 2, v51
    s_mov_b64 exec, s[10:11]
    ds_add_rtn_u32 v52, v51, v34 offset:{HIST}
    s_mov_b64 exec, -1
L_s2d:
    """)
    a(f"""
    s_waitcnt vmcnt(8)
    s_mov_b32 s20, {NLOG2E:#x}
    v_lshlrev_b32 v40, 16, v40
    v_lshlrev_b32 v41, 16, v41
    v_lshlrev_b32 v42, 16, v42
    v_lshlrev_b32 v43, 16, v43
    v_mul_f32 v40, s20, v40
    v_mul_f32 v41, s20, v41
    v_mul_f32 v42, s20, v42
    v_mul_f32 v43, s20, v43
    v_and_b32 v44, 8, v1
    v_cmp_eq_u32 vcc, 0, v44
    v_cvt_pk_bf16_f32 v40, v40, v41
    v_cvt_pk_bf16_f32 v41, v42, v43
    v_cndmask_b32 v96, 0, v40, vcc
    v_cndmask_b32 v97, 0, v41, vcc
    v_xor_b32 v98, v96, v40
    v_xor_b32 v99, v97, v41
    s_waitcnt lgkmcnt(0)
    s_barrier
    """)
    a(f"""
    s_cmp_gt_u32 s3, 6
    s_cbranch_scc1 L_s3d
    ds_read_b32 v53, v49 offset:{HIST}
    s_waitcnt lgkmcnt(0)
    v_mov_b32 v54, v53
    """)
    a.scan(54)
    a(f"""
    v_sub_u32 v54, v54, v53
    ds_bpermute_b32 v54, v51, v54
    v_max_u32 v50, 1, v50
    s_waitcnt lgkmcnt(0)
    v_add_u32 v54, v54, v52
    v_and_b32 v55, 7, v54
    v_lshrrev_b32 v56, 7, v54
    v_bfe_u32 v57, v54, 3, 4
    v_bfe_i32 v58, v54, 7, 1
    v_and_b32 v58, 15, v58
    v_xor_b32 v57, v57, v58
    v_lshl_add_u32 v58, v57, 2, v56
    v_lshlrev_b32 v58, 2, v58
    v_lshl_add_u32 v57, v57, 3, v55
    v_lshlrev_b32 v57, 3, v57
    v_lshl_add_u32 v57, v56, 1, v57
    s_mov_b64 exec, s[10:11]
    ds_max_u32 v58, v50 offset:{LEN}
    ds_write_b16 v57, v0 offset:{PERM}
    s_mov_b64 exec, -1
L_s3d:
    s_waitcnt lgkmcnt(0)
    s_barrier
    """)
    a.stamp(7)
    a(f"""
    ds_read_b32 v53, v49 offset:{LEN}
    v_mov_b32 v59, {FLAG}
    ds_read_b32 v59, v59
    s_lshl_b32 s18, s3, 2
    s_add_u32 s19, s18, 1
    s_add_u32 s20, s18, 2
    s_add_u32 s21, s18, 3
    s_waitcnt lgkmcnt(0)
    v_mov_b32 v54, v53
    v_readfirstlane_b32 s22, v59
    """)
    a.scan(54)
    a(f"""
    s_nop 0
    v_readlane_b32 s23, v54, 63
    v_sub_u32 v54, v54, v53
    v_readlane_b32 s30, v53, s18
    v_readlane_b32 s31, v53, s19
    v_readlane_b32 s32, v53, s20
    v_readlane_b32 s33, v53, s21
    v_readlane_b32 s34, v54, s18
    s_cmp_gt_u32 s23, {ROWCAP}
    s_cselect_b32 s22, 1, s22
    s_cmp_lg_u32 s22, 0
    s_cbranch_scc1 L_slow
    """)
    if a.force_slow: a("s_branch L_slow")
    a(f"""
    s_cmp_gt_u32 s3, 6
    s_cbranch_scc1 L_s4d
    ds_bpermute_b32 v54, v58, v54
    v_lshlrev_b32 v55, 2, v55
    v_add_u32 v55, {ELL}, v55
    v_mov_b32 v56, {CNT+0x7fc}
    v_mov_b32 v57, {TRASH}
    ds_write_b32 v56, v57
    s_waitcnt lgkmcnt(0)
    v_lshl_add_u32 v54, v54, 5, v55
    s_mov_b64 exec, s[10:11]
    ds_write_b32 v48, v54 offset:{CNT}
    s_mov_b64 exec, -1
L_s4d:
    s_waitcnt lgkmcnt(0)
    s_barrier
    """)
    a.stamp(8)
    for j in range(8): a(f"ds_read_b32 v{10+j}, v{10+j} offset:{CNT}")
    a(f"""
    ds_read_b32 v27, v27 offset:{CNT}
    s_mov_b32 s18, 0xffff0000
    s_lshl_b32 s19, s3, 11
    v_lshl_add_u32 v36, v1, 4, s19
    """)
    for j in range(8):
        off = (j >> 2) * 1024 + (j & 3) * 4
        if off:
            a(f"v_add_u32 v37, {off}, v36\nv_and_or_b32 v{2+j}, v{2+j}, s18, v37")
        else:
            a(f"v_and_or_b32 v{2+j}, v{2+j}, s18, v36")
    a(f"v_add_u32 v37, 0x8000, v48\nv_and_or_b32 v30, v30, s18, v37")
    for j in range(8):
        a(f"s_waitcnt lgkmcnt(8)\nv_lshl_add_u32 v{10+j}, v{18+j}, 5, v{10+j}\nds_write_b32 v{10+j}, v{2+j}")
    a(f"""
    s_waitcnt lgkmcnt(8)
    v_lshl_add_u32 v27, v26, 5, v27
    ds_write_b32 v27, v30
    """)
    a.stamp('s5w')
    poll2(a, "a")
    a(f"""
    s_waitcnt vmcnt(0) lgkmcnt(0)
    """)
    a.stamp('s5p')
    a("s_barrier")

def poll2(a, sfx):
    a(f"""
    s_cmp_lg_u32 s3, 14
    s_cbranch_scc1 L_np2{sfx}
    v_mov_b32 v60, 0
    s_lshl_b32 s19, s4, 6
    s_mov_b32 s18, 0x40000
    s_mov_b64 exec, 1
L_poll2{sfx}:
    buffer_load_dword v61, v60, {R(SDBG)}, s19 offen offset:32 sc1
    s_waitcnt vmcnt(0)
    v_cmp_ne_u32 vcc, 64, v61
    s_sub_u32 s18, s18, 1
    s_cbranch_scc1 L_poll2d{sfx}
    s_cbranch_vccz L_poll2d{sfx}
    s_sleep 2
    s_branch L_poll2{sfx}
L_poll2d{sfx}:
    s_mov_b64 exec, -1
L_np2{sfx}:
    """)

DEN, NUM, AP, T0, EA0, UR, AUN, GR, WC, SEL, IDM, XR = 28, 32, 36, 40, 48, 56, 60, 64, 96, 100, 104, 106
IDX, EAD, PTR, IDS, VAU, VOUT, CAU, COUT = 108, 112, 114, 116, 118, 119, 120, 121
def v4(r): return f"v[{r}:{r+3}]"
def v2(r): return f"v[{r}:{r+1}]"
EAOFF = f"offset0:{EALO//256} offset1:{EAHI//256}"

def body(a, k, bnd):
    D = a.D
    T = T0 + 4*(k & 1); Tn = T0 + 4*((k+1) & 1)
    EAn = EA0 + 4*((k+1) & 1); EAc = EA0 + 4*(k & 1)
    Gc = GR + 4*k; Gn = GR + 4*((k+1) % D); Gl = GR + 4*((k-1) % D)
    Iu = IDX + 2*((k+1) & 1); Iw = IDX + 2*(k & 1)
    a(f"""
    s_waitcnt lgkmcnt(0)
    buffer_load_dwordx4 {v4(Gl)}, {v2(Iu)}, {R(STAB)}, 0 idxen offen sc1
    """)
    if bnd: a(f"v_mfma_f32_16x16x32_bf16 {v4(AP)}, {v4(SEL)}, {v4(AUN)}, 0")
    a(f"""
    s_mov_b64 exec, s[36:37]
    ds_read2st64_b32 {v2(EAc)}, v{EAD} {EAOFF}
    ds_read2st64_b32 {v2(EAc+2)}, v{EAD+1} {EAOFF}
    ds_read_u16 v{EAD}, v{PTR+1} offset:{(k+3)*32}
    ds_read_u16 v{EAD+1}, v{PTR+1} offset:{(k+3)*32+4}
    s_mov_b64 exec, -1
    ds_read_u16 v{Iw}, v{PTR} offset:{(k+D)*32}
    v_exp_f32 v{T}, v{T}
    v_mfma_f32_16x16x32_bf16 {v4(Tn)}, {v4(EAn)}, {v4(WC)}, {v4(AP)}
    v_exp_f32 v{T+1}, v{T+1}
    v_exp_f32 v{T+2}, v{T+2}
    v_exp_f32 v{T+3}, v{T+3}
    v_pk_add_f32 {v2(T)}, {v2(T)}, 1.0 op_sel_hi:[1,0]
    v_pk_add_f32 {v2(T+2)}, {v2(T+2)}, 1.0 op_sel_hi:[1,0]
    s_waitcnt vmcnt({D-2})
    v_rcp_f32 v{T}, v{T}
    v_mfma_f32_16x16x32_bf16 {v4(Tn)}, {v4(SEL)}, {v4(Gn)}, {v4(Tn)}
    v_rcp_f32 v{T+1}, v{T+1}
    v_rcp_f32 v{T+2}, v{T+2}
    v_rcp_f32 v{T+3}, v{T+3}
    v_pk_add_f32 {v2(DEN)}, {v2(DEN)}, {v2(T)}
    v_pk_add_f32 {v2(DEN+2)}, {v2(DEN+2)}, {v2(T+2)}
    v_pk_fma_f32 {v2(NUM)}, {v2(T)}, {v2(Gc)}, {v2(NUM)}
    v_pk_fma_f32 {v2(NUM+2)}, {v2(T+2)}, {v2(Gc+2)}, {v2(NUM+2)}
    """)
    if k == D-1: a(f"v_lshl_add_u64 {v2(PTR)}, {v2(PTR)}, 0, s[38:39]")

def phase_m(a):
    D = a.D
    a.stamp(9)
    if a.prof:
        a("v_mov_b32 v126, v63\ns_memtime s[86:87]\ns_waitcnt lgkmcnt(0)"); a.sreg = 126
    if 'prio' in a.opt: a("s_setprio 3\ns_mov_b32 s23, 3")
    a(f"""
    v_lshrrev_b32 v2, 3, v1
    v_and_b32 v3, 7, v1
    v_bfe_u32 v4, v1, 2, 2
    v_lshrrev_b32 v5, 4, v1
    v_and_b32 v6, 3, v1
    s_lshl_b32 s18, s34, 5
    s_add_u32 s18, s18, {ELL}
    s_add_u32 s19, s18, 2
    v_lshl_add_u32 v{PTR}, v2, 2, s19
    v_lshl_add_u32 v{PTR+1}, v4, 3, s18
    s_lshl_b32 s19, s3, 6
    v_lshl_add_u32 v7, v2, 3, s19
    ds_read_b64 {v2(IDS)}, v7 offset:{PERM}
    """)
    for q in range(D-1): a(f"ds_read_u16 v{8+q}, v{PTR} offset:{q*32}")
    a(f"""
    ds_read_u16 v{IDX+2}, v{PTR} offset:{(D-1)*32}
    ds_read_u16 v16, v{PTR+1}
    ds_read_u16 v17, v{PTR+1} offset:4
    ds_read_u16 v18, v{PTR+1} offset:32
    ds_read_u16 v19, v{PTR+1} offset:36
    v_cmp_eq_u32 s[36:37], v5, v6
    v_lshlrev_b32 v{IDX+1}, 4, v3
    v_lshlrev_b32 v{IDX+3}, 4, v3
    v_mul_u32_u24 v{CAU}, {AUS}, v3
    v_add_u32 v{CAU}, {AU}, v{CAU}
    s_mul_i32 s18, s5, {BN*256}
    s_lshl_b32 s19, s4, 6
    s_add_u32 s18, s18, s19
    v_lshl_add_u32 v{COUT}, v3, 3, s18
    s_movk_i32 s35, 256
    s_movk_i32 s38, {D*32}
    s_movk_i32 s39, {D*32}
    s_mov_b32 s28, {EPS:#x}
    s_mov_b32 s29, {EPS:#x}
    v_cmp_eq_u32 vcc, v4, v5
    v_mov_b32 v20, 0x3f80
    v_mov_b32 v21, 4
    v_cndmask_b32 v21, v21, v6, vcc
    """)
    for r in range(4):
        a(f"v_cmp_eq_u32 vcc, {r}, v21\ns_nop 1\nv_cndmask_b32 v{SEL+r}, 0, v20, vcc")
    a(f"""
    v_and_b32 v22, 1, v6
    v_lshlrev_b32 v22, 4, v22
    v_lshlrev_b32 v22, v22, v20
    v_cmp_gt_u32 vcc, 2, v6
    v_mov_b64 {v2(EA0)}, 0
    v_mov_b64 {v2(EA0+2)}, 0
    v_cndmask_b32 v{IDM}, 0, v22, vcc
    v_xor_b32 v{IDM+1}, v{IDM}, v22
    v_mov_b64 {v2(EA0+4)}, 0
    v_mov_b64 {v2(EA0+6)}, 0
    v_mov_b64 {v2(DEN)}, s[28:29]
    v_mov_b64 {v2(DEN+2)}, s[28:29]
    v_mov_b64 {v2(NUM)}, 0
    v_mov_b64 {v2(NUM+2)}, 0
    s_waitcnt lgkmcnt(0)
    v_mad_u32_u16 v{VOUT}, v{IDS}, s35, v{COUT}
    v_mad_u32_u16 v{VAU}, v{IDS}, 16, v{CAU}
    buffer_load_dwordx2 {v2(XR)}, v{VOUT}, {R(SX)}, 0 offen
    """)
    for q in range(D-1):
        a(f"v_lshl_add_u32 v{8+q}, v{8+q}, 7, v{IDX+1}\nbuffer_load_dwordx4 {v4(GR+4*q)}, v{8+q}, {R(STABW)}, 0 offen sc1")
    a(f"""
    ds_read_b128 {v4(UR)}, v{VAU}
    v_mad_u32_u16 v{VAU}, v{IDS}, 16, v{CAU} op_sel:[1,0,0,0]
    ds_read_b128 {v4(AUN)}, v{VAU}
    s_mov_b64 exec, s[36:37]
    ds_read2st64_b32 {v2(EA0)}, v16 {EAOFF}
    ds_read2st64_b32 {v2(EA0+2)}, v17 {EAOFF}
    ds_read2st64_b32 {v2(EA0+4)}, v18 {EAOFF}
    ds_read2st64_b32 {v2(EA0+6)}, v19 {EAOFF}
    ds_read_u16 v{EAD}, v{PTR+1} offset:64
    ds_read_u16 v{EAD+1}, v{PTR+1} offset:68
    s_mov_b64 exec, -1
    s_sub_u32 s24, s30, 1
    s_waitcnt lgkmcnt(0)
    """)
    a.stamp('m_iss')
    a(f"""
    v_mfma_f32_16x16x32_bf16 {v4(AP)}, {v4(SEL)}, {v4(UR)}, 0
    s_nop 1
    v_mfma_f32_16x16x32_bf16 {v4(T0)}, {v4(EA0)}, {v4(WC)}, {v4(AP)}
    s_waitcnt vmcnt({D-2})
    v_mfma_f32_16x16x32_bf16 {v4(T0)}, {v4(SEL)}, {v4(GR)}, {v4(T0)}
    """)
    a.stamp(10)
    if a.prof:
        a(f"s_mov_b32 s90, {len(a.names)}"); a.names += ['g1', 'g2', 'g3', 'g4']
    for k in range(D):
        a(f"""
L_m{k}:
        s_sub_u32 s24, s24, 1
        s_cbranch_scc1 L_b{k}
        """)
        body(a, k, False)
    a("s_branch L_m0")
    for k in range(D):
        a(f"L_b{k}:")
        body(a, k, True)
        a(f"""
        v_rcp_f32 v{DEN}, v{DEN}
        v_rcp_f32 v{DEN+1}, v{DEN+1}
        v_rcp_f32 v{DEN+2}, v{DEN+2}
        v_rcp_f32 v{DEN+3}, v{DEN+3}
        s_cmp_ge_u32 s30, {D-2}
        s_cbranch_scc1 L_bx{k}
        s_waitcnt vmcnt(0)
L_bx{k}:
        v_pk_fma_f32 {v2(NUM)}, {v2(NUM)}, {v2(DEN)}, {v2(UR)}
        v_pk_fma_f32 {v2(NUM+2)}, {v2(NUM+2)}, {v2(DEN+2)}, {v2(UR+2)}
        ds_read_b128 {v4(UR)}, v{VAU}
        v_max_f32 v{NUM}, 0, v{NUM}
        v_max_f32 v{NUM+1}, 0, v{NUM+1}
        v_max_f32 v{NUM+2}, 0, v{NUM+2}
        v_max_f32 v{NUM+3}, 0, v{NUM+3}
        v_lshrrev_b64 {v2(IDS)}, 16, {v2(IDS)}
        v_mov_b64 {v2(DEN)}, s[28:29]
        v_mfma_f32_4x4x4_16b_bf16 v[122:125], {v2(IDM)}, {v2(XR)}, {v4(NUM)}
        v_mov_b64 {v2(DEN+2)}, s[28:29]
        v_mad_u32_u16 v{VAU}, v{IDS}, 16, v{CAU} op_sel:[1,0,0,0]
        v_mov_b64 {v2(NUM)}, 0
        v_mov_b64 {v2(NUM+2)}, 0
        ds_read_b128 {v4(AUN)}, v{VAU}
        v_cvt_pk_bf16_f32 v122, v122, v123
        v_cvt_pk_bf16_f32 v123, v124, v125
        s_mov_b32 s30, s31
        s_mov_b32 s31, s32
        s_mov_b32 s32, s33
        s_mov_b32 s33, 0
        buffer_store_dwordx2 v[122:123], v{VOUT}, {R(SOUT)}, 0 offen{' sc1' if 'osc1' in a.opt else ''}{' sc0' if 'osc0' in a.opt else ''}{' nt' if 'ont' in a.opt else ''}
        """)
        if a.prof: a("s_memrealtime s[100:101]\ns_waitcnt lgkmcnt(0)\ns_add_u32 s90, s90, 1\ns_mov_b32 m0, s90\nv_writelane_b32 v126, s100, m0")
        if 'prio' in a.opt: a(f"""
        s_sub_u32 s23, s23, 1
        s_cmp_eq_u32 s23, 2
        s_cbranch_scc0 L_pr{k}
        s_setprio 2
L_pr{k}:
        s_cmp_eq_u32 s23, 1
        s_cbranch_scc0 L_ps{k}
        s_setprio 1
L_ps{k}:
        s_cmp_eq_u32 s23, 0
        s_cbranch_scc0 L_pt{k}
        s_setprio 0
L_pt{k}:
        """)
        a(f"""
        v_mad_u32_u16 v{VOUT}, v{IDS}, s35, v{COUT}
        s_sub_u32 s24, s30, 1
        s_cbranch_scc1 L_fin
        buffer_load_dwordx2 {v2(XR)}, v{VOUT}, {R(SX)}, 0 offen
        s_branch L_m{(k+1) % D}
        """)

def slow(a):
    a(f"""
L_slow:
    s_waitcnt vmcnt(0) lgkmcnt(0)
    s_barrier
    v_mov_b64 v[4:5], 0
    v_mov_b64 v[6:7], 0
    v_lshlrev_b32 v2, 4, v0
    v_add_u32 v2, {ACC}, v2
    s_mov_b32 s18, 0
L_sz:
    v_cmp_gt_u32 vcc, {ACC+100352}, v2
    s_mov_b64 exec, vcc
    ds_write_b128 v2, v[4:7]
    s_mov_b64 exec, -1
    v_add_u32 v2, 16384, v2
    s_add_u32 s18, s18, 1
    s_cmp_lt_u32 s18, 7
    s_cbranch_scc1 L_sz
    s_cmp_gt_u32 s3, 1
    s_cbranch_scc1 L_sw
    v_lshrrev_b32 v3, 4, v0
    v_bfe_u32 v4, v0, 2, 2
    v_and_b32 v5, 3, v0
    v_lshl_add_u32 v3, v3, 2, v5
    v_lshlrev_b32 v3, 1, v3
    v_lshl_add_u32 v3, v4, 8, v3
    s_lshl_b32 s20, s4, 6
    buffer_load_ushort v3, v3, {R(SWC)}, s20 offen
    v_lshlrev_b32 v4, 2, v0
    v_add_u32 v4, {WCF}, v4
    s_waitcnt vmcnt(0)
    v_lshlrev_b32 v3, 16, v3
    v_mul_f32 v3, {NLOG2E:#x}, v3
    ds_write_b32 v4, v3
L_sw:
    """)
    poll2(a, "b")
    a(f"""
    s_waitcnt vmcnt(0) lgkmcnt(0)
    s_barrier
    s_mul_i32 s20, s5, {BN}
    s_mov_b32 s21, {E}
    s_movk_i32 s22, {BN}
    v_mov_b32 v2, v0
    s_mov_b32 s18, 0
L_se:
    v_lshlrev_b32 v3, 2, v2
    v_lshlrev_b32 v4, 3, v2
    buffer_load_dword v5, v3, {R(SDST)}, 0 offen
    v_cmp_gt_u32 s[24:25], s21, v2
    s_waitcnt vmcnt(0)
    v_subrev_u32 v5, s20, v5
    v_cmp_gt_u32 vcc, s22, v5
    s_and_b64 exec, vcc, s[24:25]
    s_cbranch_execz L_sn
    buffer_load_dword v6, v3, {R(SSRC)}, 0 offen
    buffer_load_dwordx2 v[8:9], v4, {R(SEA)}, 0 offen
    v_lshlrev_b32 v7, 4, v5
    v_add_u32 v7, {AU}, v7
    v_lshlrev_b32 v14, 8, v5
    v_add_u32 v14, {ACC}, v14
    v_mov_b32 v15, {WCF}
    s_mov_b32 s19, 0
    s_waitcnt vmcnt(0)
    v_lshlrev_b32 v6, 7, v6
    v_lshlrev_b32 v10, 16, v8
    v_and_b32 v11, 0xffff0000, v8
    v_lshlrev_b32 v12, 16, v9
    v_and_b32 v13, 0xffff0000, v9
L_sc:
    buffer_load_dwordx4 v[16:19], v6, {R(STABW)}, s19 offen sc1
    ds_read_b128 v[20:23], v7
    ds_read_b128 v[24:27], v15
    ds_read_b128 v[28:31], v15 offset:16
    ds_read_b128 v[32:35], v15 offset:32
    ds_read_b128 v[36:39], v15 offset:48
    s_waitcnt vmcnt(0) lgkmcnt(0)
    """)
    for r in range(4):
        a(f"""
        v_lshlrev_b32 v40, 16, v{16+r}
        v_lshlrev_b32 v41, 16, v{20+r}
        v_add_f32 v40, v40, v41
        v_fmac_f32 v40, v10, v{24+r}
        v_fmac_f32 v40, v11, v{28+r}
        v_fmac_f32 v40, v12, v{32+r}
        v_fmac_f32 v40, v13, v{36+r}
        v_exp_f32 v40, v40
        s_nop 0
        v_add_f32 v40, 1.0, v40
        v_rcp_f32 v40, v40
        s_nop 0
        v_mul_f32 v41, v40, v{16+r}
        ds_add_f32 v14, v40 offset:{4*r}
        ds_add_f32 v14, v41 offset:{128+4*r}
        """)
    a(f"""
    v_add_u32 v7, {AUS}, v7
    v_add_u32 v14, 16, v14
    v_add_u32 v15, 64, v15
    s_add_u32 s19, s19, 16
    s_cmp_lt_u32 s19, 128
    s_cbranch_scc1 L_sc
L_sn:
    s_mov_b64 exec, -1
    v_add_u32 v2, 1024, v2
    s_add_u32 s18, s18, 1
    s_cmp_lt_u32 s18, {(E+1023)//1024}
    s_cbranch_scc1 L_se
    s_waitcnt lgkmcnt(0)
    s_barrier
    s_mul_i32 s20, s5, {BN*256}
    s_lshl_b32 s19, s4, 6
    s_add_u32 s20, s20, s19
    v_mov_b32 v2, v0
    s_mov_b32 s18, 0
L_so:
    v_cmp_gt_u32 vcc, {BN*8}, v2
    s_mov_b64 exec, vcc
    s_cbranch_execz L_fin
    v_lshrrev_b32 v3, 3, v2
    v_and_b32 v4, 7, v2
    v_lshlrev_b32 v5, 8, v3
    v_lshl_add_u32 v6, v4, 3, v5
    buffer_load_dwordx2 v[8:9], v6, {R(SX)}, s20 offen
    v_lshl_add_u32 v5, v4, 4, v5
    v_add_u32 v5, {ACC}, v5
    ds_read_b128 v[16:19], v5
    ds_read_b128 v[20:23], v5 offset:128
    v_mul_u32_u24 v7, {AUS}, v4
    v_lshl_add_u32 v7, v3, 4, v7
    v_add_u32 v7, {AU}, v7
    ds_read_b128 v[24:27], v7
    s_waitcnt vmcnt(0) lgkmcnt(0)
    v_lshlrev_b32 v10, 16, v8
    v_and_b32 v11, 0xffff0000, v8
    v_lshlrev_b32 v12, 16, v9
    v_and_b32 v13, 0xffff0000, v9
    """)
    for r in range(4):
        a(f"""
        v_add_f32 v{16+r}, {EPS:#x}, v{16+r}
        v_rcp_f32 v{16+r}, v{16+r}
        s_nop 0
        v_fmac_f32 v{24+r}, v{16+r}, v{20+r}
        v_max_f32 v{24+r}, 0, v{24+r}
        v_add_f32 v{24+r}, v{24+r}, v{10+r}
        """)
    a(f"""
    v_cvt_pk_bf16_f32 v8, v24, v25
    v_cvt_pk_bf16_f32 v9, v26, v27
    buffer_store_dwordx2 v[8:9], v6, {R(SOUT)}, s20 offen
    v_add_u32 v2, 1024, v2
    s_add_u32 s18, s18, 1
    s_cmp_lt_u32 s18, 4
    s_cbranch_scc1 L_so
    """)

def fin(a):
    a("L_fin:")
    if a.prof:
        a("s_mov_b64 exec, -1\ns_waitcnt vmcnt(0)")
        a.stamp(11)
        a(f"""
        v_writelane_b32 v126, s84, 0
        s_memtime s[88:89]
        s_waitcnt lgkmcnt(0)
        s_sub_u32 s88, s88, s86
        v_writelane_b32 v126, s88, 31
        s_lshl_b32 s18, s2, 11
        s_lshl_b32 s19, s3, 7
        s_add_u32 s18, s18, s19
        s_add_u32 s18, s18, {PROFOFF}
        v_lshlrev_b32 v3, 2, v1
        s_mov_b32 exec_lo, -1
        s_mov_b32 exec_hi, 0
        buffer_store_dword v126, v3, {R(SSEG)}, s18 offen
        """)
        a("; STAMPS " + ",".join(["start"] + [str(x) for x in a.names]))
    a("L_end:\ns_endpgm")

def build(D=8, prof=False, force_slow=False, opt=()):
    a = G(D, prof, force_slow, opt)
    prologue(a); phase_p(a); phase_g(a); phase_s(a); phase_m(a); slow(a); fin(a)
    errs = hz.check(a.L)
    for e in errs: print("WARN", e, file=sys.stderr)
    ref = open(f"cdna_kernels/{NAME}.s.ref").read().split('\n')
    head = [l for l in ref if l.startswith(';') and '@launch' not in l]
    out = head + [f"; @launch grid=(256,1,1) block=(1024,1,1) lds={LDS_SIZE}",
        '.amdgcn_target "amdgcn-amd-amdhsa--gfx950"', '.text', f'.globl {NAME}_kernel', '.p2align 8',
        f'.type {NAME}_kernel,@function', f'{NAME}_kernel:'] + a.L + [
        '.section .rodata,"a"', '.p2align 6', f'.amdhsa_kernel {NAME}_kernel',
        '  .amdhsa_next_free_vgpr 128', '  .amdhsa_next_free_sgpr 102', '  .amdhsa_accum_offset 128',
        '  .amdhsa_group_segment_fixed_size 0', '  .amdhsa_kernarg_size 96', '  .amdhsa_user_sgpr_count 2',
        '  .amdhsa_user_sgpr_kernarg_segment_ptr 1', '  .amdhsa_system_sgpr_workgroup_id_x 1', '.end_amdhsa_kernel', '']
    return '\n'.join(out)

if __name__ == '__main__':
    ap = argparse.ArgumentParser()
    ap.add_argument('-o', default=f"cdna_kernels/{NAME}.s")
    ap.add_argument('-D', type=int, default=8)
    ap.add_argument('--prof', action='store_true')
    ap.add_argument('--slow', action='store_true')
    ap.add_argument('--opt', default='')
    x = ap.parse_args()
    open(x.o, 'w').write(build(x.D, x.prof, x.slow, x.opt.split(',')))
```

```python
import sys, struct, argparse
import hz

NAME = "standalone__edge_featured_mpnn_gatedgcn__graph"
N, E = 25000, 400000
BN = 392
CH = 1564
MARK = 0x800007FC
DUMMY = 25100
OVF = 8 << 20
FL2 = 7 << 20
TABOFF = 16 << 20
TABSL = 25600 * 128
PROFOFF = 64 << 20
PCNT, HIST, LEN, FLAG, PC1, OVC, PC3, XGO, PC2, F1, WCNT, XL, NONCE, TRASH, PERM, CNT, WCL = 0, 256, 512, 768, 772, 776, 780, 784, 788, 792, 796, 800, 808, 816, 1024, 2048, 3712
XD0, XD1 = F1, 820
TAGM = 0xF803
RETRY = 2048
XT = 4096
WL = XT + BN * 256
IMG = WL + 32768
OVL = IMG + 24576
LDS_SIZE = 163840
AUS = 6288
AU = LDS_SIZE - 8 * AUS
STG = WL
EALO = 4096
EASZ = 34816
EAHI = EALO + EASZ
ELL = EAHI + EASZ
ROWCAP = 1008
ZSLOT = 32768 + 63 * 4
ACC = 4096
WCF = WL
assert ELL + 32768 <= AU and STG + 8192 <= AU and OVL + 1024 <= LDS_SIZE
NLOG2E = struct.unpack('<I', struct.pack('<f', -1.4426950408889634))[0]
EPS = struct.unpack('<I', struct.pack('<f', 1e-6))[0]

class G:
    def __init__(s, D=8, prof=False, force_slow=False, opt=()):
        s.opt = set(opt); s.XE = ([int(o[1:]) for o in opt if o[:1] == 'X'] + [0])[0]; s.EE = ([int(o[1:]) for o in opt if o[:1] == 'E'] + [0])[0]; s.HD = ([int(o[1:]) for o in opt if o[:1] == 'H'] + [0])[0]; s.T = ([int(o[1:]) for o in opt if o[:1] == 'T'] + [0])[0]
        s.L = []; s.D = D; s.prof = prof; s.force_slow = force_slow; s.nst = 0; s.names = []; s.sreg = 15
    def __call__(s, txt):
        for l in txt.strip('\n').split('\n'):
            l = l.strip()
            if l: s.L.append(('' if l.endswith(':') else '    ') + l)
    def srd(s, d, p, n, extra1=None):
        s(f"s_mov_b32 s{d}, s{p}")
        if extra1 is None: s(f"s_mov_b32 s{d+1}, s{p+1}")
        else: s(f"s_or_b32 s{d+1}, s{p+1}, {extra1:#x}")
        s(f"s_mov_b32 s{d+2}, {n:#x}\ns_mov_b32 s{d+3}, 0x20000")
    def stamp(s, k):
        if s.prof:
            s.names.append(k)
            s(f"s_memrealtime s[100:101]\ns_waitcnt lgkmcnt(0)\nv_writelane_b32 v{s.sreg}, s100, {len(s.names)}")
    def scan(s, v):
        for m in ("row_shr:1 row_mask:0xf bank_mask:0xf bound_ctrl:0", "row_shr:2 row_mask:0xf bank_mask:0xf bound_ctrl:0",
                  "row_shr:4 row_mask:0xf bank_mask:0xf bound_ctrl:0", "row_shr:8 row_mask:0xf bank_mask:0xf bound_ctrl:0",
                  "row_bcast:15 row_mask:0xa bank_mask:0xf", "row_bcast:31 row_mask:0xc bank_mask:0xf"):
            s(f"s_nop 1\nv_add_u32_dpp v{v}, v{v}, v{v} {m}")

SX, SEA, SSRC, SDST, SW, SOUT, SDBG, SSEG, STABW, STAB, SWC = 40, 44, 48, 52, 56, 60, 64, 68, 72, 76, 80
def R(d): return f"s[{d}:{d+3}]"

def w2(a, lab, k, extra):
    a(f"s_cbranch_scc1 {lab}\ns_waitcnt vmcnt({k})\n{lab}:\ns_waitcnt vmcnt({k+extra})")

def srds(a):
    a.srd(SOUT, 34, N*256); a.srd(SDBG, 36, 256)
    a.srd(SSEG, 38, (PROFOFF + (1 << 20)) if a.prof else TABOFF)
    a(f"""
    s_mul_i32 s9, s4, {TABSL}
    s_add_u32 s9, s9, {TABOFF}
    s_add_u32 s12, s38, s9
    s_addc_u32 s13, s39, 0
    """)
    a.srd(STABW, 12, TABSL); a.srd(STAB, 12, 25600, extra1=128 << 16)

def xdma(a, lab):
    a(f"""
    s_mul_i32 s14, s5, {BN*256}
    s_lshl_b32 s15, s3, 13
    s_add_u32 s14, s14, s15
    s_add_u32 m0, s15, {XT}
    v_xor_b32 v17, 64, v16
    v_xor_b32 v18, 0x80, v16
    v_xor_b32 v19, 0xc0, v16
    s_cmp_eq_u32 s3, 12
    buffer_load_dwordx4 v16, {R(SX)}, s14 offen lds
    buffer_load_dwordx4 v17, {R(SX)}, s14 offen offset:1024 lds
    s_cbranch_scc1 {lab}
    buffer_load_dwordx4 v18, {R(SX)}, s14 offen offset:2048 lds
    buffer_load_dwordx4 v19, {R(SX)}, s14 offen offset:3072 lds
    s_add_u32 m0, s15, {XT+4096}
    s_add_u32 s14, s14, 4096
    buffer_load_dwordx4 v16, {R(SX)}, s14 offen lds
    buffer_load_dwordx4 v17, {R(SX)}, s14 offen offset:1024 lds
    buffer_load_dwordx4 v18, {R(SX)}, s14 offen offset:2048 lds
    buffer_load_dwordx4 v19, {R(SX)}, s14 offen offset:3072 lds
{lab}:
    """)

def spin(a, lab, vaddr, off, cmp, val, vt=32):
    a(f"""
{lab}:
    ds_read_b32 v{vt}, v{vaddr} offset:{off}
    s_waitcnt lgkmcnt(0)
    v_readfirstlane_b32 s18, v{vt}
    s_cmp_{cmp}_u32 s18, {val}
    s_cbranch_scc1 {lab}d
    s_sleep 1
    s_branch {lab}
{lab}d:
    """)

def allsrds(a):
    a.srd(SDST, 22, E*4); a.srd(SSRC, 20, E*4); a.srd(SEA, 18, E*8)
    a.srd(SWC, 28, 1024)
    srds(a)

def prologue(a):
    a(f"""
    s_cmp_ge_u32 s2, 256
    s_cbranch_scc1 L_end
    s_load_dwordx16 s[16:31], s[0:1], 0
    s_load_dwordx8 s[32:39], s[0:1], 64
    """)
    if a.prof: a("s_memrealtime s[84:85]\nv_mov_b32 v15, 0")
    a(f"""
    v_lshrrev_b32 v2, 6, v0
    v_and_b32 v1, 63, v0
    v_lshlrev_b32 v4, 4, v0
    v_readfirstlane_b32 s3, v2
    v_mov_b32 v3, 0
    s_lshl_b32 s9, s2, 4
    s_add_u32 s9, s9, s3
    s_cmp_lg_u32 s9, 14
    s_cbranch_scc1 L_i0
    s_memrealtime s[12:13]
    s_waitcnt lgkmcnt(0)
    s_mul_i32 s14, s12, 0x9E3779B1
    s_mul_i32 s12, s12, 0x85EBCA6B
    s_xor_b32 s13, s13, s12
    s_bitset1_b32 s13, 31
    v_mov_b32 v8, s14
    v_mov_b32 v9, s13
    s_mov_b64 exec, 1
    global_store_dwordx2 v3, v[8:9], s[36:37] offset:136 sc1
    s_mov_b64 exec, -1
L_i0:
    v_lshrrev_b32 v6, 3, v0
    v_mul_u32_u24 v6, 384, v6
    v_and_b32 v7, 7, v0
    v_lshl_add_u32 v6, v7, 4, v6
    v_add_u32 v6, {IMG+256}, v6
    v_subrev_u32 v7, {512*16}, v4
    s_cmp_lt_u32 s3, 8
    s_cselect_b32 s9, {MARK:#x}, 0
    v_mov_b32 v20, s9
    v_mov_b32 v21, s9
    v_mov_b32 v22, s9
    v_mov_b32 v23, s9
    s_cbranch_scc1 L_i1
    v_mov_b32 v6, v7
L_i1:
    s_cmp_ge_u32 s3, 12
    s_cbranch_scc1 L_i2
    ds_write_b128 v6, v[20:23]
L_i2:
    s_and_b32 s4, s2, 3
    s_lshr_b32 s5, s2, 3
    s_bfe_u32 s6, s2, 0x10002
    s_lshl_b32 s6, s6, 5
    s_add_u32 s5, s5, s6
    v_subrev_u32 v3, {320*16}, v4
    v_lshlrev_b32 v4, 1, v3
    s_mul_i32 s6, s2, {CH*4}
    s_lshl_b32 s7, s6, 1
    s_movk_i32 s8, {CH*4}
    s_cmp_eq_u32 s2, 255
    s_cselect_b32 s8, {(E-255*CH)*4}, s8
    v_cmp_gt_u32 s[10:11], s8, v3
    v_lshrrev_b32 v5, 2, v1
    v_and_b32 v6, 3, v1
    v_lshlrev_b32 v6, 4, v6
    v_lshl_or_b32 v5, v5, 8, v6
    v_lshrrev_b32 v6, 4, v1
    v_and_b32 v7, 15, v1
    v_xor_b32 v16, v7, v6
    v_lshlrev_b32 v6, 8, v6
    v_lshl_or_b32 v16, v16, 4, v6
    v_mov_b32 v2, 1
    v_mov_b32 v30, {FLAG}
    s_cmp_lt_u32 s3, 5
    s_cbranch_scc1 L_i3
    s_setprio 2
L_i3:
    s_waitcnt lgkmcnt(0)
    s_barrier
    """)
    a.srd(SX, 16, N*256)
    a(f"""
    s_cmp_ge_u32 s3, 5
    s_cbranch_scc1 L_l0
    s_cmp_eq_u32 s3, 4
    s_cbranch_scc1 L_e1
    s_cmp_eq_u32 s3, 0
    s_cselect_b64 s[12:13], s[26:27], s[32:33]
    s_cmp_eq_u32 s3, 2
    s_cselect_b64 s[12:13], s[24:25], s[12:13]
    s_cmp_eq_u32 s3, 3
    s_cselect_b64 s[12:13], s[30:31], s[12:13]
    """)
    a.srd(SW, 12, 32768)
    a(f"""
    s_lshl_b32 s15, s3, 13
    s_lshl_b32 s14, s4, 6
    """)
    for q in range(8):
        if q % 4 == 0: a(f"s_add_u32 m0, s15, {WL + q*1024}")
        a(f"s_add_u32 s12, s14, {q*4096 - (q%4)*1024}\nbuffer_load_dwordx4 v5, {R(SW)}, s12 offen offset:{(q%4)*1024} lds")
    a("L_e1:")
    if a.T:
        allsrds(a)
        a(f"""
        s_cmp_lt_u32 s3, {a.T}
        s_cbranch_scc1 L_e2
        s_mov_b64 exec, 1
        s_waitcnt vmcnt(0)
        ds_add_u32 v30, v2 offset:{WCNT-FLAG}
        s_mov_b64 exec, -1
        s_branch L_xw
L_e2:
        """)
    if a.EE:
        allsrds(a)
        a(f"""
        s_cmp_lt_u32 s3, {a.EE}
        s_cbranch_scc1 L_e3
        s_mov_b64 exec, 1
        s_waitcnt vmcnt(0)
        ds_add_u32 v30, v2 offset:{WCNT-FLAG}
        s_mov_b64 exec, -1
        s_branch L_xg
L_e3:
        """)
    xdma(a, "L_nx1")
    if not a.T and not a.EE: allsrds(a)
    a(f"""
    s_mov_b64 exec, 1
    s_waitcnt vmcnt(8)
    ds_add_u32 v30, v2 offset:{WCNT-FLAG}
    s_mov_b64 exec, -1
    s_branch L_g
L_l0:
    s_cmp_ge_u32 s3, 13
    s_cbranch_scc1 L_h0
    """)
    a.srd(SDST, 22, E*4); a.srd(SSRC, 20, E*4); a.srd(SEA, 18, E*8)
    a(f"""
    s_cmp_eq_u64 s[10:11], 0
    s_cbranch_scc1 L_noedge
    s_mov_b64 exec, s[10:11]
    buffer_load_dwordx4 v[8:11], v3, {R(SDST)}, s6 offen
    buffer_load_dwordx4 v[40:43], v3, {R(SSRC)}, s6 offen
    buffer_load_dwordx4 v[32:35], v4, {R(SEA)}, s7 offen
    buffer_load_dwordx4 v[36:39], v4, {R(SEA)}, s7 offen offset:16
    s_mov_b64 exec, -1
L_noedge:
    """)
    a.srd(SWC, 28, 1024)
    srds(a)

def tags(a):
    a(f"""
    v_and_b32 v45, 7, v1
    v_cmp_eq_u32 vcc, 0, v45
    v_lshlrev_b32 v45, 2, v45
    v_lshrrev_b64 v[46:47], v45, v[46:47]
    v_mov_b32 v44, {TAGM:#x}
    v_cndmask_b32 v44, v44, 2, vcc
    v_and_b32 v40, v44, v46
    v_lshrrev_b32 v41, 5, v46
    v_lshrrev_b32 v42, 10, v46
    v_lshrrev_b32 v43, 15, v46
    v_and_b32 v41, {TAGM:#x}, v41
    v_and_b32 v42, {TAGM:#x}, v42
    v_and_b32 v43, {TAGM:#x}, v43
    """)

def phase_p(a):
    M = ("s[12:13]", "s[14:15]", "s[20:21]", "s[22:23]")
    a(f"""
    s_cmp_eq_u64 s[10:11], 0
    s_cbranch_scc1 L_p_done
    s_mov_b64 exec, s[10:11]
    s_mov_b32 s16, 42800
    s_mov_b32 s17, {(-MARK) & 0xffffffff:#x}
    s_movk_i32 s18, 384
    v_mov_b32 v3, {IMG}
    s_waitcnt vmcnt(3)
    """)
    for j in range(4): a(f"v_mul_u32_u24 v{44+j}, s16, v{8+j}")
    for j in range(4): a(f"v_lshrrev_b32 v{44+j}, 24, v{44+j}")
    for j in range(4): a(f"v_lshlrev_b32 v{48+j}, 2, v{44+j}\nds_add_rtn_u32 v{20+j}, v{48+j}, v2 offset:{PCNT}")
    for j in range(4):
        a(f"""
        v_mul_u32_u24 v{48+j}, {BN*4}, v{44+j}
        v_lshl_add_u32 v{8+j}, v{8+j}, 2, s17
        v_sub_u32 v{8+j}, v{8+j}, v{48+j}
        v_mad_u32_u24 v{48+j}, v{44+j}, s18, v3
        """)
    a("s_waitcnt vmcnt(2)")
    for j in range(4): a(f"v_lshl_add_u32 v{8+j}, v{40+j}, 16, v{8+j}")
    for j in range(4):
        a(f"""
        s_waitcnt lgkmcnt({3-j})
        v_add_u32 v{52+j}, v{20+j}, v{44+j}
        v_cmp_gt_u32 {M[j]}, 32, v{20+j}
        v_and_b32 v{52+j}, 31, v{52+j}
        v_lshl_add_u32 v{52+j}, v{52+j}, 2, v{48+j}
        """)
    for j in range(4): a(f"s_mov_b64 exec, {M[j]}\nds_add_u32 v{52+j}, v{8+j} offset:256")
    for j in range(4):
        if j % 2 == 0: a(f"s_waitcnt vmcnt({1 - j//2})")
        a(f"s_mov_b64 exec, {M[j]}\nds_write2_b32 v{52+j}, v{32+2*j}, v{33+2*j} offset0:0 offset1:32")
    for j in range(4):
        rk, bk, base, sd, lo, hi = 20+j, 44+j, 48+j, 8+j, 32+2*j, 33+2*j
        a(f"""
        s_andn2_b64 exec, s[10:11], {M[j]}
        s_cbranch_execz L_po{j}
        ds_add_rtn_u32 v28, v30, v2 offset:{OVC-FLAG}
        v_mov_b32 v24, v{lo}
        v_mov_b32 v25, v{hi}
        v_add_u32 v26, {MARK:#x}, v{sd}
        v_lshlrev_b32 v27, 9, v{bk}
        v_lshl_add_u32 v27, v{rk}, 4, v27
        v_mov_b32 v29, 0x800
        s_waitcnt lgkmcnt(0)
        v_max_u32 v31, v28, v{rk}
        v_cmp_lt_u32 vcc, 62, v31
        v_lshlrev_b32 v28, 4, v28
        v_add_u32 v28, {OVL}, v28
        s_andn2_b64 s[24:25], exec, vcc
        s_mov_b64 exec, vcc
        ds_or_b32 v30, v2
        s_mov_b64 exec, s[24:25]
        ds_add_u32 v{base}, v29 offset:256
        ds_write_b128 v28, v[24:27]
L_po{j}:
        """)
    a(f"""
L_p_done:
    s_mov_b64 exec, 1
    ds_add_u32 v30, v2 offset:{PC1-FLAG}
    s_mov_b64 exec, -1
    s_setprio 0
    """)
    a.stamp('p_w')
    if 'xpf' in a.opt: a(f"""
    s_cmp_lg_u32 s3, 12
    s_cbranch_scc1 L_xpf
    s_mul_i32 s14, s5, {BN*256}
    s_mul_i32 s15, s4, {232*64}
    s_add_u32 s14, s14, s15
    s_add_u32 s14, s14, {160*256}
    s_add_u32 s15, s14, {116*64}
    v_lshlrev_b32 v8, 6, v1
    s_mov_b32 exec_hi, {(1 << 26) - 1:#x}
    buffer_load_dword v9, v8, {R(SX)}, s14 offen
    buffer_load_dword v9, v8, {R(SX)}, s14 offen offset:{58*64}
    buffer_load_dword v9, v8, {R(SX)}, s15 offen
    buffer_load_dword v9, v8, {R(SX)}, s15 offen offset:{58*64}
    s_mov_b32 exec_hi, -1
    s_waitcnt vmcnt(0)
L_xpf:
    """)
    if a.XE: a(f"s_cmp_lt_u32 s3, {a.XE}\ns_cbranch_scc1 L_xgd")
    if 'noxgo' not in a.opt: spin(a, "L_xg", 30, XGO-FLAG, "ge", 3)
    if a.T:
        a(f"L_xw:\ns_sub_u32 s19, s3, {a.T-1}\ns_cselect_b32 s19, 0, s19")
        spin(a, "L_xt", 30, XL-FLAG, "ge", "s19")
    a.stamp('xgo')
    xdma(a, "L_nx2")
    a(f"""
    s_branch L_g
L_h0:
    """)
    allsrds(a)
    a(f"""
    v_lshlrev_b32 v4, 4, v1
    s_mul_i32 s16, s2, 24576
    v_mov_b32 v3, 0
    s_movk_i32 s17, 384
    s_cmp_eq_u32 s3, 13
    s_cbranch_scc1 L_h13
    v_lshrrev_b32 v8, 4, v1
    v_lshlrev_b32 v9, 4, v7
    v_mad_u32_u24 v8, v8, s17, v9
    s_cmp_lg_u32 s3, 15
    s_cbranch_scc1 L_h2
    v_add_u32 v8, {32*384}, v8
    v_lshl_or_b32 v6, v7, 2, v6
    s_movk_i32 m0, {WCL}
    s_lshl_b32 s9, s4, 6
    buffer_load_dword v6, {R(SWC)}, s9 offen lds
L_h2:
    v_add_u32 v9, {IMG}, v8
    s_add_u32 s17, s16, {3*1536}
    s_add_u32 s19, s16, {6*1536}
    s_setprio 0
    """)
    spin(a, "L_hp", 30, PC1-FLAG, "ge", 8)
    a("s_setprio 3")
    a.stamp('b1')
    for i in range(8): a(f"ds_read_b128 v[{64+4*i}:{67+4*i}], v9 offset:{i*1536}")
    for i in range(8):
        a(f"s_waitcnt lgkmcnt({7-i})\nbuffer_store_dwordx4 v[{64+4*i}:{67+4*i}], v8, {R(SSEG)}, s{(16,17,19)[i//3]} offen offset:{(i%3)*1536} sc1")
    a(f"""
    s_mov_b64 exec, 1
    ds_add_u32 v30, v2 offset:{XGO-FLAG}
    """)
    a.stamp('imi')
    a(f"""
    s_waitcnt vmcnt(0)
    ds_add_u32 v30, v2 offset:{PC2-FLAG}
    s_branch L_pso
L_h13:
    v_lshrrev_b32 v8, 3, v1
    v_and_b32 v9, 0x70, v4
    v_mad_u32_u24 v8, v8, s17, v9
    v_add_u32 v9, {IMG+256}, v8
    v_add_u32 v5, {OVL}, v4
    s_mov_b32 s18, 0x40000
L_tag:
    buffer_load_dwordx2 v[46:47], v3, {R(SDBG)}, 0 offen offset:136 sc1
    s_waitcnt vmcnt(0)
    v_cmp_eq_u32 vcc, 0, v47
    s_sub_u32 s18, s18, 1
    s_cbranch_scc1 L_tagd
    s_cbranch_vccz L_tagd
    s_sleep 1
    s_branch L_tag
L_tagd:
    v_or_b32 v47, 0x80000000, v47
    ds_write_b64 v30, v[46:47] offset:{NONCE-FLAG}
    """)
    a.stamp('tag')
    tags(a)
    a("s_setprio 0")
    spin(a, "L_hq", 30, PC1-FLAG, "ge", 8)
    a(f"""
    s_setprio 3
    ds_read_b96 v[36:38], v30
    ds_read_b128 v[24:27], v5
    """)
    for i in range(8): a(f"ds_read_b128 v[{64+4*i}:{67+4*i}], v9 offset:{i*3072}")
    a(f"""
    s_lshl_b32 s19, s2, 15
    s_add_u32 s19, s19, {OVF-512}
    s_waitcnt lgkmcnt(8)
    v_cmp_gt_u32 s[20:21], v38, v1
    v_cmp_eq_u32 vcc, 0, v36
    v_and_b32 v36, 1, v36
    v_bfi_b32 v36, v44, 0, v36
    v_or_b32 v40, v40, v36
    s_and_b64 exec, s[20:21], vcc
    s_cbranch_scc0 L_psn
    buffer_store_dwordx4 v[24:27], v27, {R(SSEG)}, s19 offen sc1
L_psn:
    s_mov_b64 exec, 1
    ds_add_u32 v30, v2 offset:{(TRASH if 'xsd' in a.opt else XGO)-FLAG}
    s_mov_b64 exec, -1
    """)
    for i in range(8):
        a(f"s_waitcnt lgkmcnt({8-i})")
        for j in range(4): a(f"v_xor_b32 v{64+4*i+j}, v{64+4*i+j}, v{40+j}")
    a("s_waitcnt vmcnt(0)")
    spin(a, "L_hr", 30, PC2-FLAG, "ge", 2)
    for i in range(8):
        a(f"buffer_store_dwordx4 v[{64+4*i}:{67+4*i}], v8, {R(SSEG)}, s16 offen offset:256 sc1")
        if i < 7: a("s_add_u32 s16, s16, 3072")
    if 'xsd' in a.opt: a(f"s_mov_b64 exec, 1\nds_add_u32 v30, v2 offset:{XGO-FLAG}")
    a(f"""
L_pso:
    s_sub_u32 s17, s3, 8
    """)
    a.stamp('sig1')
    if a.HD and 'eh' not in a.opt: spin(a, "L_hd", 30, XD0-FLAG, "ge", a.HD)
    a(f"""
    s_branch L_sw
L_g:
    """)

SD = 48
ACCS = (48, 64, 80, 96)
def phase_g(a):
    a(f"""
    v_and_b32 v20, 31, v1
    v_lshrrev_b32 v21, 5, v1
    s_lshl_b32 s18, s3, 13
    s_add_u32 s18, s18, {XT}
    v_and_b32 v22, 15, v1
    v_xor_b32 v22, v22, v21
    v_lshlrev_b32 v22, 4, v22
    v_lshl_or_b32 v22, v20, 8, v22
    v_add_u32 v4, s18, v22
    v_bfe_u32 v22, v1, 2, 2
    v_lshl_add_u32 v22, v21, 3, v22
    v_lshlrev_b32 v22, 6, v22
    v_and_b32 v23, 16, v1
    v_lshl_add_u32 v22, v23, 1, v22
    v_and_b32 v23, 3, v1
    v_lshl_add_u32 v22, v23, 3, v22
    v_add_u32 v5, {WL}, v22
    v_bfe_u32 v22, v1, 1, 3
    v_xor_b32 v22, v22, v21
    v_lshlrev_b32 v22, 4, v22
    v_lshl_or_b32 v22, v20, 7, v22
    v_add_u32 v6, s18, v22
    v_lshl_add_u32 v7, v1, 4, s18
    v_and_b32 v22, 7, v1
    v_lshrrev_b32 v23, 4, v1
    v_xor_b32 v22, v22, v23
    v_lshlrev_b32 v22, 4, v22
    v_lshrrev_b32 v23, 3, v1
    v_lshl_or_b32 v8, v23, 7, v22
    v_xor_b32 v9, 64, v8
    v_mul_u32_u24 v22, {AUS}, v21
    v_lshl_add_u32 v22, v20, 4, v22
    s_lshl_b32 s18, s3, 9
    s_add_u32 s18, s18, {AU}
    v_add_u32 v10, s18, v22
    v_xor_b32 v11, 32, v6
    v_xor_b32 v12, 64, v6
    v_xor_b32 v13, 0x60, v6
    s_mul_i32 s19, s5, {BN*128}
    s_lshl_b32 s18, s3, 12
    s_add_u32 s19, s19, s18
    s_mov_b32 s20, {NLOG2E:#x}
    s_mov_b32 s21, {NLOG2E:#x}
    s_mov_b32 s22, 0x07060100
    s_mov_b32 s23, 0x07060302
    s_cmp_eq_u32 s3, 12
    s_cselect_b32 s26, 0xff, -1
    s_cselect_b32 s27, 0xff, -1
    """)
    for ks in range(1, 8): a(f"v_xor_b32 v{48+ks}, {ks*32:#x}, v4")
    Q = []
    def ds(txt, tag=None):
        a(txt); Q.append(tag)
    def wait(tag):
        if tag in Q:
            i = max(k for k, t in enumerate(Q) if t == tag)
            n = len(Q) - 1 - i
            assert n <= 15
            a(f"s_waitcnt lgkmcnt({n})")
            del Q[:i+1]
    def frag(t):
        p, ks, mm = t >> 4, (t >> 1) & 7, t & 1
        r = 112 + 4*(t & 3); o = (2*p+mm)*8192 + ks*1024
        ds(f"ds_read_b64_tr_b16 v[{r}:{r+1}], v5 offset:{o}", ('f', t))
        ds(f"ds_read_b64_tr_b16 v[{r+2}:{r+3}], v5 offset:{o+256}", ('f', t))
    spin(a, "L_wc", 30, WCNT-FLAG, "ge", 5)
    for t in range(4): frag(t)
    a("s_waitcnt vmcnt(0) lgkmcnt(0)"); Q.clear()
    if a.T:
        a("s_mov_b64 exec, 1"); ds(f"ds_add_u32 v30, v2 offset:{XL-FLAG}"); a("s_mov_b64 exec, -1")
    a.stamp('xl')
    for ks in range(8): ds(f"ds_read_b128 v[{16+4*ks}:{19+4*ks}], v{4 if ks == 0 else 48+ks}", ('x', ks))
    def pack(B, V, i):
        b = B + 4*i; v = V + 4*i
        return [f"v_pk_mul_f32 v[{b}:{b+1}], v[{b}:{b+1}], s[20:21]", f"v_pk_mul_f32 v[{b+2}:{b+3}], v[{b+2}:{b+3}], s[20:21]",
                f"v_cvt_pk_bf16_f32 v{b}, v{b}, v{b+1}", f"v_cvt_pk_bf16_f32 v{b+1}, v{b+2}, v{b+3}",
                f"v_perm_b32 v{v}, v{v}, v{b}, s22", f"v_perm_b32 v{v+1}, v{v+1}, v{b}, s23",
                f"v_perm_b32 v{v+2}, v{v+2}, v{b+1}, s22", f"v_perm_b32 v{v+3}, v{v+3}, v{b+1}, s23"]
    ep = []
    for i in range(4):
        ep += [('v', x) for x in pack(48, 64, i)]
        ep += [('w', i)]
    ep += [('r', i) for i in range(4)] + [('s', i) for i in range(4)]
    def emit(e):
        k, x = e
        if k == 'v': a(x)
        elif k == 'w':
            a("s_mov_b64 exec, s[26:27]")
            ds(f"ds_write_b128 v{(6, 11, 12, 13)[x]}, v[{64+4*x}:{67+4*x}]")
            a("s_mov_b64 exec, -1")
        elif k == 'r': ds(f"ds_read_b128 v[{48+4*x}:{51+4*x}], v7 offset:{x*1024}", ('r', x))
        elif k == 's':
            wait(('r', x))
            if x: a(f"s_cbranch_scc1 L_gs{x}")
            a(f"buffer_store_dwordx4 v[{48+4*x}:{51+4*x}], v{8+(x&1)}, {R(STABW)}, s19 offen offset:{x*1024} sc1")
            if x: a(f"L_gs{x}:")
    a("s_cmp_eq_u32 s3, 12")
    for t in range(32):
        p, ks, mm = t >> 4, (t >> 1) & 7, t & 1
        wait(('f', t)); wait(('x', ks))
        d = ACCS[2*p+mm]; r = 112 + 4*(t & 3)
        c = "0" if ks == 0 else f"v[{d}:{d+15}]"
        a(f"v_mfma_f32_32x32x16_bf16 v[{d}:{d+15}], v[{r}:{r+3}], v[{16+4*ks}:{19+4*ks}], {c}")
        if t + 4 < 32: frag(t + 4)
        if t >= 18:
            n = 5 if ep and ep[0][0] in 'vw' else (4 if ep and ep[0][0] == 'r' else 1)
            for _ in range(n):
                if ep: emit(ep.pop(0))
    while ep: emit(ep.pop(0))
    a(f"""
    s_cselect_b32 s18, s5, 0
    v_mov_b32 v32, 0x7180
    v_mov_b32 v33, 0x7180
    v_mov_b32 v34, 0x7180
    v_mov_b32 v35, 0x7180
    v_lshlrev_b32 v12, 4, v1
    s_cmp_lg_u32 s18, 63
    s_cbranch_scc1 L_nodum
    s_mov_b32 s18, {DUMMY*128}
    s_mov_b64 exec, 0xff
    buffer_store_dwordx4 v[32:35], v12, {R(STABW)}, s18 offen sc1
    s_mov_b64 exec, -1
L_nodum:
    s_movk_i32 s18, {XD1}
    s_cmp_lt_u32 s3, 5
    s_cselect_b32 s18, {XD0}, s18
    s_cmp_lt_u32 s3, 9
    s_cselect_b32 s18, s18, {TRASH}
    v_mov_b32 v31, 1
    v_mov_b32 v30, s18
    s_mov_b64 exec, 1
    ds_add_u32 v30, v31
    s_mov_b64 exec, -1
    v_mov_b32 v30, {FLAG}
    """)
    for i in range(4):
        for x in pack(80, 96, i): a(x)
    a.stamp('gd')
    a(f"""
    s_mov_b32 s17, s3
    s_cmp_lt_u32 s3, 5
    s_cbranch_scc1 L_sw
    s_mov_b32 s16, 0
    s_sub_u32 s17, s3, 5
    s_waitcnt vmcnt(0)
    """)
    sig2(a, "L_sig2a", 30, PC3-FLAG)
    a.stamp('gdr')

def sig2(a, lab, flag, cntoff):
    a(f"""
    s_mov_b64 exec, 1
    ds_add_rtn_u32 v4, v{flag}, v31 offset:{cntoff}
    ds_read_b64 v[6:7], v{flag} offset:{cntoff+NONCE-PC3}
    s_lshl_b32 s18, s4, 9
    s_lshl_b32 s19, s5, 3
    s_add_u32 s18, s18, s19
    s_add_u32 s18, s18, {FL2}
    v_mov_b32 v3, 0
    s_waitcnt lgkmcnt(0)
    v_readfirstlane_b32 s19, v4
    s_cmp_lg_u32 s19, 12
    s_cbranch_scc1 {lab}
    buffer_store_dwordx2 v[6:7], v3, {R(SSEG)}, s18 offen sc1
{lab}:
    s_mov_b64 exec, -1
    """)

RK = 64
def segaddr(a):
    a(f"""
    v_lshrrev_b32 v2, 3, v1
    v_mul_u32_u24 v2, 24576, v2
    v_and_b32 v3, 7, v1
    v_lshl_add_u32 v2, v3, 4, v2
    s_mul_i32 s25, s17, {32*24576}
    s_mul_i32 s19, s5, 384
    s_add_u32 s25, s25, s19
    s_lshl_b32 s28, s17, 12
    v_mov_b32 v34, 1
    """)

def phase_s(a):
    segaddr(a)
    a(f"""
    v_mov_b32 v78, {(DUMMY << 16) | ZSLOT:#x}
    v_lshl_add_u32 v80, s17, 6, v1
    s_movk_i32 s18, {BN}
    v_cmp_gt_u32 s[10:11], s18, v80
    v_lshlrev_b32 v64, 2, v80
    s_branch L_s1
L_sw:
    s_mov_b64 exec, -1
    s_mov_b32 s16, 1
    s_setprio 0
    """)
    segaddr(a)
    a(f"""
    v_mov_b32 v14, {PC3}
    s_add_u32 s31, s25, {1*8*24576}
    s_add_u32 s32, s25, {2*8*24576}
    s_add_u32 s33, s25, {3*8*24576}
    """)
    if a.HD and 'eh' in a.opt: spin(a, "L_hd", 14, XD0-PC3, "ge", a.HD)
    SQ = (25, 31, 32, 33)
    def sdl(q): a(f"buffer_load_dwordx4 v[{SD+4*q}:{SD+4*q+3}], v2, {R(SSEG)}, s{SQ[q]} offen offset:256 sc1")
    for q in range(4): sdl(q)
    a.stamp('sdi')
    a(f"""
L_nw:
    ds_read_b64 v[46:47], v14 offset:{NONCE-PC3}
    s_waitcnt lgkmcnt(0)
    v_readfirstlane_b32 s18, v47
    s_cmp_lg_u32 s18, 0
    s_cbranch_scc1 L_nwd
    s_sleep 1
    s_branch L_nw
L_nwd:
    """)
    tags(a)
    a(f"""
    v_mov_b32 v26, 0
    v_mov_b32 v3, 0
    v_lshlrev_b32 v38, 4, v1
    s_lshl_b32 s22, s17, 20
    s_lshl_b32 s27, s5, 9
    s_add_u32 s22, s22, s27
    s_add_u32 s22, s22, {OVF}
    s_mov_b64 s[6:7], -1
    s_mov_b64 s[8:9], -1
    s_mov_b64 s[10:11], -1
    s_mov_b64 s[12:13], -1
    s_mov_b32 s26, 0x0f0f0f0f
    s_mov_b32 s27, s26
    s_movk_i32 s21, {RETRY}
    s_mov_b32 s23, {TAGM:#x}
    s_cmp_ge_u32 s3, 5
    s_cbranch_scc1 L_sig2b
    s_waitcnt vmcnt(4)
    """)
    sig2(a, "L_sig2b", 14, 0)
    for j in range(0, 16, 2): a(f"v_mov_b64 v[{RK+j}:{RK+j+1}], 0")
    a(f"""
L_sv1:
    s_mov_b32 s20, 0
    s_waitcnt vmcnt(0)
    """)
    for q in range(4):
        d = SD + 4*q
        a(f"""
        s_and_b64 exec, s[{6+2*q}:{7+2*q}], s[{6+2*q}:{7+2*q}]
        s_cbranch_scc0 L_sq{q}
        v_xor_b32 v{d}, v{d}, v40
        v_xor_b32 v{d+1}, v{d+1}, v41
        v_xor_b32 v{d+2}, v{d+2}, v42
        v_xor_b32 v{d+3}, v{d+3}, v43
        v_and_b32 v45, v{d}, v44
        v_or3_b32 v46, v{d+1}, v{d+2}, v{d+3}
        v_and_or_b32 v45, v46, s23, v45
        v_cmp_ne_u32 vcc, 0, v45
        s_wqm_b64 s[{6+2*q}:{7+2*q}], vcc
        s_cbranch_scc0 L_sq{q}
        s_lshr_b64 s[14:15], s[{6+2*q}:{7+2*q}], 4
        s_or_b64 s[{6+2*q}:{7+2*q}], s[{6+2*q}:{7+2*q}], s[14:15]
        s_and_b64 s[{6+2*q}:{7+2*q}], s[{6+2*q}:{7+2*q}], s[26:27]
        s_lshl_b64 s[14:15], s[{6+2*q}:{7+2*q}], 4
        s_or_b64 s[{6+2*q}:{7+2*q}], s[{6+2*q}:{7+2*q}], s[14:15]
        s_mov_b64 exec, s[{6+2*q}:{7+2*q}]
        s_mov_b32 s20, 1
        """)
        sdl(q)
        a(f"L_sq{q}:")
    a(f"""
    s_mov_b64 exec, -1
    s_cmp_eq_u32 s20, 0
    s_cbranch_scc1 L_svd
    s_sub_u32 s21, s21, 1
    s_cbranch_scc0 L_sv1
    s_waitcnt vmcnt(0)
    v_mov_b32 v39, {FLAG}
    ds_or_b32 v39, v34
    """)
    for j in range(16): a(f"v_mov_b32 v{SD+j}, {MARK:#x}")
    a(f"""
L_svd:
    """)
    a.stamp('s_sd')
    a("v_bfe_u32 v45, v52, 11, 5\nv_bfe_u32 v46, v56, 11, 5\nv_bfe_u32 v47, v60, 11, 5\nv_bfe_u32 v36, v48, 11, 5")
    for q in range(1, 4):
        a(f"v_mov_b32_dpp v{44+q}, v{44+q} row_shr:{q} row_mask:0xf bank_mask:0xf bound_ctrl:0")
    a("v_or_b32 v36, v36, v45\nv_or3_b32 v36, v36, v46, v47")
    a(f"""
    v_or3_b32 v45, v48, v52, v56
    v_or_b32 v45, v45, v60
    v_cmp_ne_u32 s[14:15], 0, v36
    v_and_b32 v45, 1, v45
    v_mov_b32 v39, {FLAG}
    v_mov_b32 v28, 0
    v_mov_b32 v29, 0
    v_mov_b32 v30, {MARK:#x}
    s_mov_b32 s24, 0
    v_cmpx_ne_u32 vcc, 0, v45
    ds_or_b32 v39, v34
    """)
    def ranks(q):
        for j in range(4*q, 4*q+4):
            a(f"""
            v_and_b32 v{80+j}, 0x7fc, v{SD+j}
            v_cmpx_le_i32 vcc, 0, v{SD+j}
            ds_add_rtn_u32 v{RK+j}, v{80+j}, v34 offset:{CNT}
            s_mov_b64 exec, -1
            """)
    a(f"""
    s_cbranch_vccnz L_ovd
L_ov:
    s_cmp_eq_u64 s[14:15], 0
    s_cbranch_scc1 L_ovd
    s_ff1_i32_b64 s23, s[14:15]
    s_bitset0_b64 s[14:15], s23
    v_readlane_b32 s26, v36, s23
    s_and_b32 s27, s23, 7
    s_lshl_b32 s27, s27, 18
    s_lshr_b32 s23, s23, 3
    s_lshl_b32 s23, s23, 15
    s_add_u32 s23, s23, s27
    s_add_u32 s23, s23, s22
    s_lshl_b32 s27, s24, 4
    s_sub_u32 s23, s23, s27
    s_bfm_b64 exec, s26, s24
    s_add_u32 s24, s24, s26
    s_cmp_gt_u32 s24, 63
    s_cbranch_scc1 L_ovbad
    buffer_load_dwordx4 v[28:31], v38, {R(SSEG)}, s23 offen sc1
    s_branch L_ov
L_ovbad:
    s_mov_b64 exec, 1
    ds_or_b32 v39, v34
L_ovd:
    s_mov_b64 exec, -1
    """)
    a.stamp('s_ov')
    def ead(base, go, i):
        if i % 2 == 0: a(f"s_add_u32 m0, s28, {base}")
        a(f"s_add_u32 s19, s25, {i*8*24576 - i*1024 + go}\nbuffer_load_dwordx4 v2, {R(SSEG)}, s19 offen offset:{i*1024} sc1 lds")
    if 'eafirst' not in a.opt:
        for q in range(4): ranks(q)
    spin(a, "L_e5", 14, XD0-PC3, "ge", 5)
    for i in range(4): ead(EALO, 0, i)
    nea = 4
    if 'eapre' in a.opt:
        spin(a, "L_e9", 14, XD1-PC3, "ge", 4)
        for i in range(4): ead(EAHI, 128, i)
        nea = 8
    a.stamp('s_ea')
    if 'eafirst' in a.opt:
        for q in range(4): ranks(q)
    a(f"""
    v_lshlrev_b32 v37, 2, v1
    s_lshl_b32 s18, s17, 8
    s_add_u32 s18, s18, 32768
    v_add_u32 v37, s18, v37
    s_waitcnt vmcnt({nea})
    v_and_b32 v27, 0x7fc, v30
    v_cmpx_le_i32 vcc, 0, v30
    ds_add_rtn_u32 v26, v27, v34 offset:{CNT}
    s_mov_b64 exec, -1
    """)
    pp = 1 if 'pfp' in a.opt else 0
    if pp: a(f"""
    s_xor_b32 s29, s5, 32
    s_lshl_b32 s18, s4, 9
    s_lshl_b32 s19, s29, 3
    s_add_u32 s18, s18, s19
    s_add_u32 s18, s18, {FL2}
    ds_read_b64 v[8:9], v14 offset:{NONCE-PC3}
    buffer_load_dwordx2 v[12:13], v3, {R(SSEG)}, s18 offen sc1
    """)
    a(f"""
L_s1:
    v_lshlrev_b32 v35, 2, v1
    s_lshl_b32 s35, s16, 3
    s_or_b32 s35, s35, s17
    s_cmp_eq_u32 s3, 12
    s_cselect_b32 s26, 0xff, -1
    s_cselect_b32 s27, 0xff, -1
    s_waitcnt lgkmcnt(0)
    """)
    a.stamp('s_pb')
    a("s_barrier")
    a.stamp('s1')
    def auw():
        a("s_mov_b64 exec, s[26:27]")
        for i in range(4): a(f"ds_write_b128 v10, v[{96+4*i}:{99+4*i}] offset:{i*2*AUS}")
        a("s_mov_b64 exec, -1")
    a(f"""
    s_cmp_eq_u32 s16, 1
    s_cbranch_scc1 L_s2e
    ds_read_b32 v66, v64 offset:{CNT}
    """)
    if 'eapre' not in a.opt and 'eas' not in a.opt:
        for i in range(4): ead(EAHI, 128, i)
    a(f"""
    s_waitcnt lgkmcnt(0)
    v_min_u32 v67, 63, v66
    v_sub_u32 v67, 63, v67
    v_lshlrev_b32 v67, 2, v67
    s_mov_b64 exec, s[10:11]
    ds_add_rtn_u32 v68, v67, v34 offset:{HIST}
    """)
    auw()
    a(f"""
    s_waitcnt lgkmcnt(4)
    s_barrier
    s_branch L_s2d
L_s2e:
    """)
    if 'eas' in a.opt:
        for i in range(2): ead(EAHI, 128, i)
    a(f"""
    s_barrier
    """)
    if 'eas' in a.opt:
        for i in range(2, 4): ead(EAHI, 128, i)
    a(f"""
    ds_write2st64_b32 v37, v28, v29 offset0:{EALO//256} offset1:{EAHI//256}
    s_cmp_ge_u32 s3, 13
    s_cbranch_scc1 L_s2f
    """)
    auw()
    a(f"""
L_s2f:
    s_mov_b32 s18, 0xffff0000
    v_lshl_add_u32 v36, v1, 4, s28
    """)
    for j in range(16):
        off = (j >> 2) * 1024 + (j & 3) * 4
        if off:
            a(f"v_add_u32 v38, {off}, v36\nv_and_or_b32 v{SD+j}, v{SD+j}, s18, v38")
        else:
            a(f"v_and_or_b32 v{SD+j}, v{SD+j}, s18, v36")
    a(f"""
    v_and_or_b32 v30, v30, s18, v37
L_s2d:
    """)
    a.stamp('s2')
    if pp: a(f"""
    s_cmp_lg_u32 s16, 1
    s_cbranch_scc1 L_s3a
    s_mul_i32 s29, s29, {BN*128}
    s_mul_i32 s18, s17, {98*64}
    s_add_u32 s29, s29, s18
    v_lshlrev_b32 v5, 6, v1
    s_waitcnt vmcnt(0)
    v_cmp_ne_u64 vcc, v[8:9], v[12:13]
    s_cbranch_vccnz L_s3d
    buffer_load_dword v127, v5, {R(STABW)}, s29 offen sc1
    s_add_u32 s29, s29, 4096
    s_mov_b32 exec_hi, 3
    buffer_load_dword v127, v5, {R(STABW)}, s29 offen sc1
    s_mov_b32 exec_hi, -1
L_s3a:
    """)
    a(f"""
    s_cmp_gt_u32 s35, 6
    s_cbranch_scc1 L_s3d
    ds_read_b32 v69, v35 offset:{HIST}
    s_waitcnt lgkmcnt(0)
    v_mov_b32 v70, v69
    """)
    a.scan(70)
    a(f"""
    v_sub_u32 v70, v70, v69
    ds_bpermute_b32 v70, v67, v70
    v_max_u32 v65, 1, v66
    s_waitcnt lgkmcnt(0)
    v_add_u32 v70, v70, v68
    v_and_b32 v71, 7, v70
    v_lshrrev_b32 v72, 7, v70
    v_bfe_u32 v73, v70, 3, 4
    v_bfe_i32 v74, v70, 7, 1
    v_and_b32 v74, 15, v74
    v_xor_b32 v73, v73, v74
    v_lshl_add_u32 v74, v73, 2, v72
    v_lshlrev_b32 v74, 2, v74
    v_lshl_add_u32 v73, v73, 3, v71
    v_lshlrev_b32 v73, 3, v73
    v_lshl_add_u32 v73, v72, 1, v73
    s_mov_b64 exec, s[10:11]
    ds_max_u32 v74, v65 offset:{LEN}
    ds_write_b16 v73, v80 offset:{PERM}
    s_mov_b64 exec, -1
L_s3d:
    s_waitcnt lgkmcnt(0)
    s_barrier
    """)
    a(f"""
    ds_read_b32 v40, v35 offset:{LEN}
    v_mov_b32 v42, {FLAG}
    ds_read_b32 v42, v42
    s_lshl_b32 s18, s3, 2
    s_add_u32 s19, s18, 1
    s_add_u32 s20, s18, 2
    s_add_u32 s21, s18, 3
    s_waitcnt lgkmcnt(0)
    v_mov_b32 v41, v40
    v_readfirstlane_b32 s22, v42
    """)
    a.scan(41)
    a(f"""
    s_nop 0
    v_readlane_b32 s23, v41, 63
    v_sub_u32 v41, v41, v40
    v_readlane_b32 s30, v40, s18
    v_readlane_b32 s31, v40, s19
    v_readlane_b32 s32, v40, s20
    v_readlane_b32 s33, v40, s21
    v_readlane_b32 s34, v41, s18
    s_cmp_gt_u32 s23, {ROWCAP}
    s_cselect_b32 s22, 1, s22
    s_cmp_lg_u32 s22, 0
    s_cbranch_scc1 L_slow
    """)
    if a.force_slow: a("s_branch L_slow")
    a(f"""
    s_cmp_gt_u32 s35, 6
    s_cbranch_scc1 L_s4d
    ds_bpermute_b32 v70, v74, v41
    ds_bpermute_b32 v75, v74, v40
    v_lshlrev_b32 v71, 2, v71
    v_add_u32 v71, {ELL}, v71
    v_mov_b32 v72, {CNT+0x7fc}
    v_mov_b32 v73, {TRASH}
    ds_write_b32 v72, v73
    s_waitcnt lgkmcnt(0)
    v_lshl_add_u32 v70, v70, 5, v71
    s_mov_b64 exec, s[10:11]
    ds_write_b32 v64, v70 offset:{CNT}
    s_mov_b64 exec, -1
L_s4d:
    s_waitcnt lgkmcnt(0)
    s_barrier
    """)
    a.stamp('s4')
    a(f"""
    s_cmp_eq_u32 s16, 1
    s_cbranch_scc1 L_s5
    v_lshl_add_u32 v76, v66, 5, v70
    v_lshl_add_u32 v77, v75, 5, v70
    s_mov_b64 exec, s[10:11]
L_pad:
    v_cmpx_lt_u32 vcc, v76, v77
    s_cbranch_execz L_padd
    ds_write_b32 v76, v78
    v_add_u32 v76, 32, v76
    s_branch L_pad
L_padd:
    s_mov_b64 exec, -1
    s_branch L_s5d
L_s5:
    """)
    for h in range(2):
        for j in range(8*h, 8*h+8): a(f"ds_read_b32 v{80+j}, v{80+j} offset:{CNT}")
        if h == 1: a(f"ds_read_b32 v27, v27 offset:{CNT}")
        for j in range(8*h, 8*h+8):
            a(f"s_waitcnt lgkmcnt({7+h})\nv_lshl_add_u32 v{80+j}, v{RK+j}, 5, v{80+j}\nds_write_b32 v{80+j}, v{SD+j}")
    a(f"""
    s_waitcnt lgkmcnt(8)
    v_lshl_add_u32 v27, v26, 5, v27
    ds_write_b32 v27, v30
L_s5d:
    ; w_c operand v[96:99]
    v_and_b32 v44, 7, v1
    v_lshrrev_b32 v45, 4, v1
    v_lshl_add_u32 v44, v44, 2, v45
    v_lshlrev_b32 v44, 1, v44
    ds_read_u16 v40, v44 offset:{WCL}
    ds_read_u16 v41, v44 offset:{WCL+64}
    ds_read_u16 v42, v44 offset:{WCL+128}
    ds_read_u16 v43, v44 offset:{WCL+192}
    s_mov_b32 s20, {NLOG2E:#x}
    s_mov_b32 s21, {NLOG2E:#x}
    v_and_b32 v44, 8, v1
    v_cmp_eq_u32 vcc, 0, v44
    s_waitcnt lgkmcnt(0)
    v_lshlrev_b32 v40, 16, v40
    v_lshlrev_b32 v41, 16, v41
    v_lshlrev_b32 v42, 16, v42
    v_lshlrev_b32 v43, 16, v43
    v_pk_mul_f32 v[40:41], v[40:41], s[20:21]
    v_pk_mul_f32 v[42:43], v[42:43], s[20:21]
    v_cvt_pk_bf16_f32 v8, v40, v41
    v_cvt_pk_bf16_f32 v9, v42, v43
    v_cndmask_b32 v96, 0, v8, vcc
    v_cndmask_b32 v97, 0, v9, vcc
    v_xor_b32 v98, v96, v8
    v_xor_b32 v99, v97, v9
    """)
    poll2(a, "a")
    if pp: a("s_cmp_eq_u32 s16, 1\ns_cbranch_scc1 L_s5w\ns_waitcnt vmcnt(0)\nL_s5w:\ns_waitcnt lgkmcnt(0)")
    else: a(f"""
    s_waitcnt vmcnt(0) lgkmcnt(0)
    """)
    a.stamp('s5p')
    a("s_barrier")

def poll2(a, sfx):
    a(f"""
    s_cmp_lg_u32 s3, 12
    s_cbranch_scc1 L_np2{sfx}
    v_lshlrev_b32 v60, 3, v1
    v_mov_b32 v58, {NONCE}
    ds_read_b64 v[58:59], v58
    s_lshl_b32 s19, s4, 9
    s_add_u32 s19, s19, {FL2}
    s_mov_b32 s18, 0x40000
L_poll2{sfx}:
    buffer_load_dwordx2 v[62:63], v60, {R(SSEG)}, s19 offen sc1
    s_waitcnt vmcnt(0) lgkmcnt(0)
    v_cmpx_ne_u64 vcc, v[58:59], v[62:63]
    s_sub_u32 s18, s18, 1
    s_cbranch_scc1 L_poll2d{sfx}
    s_cbranch_vccz L_poll2d{sfx}
    s_sleep 2
    s_branch L_poll2{sfx}
L_poll2d{sfx}:
    s_mov_b64 exec, -1
L_np2{sfx}:
    """)

DEN, NUM, AP, T0, EA0, UR, AUN, GR, WC, SEL, IDM, XR = 28, 32, 36, 40, 48, 56, 60, 64, 96, 100, 104, 106
IDX, EAD, PTR, IDS, VAU, VOUT, CAU, COUT = 108, 112, 114, 116, 118, 119, 120, 121
def v4(r): return f"v[{r}:{r+3}]"
def v2(r): return f"v[{r}:{r+1}]"
EAOFF = f"offset0:{EALO//256} offset1:{EAHI//256}"

def body(a, k, bnd):
    D = a.D; n0 = len(a.L)
    T = T0 + 4*(k & 1); Tn = T0 + 4*((k+1) & 1)
    EAn = EA0 + 4*((k+1) & 1); EAc = EA0 + 4*(k & 1)
    Gc = GR + 4*k; Gn = GR + 4*((k+1) % D); Gl = GR + 4*((k-1) % D)
    Iu = IDX + 2*((k+1) & 1); Iw = IDX + 2*(k & 1)
    one = f"v_pk_add_f32 {v2(T)}, {v2(T)}, 1.0 op_sel_hi:[1,0]\nv_pk_add_f32 {v2(T+2)}, {v2(T+2)}, 1.0 op_sel_hi:[1,0]"
    acd = f"v_pk_add_f32 {v2(DEN)}, {v2(DEN)}, {v2(T)}\nv_pk_add_f32 {v2(DEN+2)}, {v2(DEN+2)}, {v2(T+2)}"
    acn = f"v_pk_fma_f32 {v2(NUM)}, {v2(T)}, {v2(Gc)}, {v2(NUM)}\nv_pk_fma_f32 {v2(NUM+2)}, {v2(T+2)}, {v2(Gc+2)}, {v2(NUM+2)}"
    if 'np1' in a.opt: one = "\n".join(f"v_add_f32 v{T+r}, 1.0, v{T+r}" for r in range(4))
    if 'np2' in a.opt: acd = "\n".join(f"v_add_f32 v{DEN+r}, v{DEN+r}, v{T+r}" for r in range(4))
    if 'np3' in a.opt: acn = "\n".join(f"v_fmac_f32 v{NUM+r}, v{T+r}, v{Gc+r}" for r in range(4))
    acc = acd + "\n" + acn
    a(f"""
    s_waitcnt lgkmcnt(0)
    buffer_load_dwordx4 {v4(Gl)}, {v2(Iu)}, {R(STAB)}, 0 idxen offen sc1
    """)
    if bnd: a(f"v_mfma_f32_16x16x32_bf16 {v4(AP)}, {v4(SEL)}, {v4(AUN)}, 0")
    a(f"""
    s_mov_b64 exec, s[36:37]
    ds_read2st64_b32 {v2(EAc)}, v{EAD} {EAOFF}
    ds_read2st64_b32 {v2(EAc+2)}, v{EAD+1} {EAOFF}
    ds_read_u16 v{EAD}, v{PTR+1} offset:{(k+3)*32}
    ds_read_u16 v{EAD+1}, v{PTR+1} offset:{(k+3)*32+4}
    s_mov_b64 exec, -1
    ds_read_u16 v{Iw}, v{PTR} offset:{(k+D)*32}
    v_exp_f32 v{T}, v{T}
    v_mfma_f32_16x16x32_bf16 {v4(Tn)}, {v4(EAn)}, {v4(WC)}, {v4(AP)}
    v_exp_f32 v{T+1}, v{T+1}
    v_exp_f32 v{T+2}, v{T+2}
    v_exp_f32 v{T+3}, v{T+3}
    {one}
    s_waitcnt vmcnt({D-2})
    v_rcp_f32 v{T}, v{T}
    v_mfma_f32_16x16x32_bf16 {v4(Tn)}, {v4(SEL)}, {v4(Gn)}, {v4(Tn)}
    v_rcp_f32 v{T+1}, v{T+1}
    v_rcp_f32 v{T+2}, v{T+2}
    v_rcp_f32 v{T+3}, v{T+3}
    {acc}
    """)
    if k == D-1: a(f"v_lshl_add_u64 {v2(PTR)}, {v2(PTR)}, 0, s[38:39]")
    def drop(pred):
        a.L[n0:] = [l for l in a.L[n0:] if not pred(l)]
    if 'xl' in a.opt: drop(lambda l: 'buffer_load' in l)
    if 'xe' in a.opt: drop(lambda l: 'ds_read2st64' in l or f'ds_read_u16 v{EAD}' in l or f'ds_read_u16 v{EAD+1}' in l or 'exec' in l)
    if 'xt' in a.opt: drop(lambda l: 'v_exp' in l)
    if 'xm' in a.opt: drop(lambda l: 'v_mfma' in l and f', {v4(WC)},' in l)

def phase_m(a):
    D = a.D
    a.stamp(9)
    if a.prof:
        a("v_mov_b32 v126, v15\ns_memtime s[86:87]\ns_waitcnt lgkmcnt(0)"); a.sreg = 126
    if 'pf' in a.opt: a(f"""
    s_cmp_gt_u32 s3, 12
    s_cbranch_scc1 L_nopf
    s_lshr_b32 s18, s2, 3
    s_mul_i32 s18, s18, {784*128}
    v_lshlrev_b32 v2, 7, v0
    buffer_load_dword v127, v2, {R(STABW)}, s18 offen sc1
L_nopf:
    """)
    if 'prio' in a.opt: a("s_setprio 3\ns_mov_b32 s23, 3")
    a(f"""
    v_lshrrev_b32 v2, 3, v1
    v_and_b32 v3, 7, v1
    v_bfe_u32 v4, v1, 2, 2
    v_lshrrev_b32 v5, 4, v1
    v_and_b32 v6, 3, v1
    s_lshl_b32 s18, s34, 5
    s_add_u32 s18, s18, {ELL}
    s_add_u32 s19, s18, 2
    v_lshl_add_u32 v{PTR}, v2, 2, s19
    v_lshl_add_u32 v{PTR+1}, v4, 3, s18
    s_lshl_b32 s19, s3, 6
    v_lshl_add_u32 v7, v2, 3, s19
    ds_read_b64 {v2(IDS)}, v7 offset:{PERM}
    """)
    for q in range(D-1): a(f"ds_read_u16 v{8+q}, v{PTR} offset:{q*32}")
    a(f"""
    ds_read_u16 v{IDX+2}, v{PTR} offset:{(D-1)*32}
    ds_read_u16 v16, v{PTR+1}
    ds_read_u16 v17, v{PTR+1} offset:4
    ds_read_u16 v18, v{PTR+1} offset:32
    ds_read_u16 v19, v{PTR+1} offset:36
    v_cmp_eq_u32 s[36:37], v5, v6
    v_lshlrev_b32 v{IDX+1}, 4, v3
    v_lshlrev_b32 v{IDX+3}, 4, v3
    v_mul_u32_u24 v{CAU}, {AUS}, v3
    v_add_u32 v{CAU}, {AU}, v{CAU}
    s_mul_i32 s18, s5, {BN*256}
    s_lshl_b32 s19, s4, 6
    s_add_u32 s18, s18, s19
    v_lshl_add_u32 v{COUT}, v3, 3, s18
    s_movk_i32 s35, 256
    s_movk_i32 s38, {D*32}
    s_movk_i32 s39, {D*32}
    s_mov_b32 s28, {EPS:#x}
    s_mov_b32 s29, {EPS:#x}
    v_cmp_eq_u32 vcc, v4, v5
    v_mov_b32 v20, 0x3f80
    v_mov_b32 v21, 4
    v_cndmask_b32 v21, v21, v6, vcc
    """)
    for r in range(4):
        a(f"v_cmp_eq_u32 vcc, {r}, v21\ns_nop 1\nv_cndmask_b32 v{SEL+r}, 0, v20, vcc")
    a(f"""
    v_and_b32 v22, 1, v6
    v_lshlrev_b32 v22, 4, v22
    v_lshlrev_b32 v22, v22, v20
    v_cmp_gt_u32 vcc, 2, v6
    v_mov_b64 {v2(EA0)}, 0
    v_mov_b64 {v2(EA0+2)}, 0
    v_cndmask_b32 v{IDM}, 0, v22, vcc
    v_xor_b32 v{IDM+1}, v{IDM}, v22
    v_mov_b64 {v2(EA0+4)}, 0
    v_mov_b64 {v2(EA0+6)}, 0
    v_mov_b64 {v2(DEN)}, s[28:29]
    v_mov_b64 {v2(DEN+2)}, s[28:29]
    v_mov_b64 {v2(NUM)}, 0
    v_mov_b64 {v2(NUM+2)}, 0
    s_waitcnt lgkmcnt(0)
    v_mad_u32_u16 v{VOUT}, v{IDS}, s35, v{COUT}
    v_mad_u32_u16 v{VAU}, v{IDS}, 16, v{CAU}
    buffer_load_dwordx2 {v2(XR)}, v{VOUT}, {R(SX)}, 0 offen
    """)
    for q in range(D-1):
        a(f"v_lshl_add_u32 v{8+q}, v{8+q}, 7, v{IDX+1}\nbuffer_load_dwordx4 {v4(GR+4*q)}, v{8+q}, {R(STABW)}, 0 offen sc1")
    a(f"""
    ds_read_b128 {v4(UR)}, v{VAU}
    v_mad_u32_u16 v{VAU}, v{IDS}, 16, v{CAU} op_sel:[1,0,0,0]
    ds_read_b128 {v4(AUN)}, v{VAU}
    s_mov_b64 exec, s[36:37]
    ds_read2st64_b32 {v2(EA0)}, v16 {EAOFF}
    ds_read2st64_b32 {v2(EA0+2)}, v17 {EAOFF}
    ds_read2st64_b32 {v2(EA0+4)}, v18 {EAOFF}
    ds_read2st64_b32 {v2(EA0+6)}, v19 {EAOFF}
    ds_read_u16 v{EAD}, v{PTR+1} offset:64
    ds_read_u16 v{EAD+1}, v{PTR+1} offset:68
    s_mov_b64 exec, -1
    s_sub_u32 s24, s30, 1
    s_waitcnt lgkmcnt(0)
    """)
    a(f"""
    v_mfma_f32_16x16x32_bf16 {v4(AP)}, {v4(SEL)}, {v4(UR)}, 0
    s_nop 1
    v_mfma_f32_16x16x32_bf16 {v4(T0)}, {v4(EA0)}, {v4(WC)}, {v4(AP)}
    s_waitcnt vmcnt({D-2})
    v_mfma_f32_16x16x32_bf16 {v4(T0)}, {v4(SEL)}, {v4(GR)}, {v4(T0)}
    """)
    a.stamp(10)
    if a.prof:
        a(f"s_mov_b32 s90, {len(a.names)}"); a.names += ['g1', 'g2', 'g3', 'g4']
    for k in range(D):
        a(f"""
L_m{k}:
        s_sub_u32 s24, s24, 1
        s_cbranch_scc1 L_b{k}
        """)
        body(a, k, False)
    a("s_branch L_m0")
    for k in range(D):
        a(f"L_b{k}:")
        body(a, k, True)
        a(f"""
        v_rcp_f32 v{DEN}, v{DEN}
        v_rcp_f32 v{DEN+1}, v{DEN+1}
        v_rcp_f32 v{DEN+2}, v{DEN+2}
        v_rcp_f32 v{DEN+3}, v{DEN+3}
        s_cmp_ge_u32 s30, {D-2}
        s_cbranch_scc1 L_bx{k}
        s_waitcnt vmcnt(0)
L_bx{k}:
        v_pk_fma_f32 {v2(NUM)}, {v2(NUM)}, {v2(DEN)}, {v2(UR)}
        v_pk_fma_f32 {v2(NUM+2)}, {v2(NUM+2)}, {v2(DEN+2)}, {v2(UR+2)}
        ds_read_b128 {v4(UR)}, v{VAU}
        v_max_f32 v{NUM}, 0, v{NUM}
        v_max_f32 v{NUM+1}, 0, v{NUM+1}
        v_max_f32 v{NUM+2}, 0, v{NUM+2}
        v_max_f32 v{NUM+3}, 0, v{NUM+3}
        v_lshrrev_b64 {v2(IDS)}, 16, {v2(IDS)}
        v_mov_b64 {v2(DEN)}, s[28:29]
        v_mfma_f32_4x4x4_16b_bf16 v[122:125], {v2(IDM)}, {v2(XR)}, {v4(NUM)}
        v_mov_b64 {v2(DEN+2)}, s[28:29]
        v_mad_u32_u16 v{VAU}, v{IDS}, 16, v{CAU} op_sel:[1,0,0,0]
        v_mov_b64 {v2(NUM)}, 0
        v_mov_b64 {v2(NUM+2)}, 0
        ds_read_b128 {v4(AUN)}, v{VAU}
        v_cvt_pk_bf16_f32 v122, v122, v123
        v_cvt_pk_bf16_f32 v123, v124, v125
        s_mov_b32 s30, s31
        s_mov_b32 s31, s32
        s_mov_b32 s32, s33
        s_mov_b32 s33, 0
        buffer_store_dwordx2 v[122:123], v{VOUT}, {R(SOUT)}, 0 offen{' sc1' if 'osc1' in a.opt else ''}{' nt' if 'ont' in a.opt else ''}
        """)
        if a.prof: a("s_memrealtime s[100:101]\ns_waitcnt lgkmcnt(0)\ns_add_u32 s90, s90, 1\ns_mov_b32 m0, s90\nv_writelane_b32 v126, s100, m0")
        if 'prio' in a.opt: a(f"""
        s_sub_u32 s23, s23, 1
        s_cmp_eq_u32 s23, 2
        s_cbranch_scc0 L_pr{k}
        s_setprio 2
L_pr{k}:
        s_cmp_eq_u32 s23, 1
        s_cbranch_scc0 L_ps{k}
        s_setprio 1
L_ps{k}:
        s_cmp_eq_u32 s23, 0
        s_cbranch_scc0 L_pt{k}
        s_setprio 0
L_pt{k}:
        """)
        a(f"""
        v_mad_u32_u16 v{VOUT}, v{IDS}, s35, v{COUT}
        s_sub_u32 s24, s30, 1
        s_cbranch_scc1 L_fin
        buffer_load_dwordx2 {v2(XR)}, v{VOUT}, {R(SX)}, 0 offen
        s_branch L_m{(k+1) % D}
        """)

def slow(a):
    a(f"""
L_slow:
    s_waitcnt vmcnt(0) lgkmcnt(0)
    s_barrier
    v_mov_b64 v[4:5], 0
    v_mov_b64 v[6:7], 0
    v_lshlrev_b32 v2, 4, v0
    v_add_u32 v2, {ACC}, v2
    s_mov_b32 s18, 0
L_sz:
    v_cmp_gt_u32 vcc, {ACC+100352}, v2
    s_mov_b64 exec, vcc
    ds_write_b128 v2, v[4:7]
    s_mov_b64 exec, -1
    v_add_u32 v2, 16384, v2
    s_add_u32 s18, s18, 1
    s_cmp_lt_u32 s18, 7
    s_cbranch_scc1 L_sz
    s_cmp_gt_u32 s3, 1
    s_cbranch_scc1 L_swc
    v_lshrrev_b32 v3, 4, v0
    v_bfe_u32 v4, v0, 2, 2
    v_and_b32 v5, 3, v0
    v_lshl_add_u32 v3, v3, 2, v5
    v_lshlrev_b32 v3, 1, v3
    v_lshl_add_u32 v3, v4, 8, v3
    s_lshl_b32 s20, s4, 6
    buffer_load_ushort v3, v3, {R(SWC)}, s20 offen
    v_lshlrev_b32 v4, 2, v0
    v_add_u32 v4, {WCF}, v4
    s_waitcnt vmcnt(0)
    v_lshlrev_b32 v3, 16, v3
    v_mul_f32 v3, {NLOG2E:#x}, v3
    ds_write_b32 v4, v3
L_swc:
    """)
    poll2(a, "b")
    a(f"""
    s_waitcnt vmcnt(0) lgkmcnt(0)
    s_barrier
    s_mul_i32 s20, s5, {BN}
    s_mov_b32 s21, {E}
    s_movk_i32 s22, {BN}
    v_mov_b32 v2, v0
    s_mov_b32 s18, 0
L_se:
    v_lshlrev_b32 v3, 2, v2
    v_lshlrev_b32 v4, 3, v2
    buffer_load_dword v5, v3, {R(SDST)}, 0 offen
    v_cmp_gt_u32 s[24:25], s21, v2
    s_waitcnt vmcnt(0)
    v_subrev_u32 v5, s20, v5
    v_cmp_gt_u32 vcc, s22, v5
    s_and_b64 exec, vcc, s[24:25]
    s_cbranch_execz L_sn
    buffer_load_dword v6, v3, {R(SSRC)}, 0 offen
    buffer_load_dwordx2 v[8:9], v4, {R(SEA)}, 0 offen
    v_lshlrev_b32 v7, 4, v5
    v_add_u32 v7, {AU}, v7
    v_lshlrev_b32 v14, 8, v5
    v_add_u32 v14, {ACC}, v14
    v_mov_b32 v15, {WCF}
    s_mov_b32 s19, 0
    s_waitcnt vmcnt(0)
    v_lshlrev_b32 v6, 7, v6
    v_lshlrev_b32 v10, 16, v8
    v_and_b32 v11, 0xffff0000, v8
    v_lshlrev_b32 v12, 16, v9
    v_and_b32 v13, 0xffff0000, v9
L_sc:
    buffer_load_dwordx4 v[16:19], v6, {R(STABW)}, s19 offen sc1
    ds_read_b128 v[20:23], v7
    ds_read_b128 v[24:27], v15
    ds_read_b128 v[28:31], v15 offset:16
    ds_read_b128 v[32:35], v15 offset:32
    ds_read_b128 v[36:39], v15 offset:48
    s_waitcnt vmcnt(0) lgkmcnt(0)
    """)
    for r in range(4):
        a(f"""
        v_lshlrev_b32 v40, 16, v{16+r}
        v_lshlrev_b32 v41, 16, v{20+r}
        v_add_f32 v40, v40, v41
        v_fmac_f32 v40, v10, v{24+r}
        v_fmac_f32 v40, v11, v{28+r}
        v_fmac_f32 v40, v12, v{32+r}
        v_fmac_f32 v40, v13, v{36+r}
        v_exp_f32 v40, v40
        s_nop 0
        v_add_f32 v40, 1.0, v40
        v_rcp_f32 v40, v40
        s_nop 0
        v_mul_f32 v41, v40, v{16+r}
        ds_add_f32 v14, v40 offset:{4*r}
        ds_add_f32 v14, v41 offset:{128+4*r}
        """)
    a(f"""
    v_add_u32 v7, {AUS}, v7
    v_add_u32 v14, 16, v14
    v_add_u32 v15, 64, v15
    s_add_u32 s19, s19, 16
    s_cmp_lt_u32 s19, 128
    s_cbranch_scc1 L_sc
L_sn:
    s_mov_b64 exec, -1
    v_add_u32 v2, 1024, v2
    s_add_u32 s18, s18, 1
    s_cmp_lt_u32 s18, {(E+1023)//1024}
    s_cbranch_scc1 L_se
    s_waitcnt lgkmcnt(0)
    s_barrier
    s_mul_i32 s20, s5, {BN*256}
    s_lshl_b32 s19, s4, 6
    s_add_u32 s20, s20, s19
    v_mov_b32 v2, v0
    s_mov_b32 s18, 0
L_so:
    v_cmp_gt_u32 vcc, {BN*8}, v2
    s_mov_b64 exec, vcc
    s_cbranch_execz L_fin
    v_lshrrev_b32 v3, 3, v2
    v_and_b32 v4, 7, v2
    v_lshlrev_b32 v5, 8, v3
    v_lshl_add_u32 v6, v4, 3, v5
    buffer_load_dwordx2 v[8:9], v6, {R(SX)}, s20 offen
    v_lshl_add_u32 v5, v4, 4, v5
    v_add_u32 v5, {ACC}, v5
    ds_read_b128 v[16:19], v5
    ds_read_b128 v[20:23], v5 offset:128
    v_mul_u32_u24 v7, {AUS}, v4
    v_lshl_add_u32 v7, v3, 4, v7
    v_add_u32 v7, {AU}, v7
    ds_read_b128 v[24:27], v7
    s_waitcnt vmcnt(0) lgkmcnt(0)
    v_lshlrev_b32 v10, 16, v8
    v_and_b32 v11, 0xffff0000, v8
    v_lshlrev_b32 v12, 16, v9
    v_and_b32 v13, 0xffff0000, v9
    """)
    for r in range(4):
        a(f"""
        v_add_f32 v{16+r}, {EPS:#x}, v{16+r}
        v_rcp_f32 v{16+r}, v{16+r}
        s_nop 0
        v_fmac_f32 v{24+r}, v{16+r}, v{20+r}
        v_max_f32 v{24+r}, 0, v{24+r}
        v_add_f32 v{24+r}, v{24+r}, v{10+r}
        """)
    a(f"""
    v_cvt_pk_bf16_f32 v8, v24, v25
    v_cvt_pk_bf16_f32 v9, v26, v27
    buffer_store_dwordx2 v[8:9], v6, {R(SOUT)}, s20 offen
    v_add_u32 v2, 1024, v2
    s_add_u32 s18, s18, 1
    s_cmp_lt_u32 s18, 4
    s_cbranch_scc1 L_so
    """)

def fin(a):
    a("L_fin:")
    if a.prof:
        a("s_mov_b64 exec, -1\ns_waitcnt vmcnt(0)")
        a.stamp(11)
        a(f"""
        v_writelane_b32 v126, s84, 0
        s_memtime s[88:89]
        s_waitcnt lgkmcnt(0)
        s_sub_u32 s88, s88, s86
        v_writelane_b32 v126, s88, 31
        s_lshl_b32 s18, s2, 11
        s_lshl_b32 s19, s3, 7
        s_add_u32 s18, s18, s19
        s_add_u32 s18, s18, {PROFOFF}
        v_lshlrev_b32 v3, 2, v1
        s_mov_b32 exec_lo, -1
        s_mov_b32 exec_hi, 0
        buffer_store_dword v126, v3, {R(SSEG)}, s18 offen
        """)
        a("; STAMPS " + ",".join(["start"] + [str(x) for x in a.names]))
    a("L_end:\ns_endpgm")

def build(D=8, prof=False, force_slow=False, opt=()):
    a = G(D, prof, force_slow, opt)
    prologue(a); phase_p(a); phase_g(a); phase_s(a); phase_m(a); slow(a); fin(a)
    errs = hz.check(a.L)
    for e in errs: print("WARN", e, file=sys.stderr)
    ref = open(f"cdna_kernels/{NAME}.s.ref").read().split('\n')
    head = [l for l in ref if l.startswith(';') and '@launch' not in l]
    out = head + [f"; @launch grid=(256,1,1) block=(1024,1,1) lds={LDS_SIZE}",
        '.amdgcn_target "amdgcn-amd-amdhsa--gfx950"', '.text', f'.globl {NAME}_kernel', '.p2align 8',
        f'.type {NAME}_kernel,@function', f'{NAME}_kernel:'] + a.L + [
        '.section .rodata,"a"', '.p2align 6', f'.amdhsa_kernel {NAME}_kernel',
        '  .amdhsa_next_free_vgpr 128', '  .amdhsa_next_free_sgpr 102', '  .amdhsa_accum_offset 128',
        '  .amdhsa_group_segment_fixed_size 0', '  .amdhsa_kernarg_size 96', '  .amdhsa_user_sgpr_count 2',
        '  .amdhsa_user_sgpr_kernarg_segment_ptr 1', '  .amdhsa_system_sgpr_workgroup_id_x 1', '.end_amdhsa_kernel', '']
    return '\n'.join(out)

if __name__ == '__main__':
    ap = argparse.ArgumentParser()
    ap.add_argument('-o', default=f"cdna_kernels/{NAME}.s")
    ap.add_argument('-D', type=int, default=8)
    ap.add_argument('--prof', action='store_true')
    ap.add_argument('--slow', action='store_true')
    ap.add_argument('--opt', default='')
    x = ap.parse_args()
    open(x.o, 'w').write(build(x.D, x.prof, x.slow, x.opt.split(',')))
```

```python
import sys, struct, argparse
import hz

NAME = "standalone__edge_featured_mpnn_gatedgcn__graph"
N, E = 25000, 400000
BN = 392
CH = 1564
MARK = 0x800007FC
DUMMY = 25100
OVF = 8 << 20
FL2 = 7 << 20
TABOFF = 16 << 20
TABSL = 25600 * 128
PROFOFF = 64 << 20
PCNT, HIST, LEN, FLAG, PC1, OVC, PC3, XGO, PC2, F1, WCNT, XL, NONCE, TRASH, PERM, CNT, WCL = 0, 256, 512, 768, 772, 776, 780, 784, 788, 792, 796, 800, 808, 816, 1024, 2048, 3712
XD0, XD1 = F1, 820
TAGM = 0xF803
RETRY = 2048
XT = 4096
WL = XT + BN * 256
IMG = WL + 32768
OVL = IMG + 24576
LDS_SIZE = 163840
AUS = 6288
AU = LDS_SIZE - 8 * AUS
STG = WL
EALO = 4096
EASZ = 34816
EAHI = EALO + EASZ
ELL = EAHI + EASZ
ROWCAP = 1008
ZSLOT = 32768 + 63 * 4
ACC = 4096
WCF = WL
assert ELL + 32768 <= AU and STG + 8192 <= AU and OVL + 1024 <= LDS_SIZE
NLOG2E = struct.unpack('<I', struct.pack('<f', -1.4426950408889634))[0]
KS = 48
def f2u(x): return struct.unpack('<I', struct.pack('<f', x))[0]
EPS = struct.unpack('<I', struct.pack('<f', 1e-6))[0]

class G:
    def __init__(s, D=8, prof=False, force_slow=False, opt=()):
        s.opt = set(opt); s.pair = 'pair' in opt; s.XE = ([int(o[1:]) for o in opt if o[:1] == 'X'] + [0])[0]; s.EE = ([int(o[1:]) for o in opt if o[:1] == 'E'] + [0])[0]; s.YE = ([int(o[1:]) for o in opt if o[:1] == 'Y'] + [0])[0]; s.HD = ([int(o[1:]) for o in opt if o[:1] == 'H'] + [0])[0]; s.T = ([int(o[1:]) for o in opt if o[:1] == 'T'] + [0])[0]
        s.L = []; s.D = D; s.prof = prof; s.force_slow = force_slow; s.nst = 0; s.names = []; s.sreg = 15
    def __call__(s, txt):
        for l in txt.strip('\n').split('\n'):
            l = l.strip()
            if l: s.L.append(('' if l.endswith(':') else '    ') + l)
    def srd(s, d, p, n, extra1=None):
        s(f"s_mov_b32 s{d}, s{p}")
        if extra1 is None: s(f"s_mov_b32 s{d+1}, s{p+1}")
        else: s(f"s_or_b32 s{d+1}, s{p+1}, {extra1:#x}")
        s(f"s_mov_b32 s{d+2}, {n:#x}\ns_mov_b32 s{d+3}, 0x20000")
    def stamp(s, k):
        if s.prof:
            s.names.append(k)
            s(f"s_memrealtime s[100:101]\ns_waitcnt lgkmcnt(0)\nv_writelane_b32 v{s.sreg}, s100, {len(s.names)}")
    def scan(s, v):
        for m in ("row_shr:1 row_mask:0xf bank_mask:0xf bound_ctrl:0", "row_shr:2 row_mask:0xf bank_mask:0xf bound_ctrl:0",
                  "row_shr:4 row_mask:0xf bank_mask:0xf bound_ctrl:0", "row_shr:8 row_mask:0xf bank_mask:0xf bound_ctrl:0",
                  "row_bcast:15 row_mask:0xa bank_mask:0xf", "row_bcast:31 row_mask:0xc bank_mask:0xf"):
            s(f"s_nop 1\nv_add_u32_dpp v{v}, v{v}, v{v} {m}")

SX, SEA, SSRC, SDST, SW, SOUT, SDBG, SSEG, STABW, STAB, SWC = 40, 44, 48, 52, 56, 60, 64, 68, 72, 76, 80
def R(d): return f"s[{d}:{d+3}]"

def w2(a, lab, k, extra):
    a(f"s_cbranch_scc1 {lab}\ns_waitcnt vmcnt({k})\n{lab}:\ns_waitcnt vmcnt({k+extra})")

def srds(a):
    a.srd(SOUT, 34, N*256); a.srd(SDBG, 36, 256)
    a.srd(SSEG, 38, (PROFOFF + (1 << 20)) if a.prof else TABOFF)
    a(f"""
    s_mul_i32 s9, s4, {TABSL}
    s_add_u32 s9, s9, {TABOFF}
    s_add_u32 s12, s38, s9
    s_addc_u32 s13, s39, 0
    """)
    a.srd(STABW, 12, TABSL); a.srd(STAB, 12, 25600, extra1=128 << 16)

def xdma(a, lab):
    a(f"""
    s_mul_i32 s14, s5, {BN*256}
    s_lshl_b32 s15, s3, 13
    s_add_u32 s14, s14, s15
    s_add_u32 m0, s15, {XT}
    v_xor_b32 v17, 64, v16
    v_xor_b32 v18, 0x80, v16
    v_xor_b32 v19, 0xc0, v16
    s_cmp_eq_u32 s3, 12
    buffer_load_dwordx4 v16, {R(SX)}, s14 offen lds
    buffer_load_dwordx4 v17, {R(SX)}, s14 offen offset:1024 lds
    s_cbranch_scc1 {lab}
    buffer_load_dwordx4 v18, {R(SX)}, s14 offen offset:2048 lds
    buffer_load_dwordx4 v19, {R(SX)}, s14 offen offset:3072 lds
    s_add_u32 m0, s15, {XT+4096}
    s_add_u32 s14, s14, 4096
    buffer_load_dwordx4 v16, {R(SX)}, s14 offen lds
    buffer_load_dwordx4 v17, {R(SX)}, s14 offen offset:1024 lds
    buffer_load_dwordx4 v18, {R(SX)}, s14 offen offset:2048 lds
    buffer_load_dwordx4 v19, {R(SX)}, s14 offen offset:3072 lds
{lab}:
    """)

def spin(a, lab, vaddr, off, cmp, val, vt=32):
    a(f"""
{lab}:
    ds_read_b32 v{vt}, v{vaddr} offset:{off}
    s_waitcnt lgkmcnt(0)
    v_readfirstlane_b32 s18, v{vt}
    s_cmp_{cmp}_u32 s18, {val}
    s_cbranch_scc1 {lab}d
    s_sleep 1
    s_branch {lab}
{lab}d:
    """)

def allsrds(a):
    a.srd(SDST, 22, E*4); a.srd(SSRC, 20, E*4); a.srd(SEA, 18, E*8)
    a.srd(SWC, 28, 1024)
    srds(a)

def prologue(a):
    a(f"""
    s_cmp_ge_u32 s2, 256
    s_cbranch_scc1 L_end
    s_load_dwordx16 s[16:31], s[0:1], 0
    s_load_dwordx8 s[32:39], s[0:1], 64
    """)
    if a.prof: a("s_memrealtime s[84:85]\ns_memtime s[92:93]\nv_mov_b32 v15, 0")
    a(f"""
    v_lshrrev_b32 v2, 6, v0
    v_and_b32 v1, 63, v0
    v_lshlrev_b32 v4, 4, v0
    v_readfirstlane_b32 s3, v2
    v_mov_b32 v3, 0
    s_lshl_b32 s9, s2, 4
    s_add_u32 s9, s9, s3
    s_cmp_lg_u32 s9, 14
    s_cbranch_scc1 L_i0
    s_memrealtime s[12:13]
    s_waitcnt lgkmcnt(0)
    s_mul_i32 s14, s12, 0x9E3779B1
    s_mul_i32 s12, s12, 0x85EBCA6B
    s_xor_b32 s13, s13, s12
    s_bitset1_b32 s13, 31
    v_mov_b32 v8, s14
    v_mov_b32 v9, s13
    s_mov_b64 exec, 1
    global_store_dwordx2 v3, v[8:9], s[36:37] offset:136 sc1
    s_mov_b64 exec, -1
L_i0:
    v_lshrrev_b32 v6, 3, v0
    v_mul_u32_u24 v6, 384, v6
    v_and_b32 v7, 7, v0
    v_lshl_add_u32 v6, v7, 4, v6
    v_add_u32 v6, {IMG+256}, v6
    v_subrev_u32 v7, {512*16}, v4
    s_cmp_lt_u32 s3, 8
    s_cselect_b32 s9, {MARK:#x}, 0
    v_mov_b32 v20, s9
    v_mov_b32 v21, s9
    v_mov_b32 v22, s9
    v_mov_b32 v23, s9
    s_cbranch_scc1 L_i1
    v_mov_b32 v6, v7
L_i1:
    s_cmp_ge_u32 s3, 12
    s_cbranch_scc1 L_i2
    ds_write_b128 v6, v[20:23]
L_i2:
    s_and_b32 s4, s2, 3
    s_lshr_b32 s5, s2, 3
    s_bfe_u32 s6, s2, 0x10002
    s_lshl_b32 s6, s6, 5
    s_add_u32 s5, s5, s6
    v_subrev_u32 v3, {320*16}, v4
    v_lshlrev_b32 v4, 1, v3
    s_mul_i32 s6, s2, {CH*4}
    s_lshl_b32 s7, s6, 1
    s_movk_i32 s8, {CH*4}
    s_cmp_eq_u32 s2, 255
    s_cselect_b32 s8, {(E-255*CH)*4}, s8
    v_cmp_gt_u32 s[10:11], s8, v3
    v_lshrrev_b32 v5, 2, v1
    v_and_b32 v6, 3, v1
    v_lshlrev_b32 v6, 4, v6
    v_lshl_or_b32 v5, v5, 8, v6
    v_lshrrev_b32 v6, 4, v1
    v_and_b32 v7, 15, v1
    v_xor_b32 v16, v7, v6
    v_lshlrev_b32 v6, 8, v6
    v_lshl_or_b32 v16, v16, 4, v6
    v_mov_b32 v2, 1
    v_mov_b32 v30, {FLAG}
    s_cmp_lt_u32 s3, 5
    s_cbranch_scc1 L_i3
    s_setprio 2
L_i3:
    s_waitcnt lgkmcnt(0)
    s_barrier
    """)
    a.srd(SX, 16, N*256)
    a(f"""
    s_cmp_ge_u32 s3, 5
    s_cbranch_scc1 L_l0
    s_cmp_eq_u32 s3, 4
    s_cbranch_scc1 L_e1
    s_cmp_eq_u32 s3, 0
    s_cselect_b64 s[12:13], s[26:27], s[32:33]
    s_cmp_eq_u32 s3, 2
    s_cselect_b64 s[12:13], s[24:25], s[12:13]
    s_cmp_eq_u32 s3, 3
    s_cselect_b64 s[12:13], s[30:31], s[12:13]
    """)
    a.srd(SW, 12, 32768)
    a(f"""
    s_lshl_b32 s15, s3, 13
    s_lshl_b32 s14, s4, 6
    """)
    for q in range(8):
        if q % 4 == 0: a(f"s_add_u32 m0, s15, {WL + q*1024}")
        a(f"s_add_u32 s12, s14, {q*4096 - (q%4)*1024}\nbuffer_load_dwordx4 v5, {R(SW)}, s12 offen offset:{(q%4)*1024} lds")
    a("L_e1:")
    if a.T:
        allsrds(a)
        a(f"""
        s_cmp_lt_u32 s3, {a.T}
        s_cbranch_scc1 L_e2
        s_mov_b64 exec, 1
        s_waitcnt vmcnt(0)
        ds_add_u32 v30, v2 offset:{WCNT-FLAG}
        s_mov_b64 exec, -1
        s_branch L_xw
L_e2:
        """)
    if a.EE:
        allsrds(a)
        a(f"""
        s_cmp_lt_u32 s3, {a.EE}
        s_cbranch_scc1 L_e3
        s_mov_b64 exec, 1
        s_waitcnt vmcnt(0)
        ds_add_u32 v30, v2 offset:{WCNT-FLAG}
        s_mov_b64 exec, -1
        s_mov_b32 s19, 2
        s_branch L_xg
L_e3:
        """)
    xdma(a, "L_nx1")
    if not a.T and not a.EE: allsrds(a)
    a(f"""
    s_mov_b64 exec, 1
    s_waitcnt vmcnt(8)
    ds_add_u32 v30, v2 offset:{WCNT-FLAG}
    s_mov_b64 exec, -1
    s_branch L_g
L_l0:
    s_cmp_ge_u32 s3, 13
    s_cbranch_scc1 L_h0
    """)
    a.srd(SDST, 22, E*4); a.srd(SSRC, 20, E*4); a.srd(SEA, 18, E*8)
    a(f"""
    s_cmp_eq_u64 s[10:11], 0
    s_cbranch_scc1 L_noedge
    s_mov_b64 exec, s[10:11]
    buffer_load_dwordx4 v[8:11], v3, {R(SDST)}, s6 offen
    buffer_load_dwordx4 v[40:43], v3, {R(SSRC)}, s6 offen
    buffer_load_dwordx4 v[32:35], v4, {R(SEA)}, s7 offen
    buffer_load_dwordx4 v[36:39], v4, {R(SEA)}, s7 offen offset:16
    s_mov_b64 exec, -1
L_noedge:
    """)
    a.srd(SWC, 28, 1024)
    srds(a)

def tags(a):
    a(f"""
    v_and_b32 v45, 7, v1
    v_cmp_eq_u32 vcc, 0, v45
    v_lshlrev_b32 v45, 2, v45
    v_lshrrev_b64 v[46:47], v45, v[46:47]
    v_mov_b32 v44, {TAGM:#x}
    v_cndmask_b32 v44, v44, 2, vcc
    v_and_b32 v40, v44, v46
    v_lshrrev_b32 v41, 5, v46
    v_lshrrev_b32 v42, 10, v46
    v_lshrrev_b32 v43, 15, v46
    v_and_b32 v41, {TAGM:#x}, v41
    v_and_b32 v42, {TAGM:#x}, v42
    v_and_b32 v43, {TAGM:#x}, v43
    """)

def phase_p(a):
    M = ("s[12:13]", "s[14:15]", "s[20:21]", "s[22:23]")
    a(f"""
    s_cmp_eq_u64 s[10:11], 0
    s_cbranch_scc1 L_p_done
    s_mov_b64 exec, s[10:11]
    s_mov_b32 s16, 42800
    s_mov_b32 s17, {(-MARK) & 0xffffffff:#x}
    s_movk_i32 s18, 384
    v_mov_b32 v3, {IMG}
    s_waitcnt vmcnt(3)
    """)
    for j in range(4): a(f"v_mul_u32_u24 v{44+j}, s16, v{8+j}")
    for j in range(4): a(f"v_lshrrev_b32 v{44+j}, 24, v{44+j}")
    for j in range(4): a(f"v_lshlrev_b32 v{48+j}, 2, v{44+j}\nds_add_rtn_u32 v{20+j}, v{48+j}, v2 offset:{PCNT}")
    for j in range(4):
        a(f"""
        v_mul_u32_u24 v{48+j}, {BN*4}, v{44+j}
        v_lshl_add_u32 v{8+j}, v{8+j}, 2, s17
        v_sub_u32 v{8+j}, v{8+j}, v{48+j}
        v_mad_u32_u24 v{48+j}, v{44+j}, s18, v3
        """)
    a("s_waitcnt vmcnt(2)")
    for j in range(4): a(f"v_lshl_add_u32 v{8+j}, v{40+j}, 16, v{8+j}")
    for j in range(4):
        a(f"""
        s_waitcnt lgkmcnt({3-j})
        v_add_u32 v{52+j}, v{20+j}, v{44+j}
        v_cmp_gt_u32 {M[j]}, 32, v{20+j}
        v_and_b32 v{52+j}, 31, v{52+j}
        v_lshl_add_u32 v{52+j}, v{52+j}, 2, v{48+j}
        """)
    for j in range(4): a(f"s_mov_b64 exec, {M[j]}\nds_add_u32 v{52+j}, v{8+j} offset:256")
    for j in range(4):
        if j % 2 == 0: a(f"s_waitcnt vmcnt({1 - j//2})")
        a(f"s_mov_b64 exec, {M[j]}\nds_write2_b32 v{52+j}, v{32+2*j}, v{33+2*j} offset0:0 offset1:32")
    for j in range(4):
        rk, bk, base, sd, lo, hi = 20+j, 44+j, 48+j, 8+j, 32+2*j, 33+2*j
        a(f"""
        s_andn2_b64 exec, s[10:11], {M[j]}
        s_cbranch_execz L_po{j}
        ds_add_rtn_u32 v28, v30, v2 offset:{OVC-FLAG}
        v_mov_b32 v24, v{lo}
        v_mov_b32 v25, v{hi}
        v_add_u32 v26, {MARK:#x}, v{sd}
        v_lshlrev_b32 v27, 9, v{bk}
        v_lshl_add_u32 v27, v{rk}, 4, v27
        v_mov_b32 v29, 0x800
        s_waitcnt lgkmcnt(0)
        v_max_u32 v31, v28, v{rk}
        v_cmp_lt_u32 vcc, 62, v31
        v_lshlrev_b32 v28, 4, v28
        v_add_u32 v28, {OVL}, v28
        s_andn2_b64 s[24:25], exec, vcc
        s_mov_b64 exec, vcc
        ds_or_b32 v30, v2
        s_mov_b64 exec, s[24:25]
        ds_add_u32 v{base}, v29 offset:256
        ds_write_b128 v28, v[24:27]
L_po{j}:
        """)
    a(f"""
L_p_done:
    s_mov_b64 exec, 1
    ds_add_u32 v30, v2 offset:{PC1-FLAG}
    s_mov_b64 exec, -1
    s_setprio 0
    """)
    a.stamp('p_w')
    if 'xpf' in a.opt: a(f"""
    s_cmp_lg_u32 s3, 12
    s_cbranch_scc1 L_xpf
    s_mul_i32 s14, s5, {BN*256}
    s_mul_i32 s15, s4, {232*64}
    s_add_u32 s14, s14, s15
    s_add_u32 s14, s14, {160*256}
    s_add_u32 s15, s14, {116*64}
    v_lshlrev_b32 v8, 6, v1
    s_mov_b32 exec_hi, {(1 << 26) - 1:#x}
    buffer_load_dword v9, v8, {R(SX)}, s14 offen
    buffer_load_dword v9, v8, {R(SX)}, s14 offen offset:{58*64}
    buffer_load_dword v9, v8, {R(SX)}, s15 offen
    buffer_load_dword v9, v8, {R(SX)}, s15 offen offset:{58*64}
    s_mov_b32 exec_hi, -1
    s_waitcnt vmcnt(0)
L_xpf:
    """)
    if a.XE: a(f"s_cmp_lt_u32 s3, {a.XE}\ns_cbranch_scc1 L_xgd")
    if a.YE: a(f"s_cmp_lt_u32 s3, {a.YE}\ns_cselect_b32 s19, 2, 3")
    if 'noxgo' not in a.opt: spin(a, "L_xg", 30, XGO-FLAG, "ge", "s19" if a.YE else 3)
    if a.T:
        a(f"L_xw:\ns_sub_u32 s19, s3, {a.T-1}\ns_cselect_b32 s19, 0, s19")
        spin(a, "L_xt", 30, XL-FLAG, "ge", "s19")
    a.stamp('xgo')
    xdma(a, "L_nx2")
    a(f"""
    s_branch L_g
L_h0:
    """)
    allsrds(a)
    a(f"""
    v_lshlrev_b32 v4, 4, v1
    s_mul_i32 s16, s2, 24576
    v_mov_b32 v3, 0
    s_movk_i32 s17, 384
    s_cmp_eq_u32 s3, 13
    s_cbranch_scc1 L_h13
    v_lshrrev_b32 v8, 4, v1
    v_lshlrev_b32 v9, 4, v7
    v_mad_u32_u24 v8, v8, s17, v9
    s_cmp_lg_u32 s3, 15
    s_cbranch_scc1 L_h2
    v_add_u32 v8, {32*384}, v8
    v_lshl_or_b32 v6, v7, 2, v6
    s_movk_i32 m0, {WCL}
    s_lshl_b32 s9, s4, 6
    buffer_load_dword v6, {R(SWC)}, s9 offen lds
L_h2:
    v_add_u32 v9, {IMG}, v8
    s_add_u32 s17, s16, {3*1536}
    s_add_u32 s19, s16, {6*1536}
    s_setprio 0
    """)
    spin(a, "L_hp", 30, PC1-FLAG, "ge", 8)
    a("s_setprio 3")
    a.stamp('b1')
    for i in range(8): a(f"ds_read_b128 v[{64+4*i}:{67+4*i}], v9 offset:{i*1536}")
    for i in range(8):
        a(f"s_waitcnt lgkmcnt({7-i})\nbuffer_store_dwordx4 v[{64+4*i}:{67+4*i}], v8, {R(SSEG)}, s{(16,17,19)[i//3]} offen offset:{(i%3)*1536} sc1")
    a(f"""
    s_mov_b64 exec, 1
    ds_add_u32 v30, v2 offset:{XGO-FLAG}
    """)
    a.stamp('imi')
    a(f"""
    s_waitcnt vmcnt(0)
    ds_add_u32 v30, v2 offset:{PC2-FLAG}
    s_branch L_pso
L_h13:
    v_lshrrev_b32 v8, 3, v1
    v_and_b32 v9, 0x70, v4
    v_mad_u32_u24 v8, v8, s17, v9
    v_add_u32 v9, {IMG+256}, v8
    v_add_u32 v5, {OVL}, v4
    s_mov_b32 s18, 0x40000
L_tag:
    buffer_load_dwordx2 v[46:47], v3, {R(SDBG)}, 0 offen offset:136 sc1
    s_waitcnt vmcnt(0)
    v_cmp_eq_u32 vcc, 0, v47
    s_sub_u32 s18, s18, 1
    s_cbranch_scc1 L_tagd
    s_cbranch_vccz L_tagd
    s_sleep 1
    s_branch L_tag
L_tagd:
    v_or_b32 v47, 0x80000000, v47
    ds_write_b64 v30, v[46:47] offset:{NONCE-FLAG}
    """)
    a.stamp('tag')
    tags(a)
    a("s_setprio 0")
    spin(a, "L_hq", 30, PC1-FLAG, "ge", 8)
    a(f"""
    s_setprio 3
    ds_read_b96 v[36:38], v30
    ds_read_b128 v[24:27], v5
    """)
    for i in range(8): a(f"ds_read_b128 v[{64+4*i}:{67+4*i}], v9 offset:{i*3072}")
    a(f"""
    s_lshl_b32 s19, s2, 15
    s_add_u32 s19, s19, {OVF-512}
    s_waitcnt lgkmcnt(8)
    v_cmp_gt_u32 s[20:21], v38, v1
    v_cmp_eq_u32 vcc, 0, v36
    v_and_b32 v36, 1, v36
    v_bfi_b32 v36, v44, 0, v36
    v_or_b32 v40, v40, v36
    s_and_b64 exec, s[20:21], vcc
    s_cbranch_scc0 L_psn
    buffer_store_dwordx4 v[24:27], v27, {R(SSEG)}, s19 offen sc1
L_psn:
    s_mov_b64 exec, 1
    ds_add_u32 v30, v2 offset:{(TRASH if 'xsd' in a.opt else XGO)-FLAG}
    s_mov_b64 exec, -1
    """)
    for i in range(8):
        a(f"s_waitcnt lgkmcnt({8-i})")
        for j in range(4): a(f"v_xor_b32 v{64+4*i+j}, v{64+4*i+j}, v{40+j}")
    a("s_waitcnt vmcnt(0)")
    spin(a, "L_hr", 30, PC2-FLAG, "ge", 2)
    for i in range(8):
        a(f"buffer_store_dwordx4 v[{64+4*i}:{67+4*i}], v8, {R(SSEG)}, s16 offen offset:256 sc1")
        if i < 7: a("s_add_u32 s16, s16, 3072")
    if 'xsd' in a.opt: a(f"s_mov_b64 exec, 1\nds_add_u32 v30, v2 offset:{XGO-FLAG}")
    a(f"""
L_pso:
    s_sub_u32 s17, s3, 8
    """)
    a.stamp('sig1')
    if a.HD and 'eh' not in a.opt: spin(a, "L_hd", 30, XD0-FLAG, "ge", a.HD)
    a(f"""
    s_branch L_sw
L_g:
    """)

SD = 48
ACCS = (48, 64, 80, 96)
def phase_g(a):
    a(f"""
    v_and_b32 v20, 31, v1
    v_lshrrev_b32 v21, 5, v1
    s_lshl_b32 s18, s3, 13
    s_add_u32 s18, s18, {XT}
    v_and_b32 v22, 15, v1
    v_xor_b32 v22, v22, v21
    v_lshlrev_b32 v22, 4, v22
    v_lshl_or_b32 v22, v20, 8, v22
    v_add_u32 v4, s18, v22
    v_bfe_u32 v22, v1, 2, 2
    v_lshl_add_u32 v22, v21, 3, v22
    v_lshlrev_b32 v22, 6, v22
    v_and_b32 v23, 16, v1
    v_lshl_add_u32 v22, v23, 1, v22
    v_and_b32 v23, 3, v1
    v_lshl_add_u32 v22, v23, 3, v22
    v_add_u32 v5, {WL}, v22
    v_bfe_u32 v22, v1, 1, 3
    v_xor_b32 v22, v22, v21
    v_lshlrev_b32 v22, 4, v22
    v_lshl_or_b32 v22, v20, 7, v22
    v_add_u32 v6, s18, v22
    v_lshl_add_u32 v7, v1, 4, s18
    v_and_b32 v22, 7, v1
    v_lshrrev_b32 v23, 4, v1
    v_xor_b32 v22, v22, v23
    v_lshlrev_b32 v22, 4, v22
    v_lshrrev_b32 v23, 3, v1
    v_lshl_or_b32 v8, v23, 7, v22
    v_xor_b32 v9, 64, v8
    v_mul_u32_u24 v22, {AUS}, v21
    v_lshl_add_u32 v22, v20, 4, v22
    s_lshl_b32 s18, s3, 9
    s_add_u32 s18, s18, {AU}
    v_add_u32 v10, s18, v22
    v_xor_b32 v11, 32, v6
    v_xor_b32 v12, 64, v6
    v_xor_b32 v13, 0x60, v6
    s_mul_i32 s19, s5, {BN*128}
    s_lshl_b32 s18, s3, 12
    s_add_u32 s19, s19, s18
    s_mov_b32 s20, {NLOG2E:#x}
    s_mov_b32 s21, {NLOG2E:#x}
    s_mov_b32 s22, 0x07060100
    s_mov_b32 s23, 0x07060302
    s_cmp_eq_u32 s3, 12
    s_cselect_b32 s26, 0xff, -1
    s_cselect_b32 s27, 0xff, -1
    """)
    for ks in range(1, 8): a(f"v_xor_b32 v{48+ks}, {ks*32:#x}, v4")
    Q = []
    def ds(txt, tag=None):
        a(txt); Q.append(tag)
    def wait(tag):
        if tag in Q:
            i = max(k for k, t in enumerate(Q) if t == tag)
            n = len(Q) - 1 - i
            assert n <= 15
            a(f"s_waitcnt lgkmcnt({n})")
            del Q[:i+1]
    def frag(t):
        p, ks, mm = t >> 4, (t >> 1) & 7, t & 1
        r = 112 + 4*(t & 3); o = (2*p+mm)*8192 + ks*1024
        ds(f"ds_read_b64_tr_b16 v[{r}:{r+1}], v5 offset:{o}", ('f', t))
        ds(f"ds_read_b64_tr_b16 v[{r+2}:{r+3}], v5 offset:{o+256}", ('f', t))
    spin(a, "L_wc", 30, WCNT-FLAG, "ge", 5)
    for t in range(4): frag(t)
    a("s_waitcnt vmcnt(0) lgkmcnt(0)"); Q.clear()
    if a.T:
        a("s_mov_b64 exec, 1"); ds(f"ds_add_u32 v30, v2 offset:{XL-FLAG}"); a("s_mov_b64 exec, -1")
    a.stamp('xl')
    for ks in range(8): ds(f"ds_read_b128 v[{16+4*ks}:{19+4*ks}], v{4 if ks == 0 else 48+ks}", ('x', ks))
    def pack(B, V, i):
        b = B + 4*i; v = V + 4*i
        return [f"v_pk_mul_f32 v[{b}:{b+1}], v[{b}:{b+1}], s[20:21]", f"v_pk_mul_f32 v[{b+2}:{b+3}], v[{b+2}:{b+3}], s[20:21]",
                f"v_cvt_pk_bf16_f32 v{b}, v{b}, v{b+1}", f"v_cvt_pk_bf16_f32 v{b+1}, v{b+2}, v{b+3}",
                f"v_perm_b32 v{v}, v{v}, v{b}, s22", f"v_perm_b32 v{v+1}, v{v+1}, v{b}, s23",
                f"v_perm_b32 v{v+2}, v{v+2}, v{b+1}, s22", f"v_perm_b32 v{v+3}, v{v+3}, v{b+1}, s23"]
    ep = []
    for i in range(4):
        ep += [('v', x) for x in pack(48, 64, i)]
        ep += [('w', i)]
    ep += [('r', i) for i in range(4)] + [('s', i) for i in range(4)]
    def emit(e):
        k, x = e
        if k == 'v': a(x)
        elif k == 'w':
            a("s_mov_b64 exec, s[26:27]")
            ds(f"ds_write_b128 v{(6, 11, 12, 13)[x]}, v[{64+4*x}:{67+4*x}]")
            a("s_mov_b64 exec, -1")
        elif k == 'r': ds(f"ds_read_b128 v[{48+4*x}:{51+4*x}], v7 offset:{x*1024}", ('r', x))
        elif k == 's':
            wait(('r', x))
            if x: a(f"s_cbranch_scc1 L_gs{x}")
            a(f"buffer_store_dwordx4 v[{48+4*x}:{51+4*x}], v{8+(x&1)}, {R(STABW)}, s19 offen offset:{x*1024} sc1")
            if x: a(f"L_gs{x}:")
    a("s_cmp_eq_u32 s3, 12")
    for t in range(32):
        p, ks, mm = t >> 4, (t >> 1) & 7, t & 1
        wait(('f', t)); wait(('x', ks))
        d = ACCS[2*p+mm]; r = 112 + 4*(t & 3)
        c = "0" if ks == 0 else f"v[{d}:{d+15}]"
        a(f"v_mfma_f32_32x32x16_bf16 v[{d}:{d+15}], v[{r}:{r+3}], v[{16+4*ks}:{19+4*ks}], {c}")
        if t + 4 < 32: frag(t + 4)
        if t >= 18:
            n = 5 if ep and ep[0][0] in 'vw' else (4 if ep and ep[0][0] == 'r' else 1)
            for _ in range(n):
                if ep: emit(ep.pop(0))
    while ep: emit(ep.pop(0))
    a(f"""
    s_cselect_b32 s18, s5, 0
    v_mov_b32 v32, 0x7180
    v_mov_b32 v33, 0x7180
    v_mov_b32 v34, 0x7180
    v_mov_b32 v35, 0x7180
    v_lshlrev_b32 v12, 4, v1
    s_cmp_lg_u32 s18, 63
    s_cbranch_scc1 L_nodum
    s_mov_b32 s18, {DUMMY*128}
    buffer_store_dwordx4 v[32:35], v12, {R(STABW)}, s18 offen sc1
    buffer_store_dwordx4 v[32:35], v12, {R(STABW)}, s18 offen offset:1024 sc1
    buffer_store_dwordx4 v[32:35], v12, {R(STABW)}, s18 offen offset:2048 sc1
    buffer_store_dwordx4 v[32:35], v12, {R(STABW)}, s18 offen offset:3072 sc1
L_nodum:
    s_movk_i32 s18, {XD1}
    s_cmp_lt_u32 s3, 5
    s_cselect_b32 s18, {XD0}, s18
    s_cmp_lt_u32 s3, 9
    s_cselect_b32 s18, s18, {TRASH}
    v_mov_b32 v31, 1
    v_mov_b32 v30, s18
    s_mov_b64 exec, 1
    ds_add_u32 v30, v31
    s_mov_b64 exec, -1
    v_mov_b32 v30, {FLAG}
    """)
    for i in range(4):
        for x in pack(80, 96, i): a(x)
    a.stamp('gd')
    a(f"""
    s_mov_b32 s17, s3
    s_cmp_lt_u32 s3, 5
    s_cbranch_scc1 L_sw
    s_mov_b32 s16, 0
    s_sub_u32 s17, s3, 5
    """)
    consts(a, "L_c1", 30, PC2-FLAG)
    a("s_waitcnt vmcnt(0)")
    sig2(a, "L_sig2a", 30, PC3-FLAG)
    a.stamp('gdr')

def sig2(a, lab, flag, cntoff):
    a(f"""
    s_mov_b64 exec, 1
    ds_add_rtn_u32 v4, v{flag}, v31 offset:{cntoff}
    ds_read_b64 v[6:7], v{flag} offset:{cntoff+NONCE-PC3}
    s_lshl_b32 s18, s4, 9
    s_lshl_b32 s19, s5, 3
    s_add_u32 s18, s18, s19
    s_add_u32 s18, s18, {FL2}
    v_mov_b32 v3, 0
    s_waitcnt lgkmcnt(0)
    v_readfirstlane_b32 s19, v4
    s_cmp_lg_u32 s19, 12
    s_cbranch_scc1 {lab}
    buffer_store_dwordx2 v[6:7], v3, {R(SSEG)}, s18 offen sc1
{lab}:
    s_mov_b64 exec, -1
    """)

RK = 64
def segaddr(a):
    a(f"""
    v_lshrrev_b32 v2, 3, v1
    v_mul_u32_u24 v2, 24576, v2
    v_and_b32 v3, 7, v1
    v_lshl_add_u32 v2, v3, 4, v2
    s_mul_i32 s25, s17, {32*24576}
    s_mul_i32 s19, s5, 384
    s_add_u32 s25, s25, s19
    s_lshl_b32 s28, s17, 12
    v_mov_b32 v34, 1
    """)

def phase_s(a):
    segaddr(a)
    a(f"""
    v_and_b32 v78, {31 if 'dsp' in a.opt else 0}, v1
    v_lshlrev_b32 v78, 16, v78
    v_add_u32 v78, {(DUMMY << 16) | ZSLOT:#x}, v78
    v_lshl_add_u32 v80, s17, 6, v1
    s_movk_i32 s18, {BN}
    v_cmp_gt_u32 s[10:11], s18, v80
    v_lshlrev_b32 v64, 2, v80
    s_branch L_s1
L_sw:
    s_mov_b64 exec, -1
    s_mov_b32 s16, 1
    s_setprio 0
    """)
    segaddr(a)
    a(f"""
    v_mov_b32 v14, {PC3}
    s_add_u32 s31, s25, {1*8*24576}
    s_add_u32 s32, s25, {2*8*24576}
    s_add_u32 s33, s25, {3*8*24576}
    """)
    if a.HD and 'eh' in a.opt: spin(a, "L_hd", 14, XD0-PC3, "ge", a.HD)
    JD = ([int(o[1:]) for o in a.opt if o[:1] == 'J'] + [0])[0]
    if JD: spin(a, "L_jd", 14, XD1-PC3, "ge", JD)
    SQ = (25, 31, 32, 33)
    def sdl(q): a(f"buffer_load_dwordx4 v[{SD+4*q}:{SD+4*q+3}], v2, {R(SSEG)}, s{SQ[q]} offen offset:256 sc1")
    for q in range(4): sdl(q)
    a.stamp('sdi')
    consts(a, "L_c2", 14, PC2-PC3)
    a(f"""
L_nw:
    ds_read_b64 v[46:47], v14 offset:{NONCE-PC3}
    s_waitcnt lgkmcnt(0)
    v_readfirstlane_b32 s18, v47
    s_cmp_lg_u32 s18, 0
    s_cbranch_scc1 L_nwd
    s_sleep 1
    s_branch L_nw
L_nwd:
    """)
    tags(a)
    a(f"""
    v_mov_b32 v26, 0
    v_mov_b32 v3, 0
    v_lshlrev_b32 v38, 4, v1
    s_lshl_b32 s22, s17, 20
    s_lshl_b32 s27, s5, 9
    s_add_u32 s22, s22, s27
    s_add_u32 s22, s22, {OVF}
    s_mov_b64 s[6:7], -1
    s_mov_b64 s[8:9], -1
    s_mov_b64 s[10:11], -1
    s_mov_b64 s[12:13], -1
    s_mov_b32 s26, 0x0f0f0f0f
    s_mov_b32 s27, s26
    s_movk_i32 s21, {RETRY}
    s_mov_b32 s23, {TAGM:#x}
    s_cmp_ge_u32 s3, 5
    s_cbranch_scc1 L_sig2b
    s_waitcnt vmcnt(4)
    """)
    sig2(a, "L_sig2b", 14, 0)
    for j in range(0, 16, 2): a(f"v_mov_b64 v[{RK+j}:{RK+j+1}], 0")
    a(f"""
L_sv1:
    s_mov_b32 s20, 0
    s_waitcnt vmcnt(0)
    """)
    for q in range(4):
        d = SD + 4*q
        a(f"""
        s_and_b64 exec, s[{6+2*q}:{7+2*q}], s[{6+2*q}:{7+2*q}]
        s_cbranch_scc0 L_sq{q}
        v_xor_b32 v{d}, v{d}, v40
        v_xor_b32 v{d+1}, v{d+1}, v41
        v_xor_b32 v{d+2}, v{d+2}, v42
        v_xor_b32 v{d+3}, v{d+3}, v43
        v_and_b32 v45, v{d}, v44
        v_or3_b32 v46, v{d+1}, v{d+2}, v{d+3}
        v_and_or_b32 v45, v46, s23, v45
        v_cmp_ne_u32 vcc, 0, v45
        s_wqm_b64 s[{6+2*q}:{7+2*q}], vcc
        s_cbranch_scc0 L_sq{q}
        s_lshr_b64 s[14:15], s[{6+2*q}:{7+2*q}], 4
        s_or_b64 s[{6+2*q}:{7+2*q}], s[{6+2*q}:{7+2*q}], s[14:15]
        s_and_b64 s[{6+2*q}:{7+2*q}], s[{6+2*q}:{7+2*q}], s[26:27]
        s_lshl_b64 s[14:15], s[{6+2*q}:{7+2*q}], 4
        s_or_b64 s[{6+2*q}:{7+2*q}], s[{6+2*q}:{7+2*q}], s[14:15]
        s_mov_b64 exec, s[{6+2*q}:{7+2*q}]
        s_mov_b32 s20, 1
        """)
        sdl(q)
        a(f"L_sq{q}:")
    a(f"""
    s_mov_b64 exec, -1
    s_cmp_eq_u32 s20, 0
    s_cbranch_scc1 L_svd
    s_sub_u32 s21, s21, 1
    s_cbranch_scc0 L_sv1
    s_waitcnt vmcnt(0)
    v_mov_b32 v39, {FLAG}
    ds_or_b32 v39, v34
    """)
    for j in range(16): a(f"v_mov_b32 v{SD+j}, {MARK:#x}")
    a(f"""
L_svd:
    """)
    a.stamp('s_sd')
    a("v_bfe_u32 v45, v52, 11, 5\nv_bfe_u32 v46, v56, 11, 5\nv_bfe_u32 v47, v60, 11, 5\nv_bfe_u32 v36, v48, 11, 5")
    for q in range(1, 4):
        a(f"v_mov_b32_dpp v{44+q}, v{44+q} row_shr:{q} row_mask:0xf bank_mask:0xf bound_ctrl:0")
    a("v_or_b32 v36, v36, v45\nv_or3_b32 v36, v36, v46, v47")
    a(f"""
    v_or3_b32 v45, v48, v52, v56
    v_or_b32 v45, v45, v60
    v_cmp_ne_u32 s[14:15], 0, v36
    v_and_b32 v45, 1, v45
    v_mov_b32 v39, {FLAG}
    v_mov_b32 v28, 0
    v_mov_b32 v29, 0
    v_mov_b32 v30, {MARK:#x}
    s_mov_b32 s24, 0
    v_cmpx_ne_u32 vcc, 0, v45
    ds_or_b32 v39, v34
    """)
    def ranks(q):
        for j in range(4*q, 4*q+4):
            a(f"""
            v_and_b32 v{80+j}, 0x7fc, v{SD+j}
            v_cmpx_le_i32 vcc, 0, v{SD+j}
            ds_add_rtn_u32 v{RK+j}, v{80+j}, v34 offset:{CNT}
            s_mov_b64 exec, -1
            """)
    a(f"""
    s_cbranch_vccnz L_ovd
L_ov:
    s_cmp_eq_u64 s[14:15], 0
    s_cbranch_scc1 L_ovd
    s_ff1_i32_b64 s23, s[14:15]
    s_bitset0_b64 s[14:15], s23
    v_readlane_b32 s26, v36, s23
    s_and_b32 s27, s23, 7
    s_lshl_b32 s27, s27, 18
    s_lshr_b32 s23, s23, 3
    s_lshl_b32 s23, s23, 15
    s_add_u32 s23, s23, s27
    s_add_u32 s23, s23, s22
    s_lshl_b32 s27, s24, 4
    s_sub_u32 s23, s23, s27
    s_bfm_b64 exec, s26, s24
    s_add_u32 s24, s24, s26
    s_cmp_gt_u32 s24, 63
    s_cbranch_scc1 L_ovbad
    buffer_load_dwordx4 v[28:31], v38, {R(SSEG)}, s23 offen sc1
    s_branch L_ov
L_ovbad:
    s_mov_b64 exec, 1
    ds_or_b32 v39, v34
L_ovd:
    s_mov_b64 exec, -1
    """)
    a.stamp('s_ov')
    def ead(base, go, i):
        if i % 2 == 0: a(f"s_add_u32 m0, s28, {base}")
        a(f"s_add_u32 s19, s25, {i*8*24576 - i*1024 + go}\nbuffer_load_dwordx4 v2, {R(SSEG)}, s19 offen offset:{i*1024} sc1 lds")
    if 'eafirst' not in a.opt:
        for q in range(4): ranks(q)
    EQ = [(EALO, 0, i) for i in range(4)] + [(EAHI, 128, i) for i in range(4)]
    AL = ([o[1:] for o in a.opt if o[:1] == 'A'] + ['4220'])[0]
    def eaq(n):
        for _ in range(n):
            b, g, i = EQ.pop(0)
            a(f"s_add_u32 m0, s28, {b}\ns_add_u32 s19, s25, {i*8*24576 - i*1024 + g}\nbuffer_load_dwordx4 v2, {R(SSEG)}, s19 offen offset:{i*1024} sc1 lds")
    nea = int(AL[0])
    if nea: spin(a, "L_e5", 14, XD0-PC3, "ge", 5)
    eaq(nea)
    if 'eapre' in a.opt:
        spin(a, "L_e9", 14, XD1-PC3, "ge", 4)
        for i in range(4): ead(EAHI, 128, i)
        nea = 8
    a.stamp('s_ea')
    if 'eafirst' in a.opt:
        for q in range(4): ranks(q)
    a(f"""
    v_lshlrev_b32 v37, 2, v1
    s_lshl_b32 s18, s17, 8
    s_add_u32 s18, s18, 32768
    v_add_u32 v37, s18, v37
    s_mov_b32 s18, 0xffff0000
    v_lshl_add_u32 v36, v1, 4, s28
    """)
    for j in range(16):
        off = (j >> 2) * 1024 + (j & 3) * 4
        if off:
            a(f"v_add_u32 v38, {off}, v36\nv_and_or_b32 v{SD+j}, v{SD+j}, s18, v38")
        else:
            a(f"v_and_or_b32 v{SD+j}, v{SD+j}, s18, v36")
    a(f"""
    s_waitcnt vmcnt({nea})
    v_and_b32 v27, 0x7fc, v30
    v_cmpx_le_i32 vcc, 0, v30
    ds_add_rtn_u32 v26, v27, v34 offset:{CNT}
    s_mov_b64 exec, -1
    v_and_or_b32 v30, v30, s18, v37
    """)
    a(f"""
L_s1:
    v_lshlrev_b32 v35, 2, v1
    s_lshl_b32 s35, s16, 3
    s_or_b32 s35, s35, s17
    s_cmp_eq_u32 s3, 12
    s_cselect_b32 s26, 0xff, -1
    s_cselect_b32 s27, 0xff, -1
    s_waitcnt lgkmcnt(0)
    """)
    a.stamp('s_pb')
    a("s_barrier")
    a.stamp('s1')
    def auw():
        a("s_mov_b64 exec, s[26:27]")
        for i in range(4): a(f"ds_write_b128 v10, v[{96+4*i}:{99+4*i}] offset:{i*2*AUS}")
        a("s_mov_b64 exec, -1")
    a(f"""
    s_cmp_eq_u32 s16, 1
    s_cbranch_scc1 L_s2e
    ds_read_b32 v66, v64 offset:{CNT}
    """)
    if 'eapre' not in a.opt and 'eas' not in a.opt:
        for i in range(4): ead(EAHI, 128, i)
    a(f"""
    s_waitcnt lgkmcnt(0)
    v_min_u32 v67, 63, v66
    v_sub_u32 v67, 63, v67
    v_lshlrev_b32 v67, 2, v67
    s_mov_b64 exec, s[10:11]
    ds_add_rtn_u32 v68, v67, v34 offset:{HIST}
    """)
    auw()
    a(f"""
    s_waitcnt lgkmcnt(4)
    s_barrier
    s_branch L_s2d
L_s2e:
    """)
    eaq(int(AL[1]))
    a(f"""
    s_barrier
    """)
    eaq(int(AL[2]))
    def tpf(sb):
        a(f"""
        s_mul_i32 s18, s{sb}, {BN*128}
        s_mul_i32 s19, s17, {98*64}
        s_add_u32 s18, s18, s19
        s_add_u32 s19, s18, 4096
        v_lshlrev_b32 v5, 6, v1
        buffer_load_dword v127, v5, {R(STABW)}, s18 offen sc1
        s_mov_b32 exec_hi, 3
        buffer_load_dword v127, v5, {R(STABW)}, s19 offen sc1
        s_mov_b32 exec_hi, -1
        """)
    if 'pf4' in a.opt: a(f"""
    s_xor_b32 s29, s5, 32
    s_lshl_b32 s18, s4, 9
    s_lshl_b32 s19, s29, 3
    s_add_u32 s18, s18, s19
    s_add_u32 s18, s18, {FL2}
    v_mov_b32 v3, 0
    ds_read_b64 v[8:9], v14 offset:{NONCE-PC3}
    buffer_load_dwordx2 v[12:13], v3, {R(SSEG)}, s18 offen sc1
    """)
    if 'pf3' in a.opt: tpf(5)
    a(f"""
    ds_write2st64_b32 v37, v28, v29 offset0:{EALO//256} offset1:{EAHI//256}
    s_cmp_ge_u32 s3, 13
    s_cbranch_scc1 L_s2f
    """)
    auw()
    a(f"""
L_s2f:
L_s2d:
    """)
    a.stamp('s2')
    a(f"""
    s_cmp_gt_u32 s35, 6
    s_cbranch_scc1 L_s3d
    ds_read_b32 v69, v35 offset:{HIST}
    s_waitcnt lgkmcnt(0)
    v_mov_b32 v70, v69
    """)
    a.scan(70)
    a(f"""
    v_sub_u32 v70, v70, v69
    ds_bpermute_b32 v70, v67, v70
    v_max_u32 v65, 2, v66
    s_waitcnt lgkmcnt(0)
    v_add_u32 v70, v70, v68
    v_and_b32 v71, 7, v70
    v_lshrrev_b32 v72, 7, v70
    v_bfe_u32 v73, v70, 3, 4
    v_bfe_i32 v74, v70, 7, 1
    v_and_b32 v74, 15, v74
    v_xor_b32 v73, v73, v74
    v_lshl_add_u32 v74, v73, 2, v72
    v_lshlrev_b32 v74, 2, v74
    v_lshl_add_u32 v73, v73, 3, v71
    v_lshlrev_b32 v73, 3, v73
    v_lshl_add_u32 v73, v72, 1, v73
    s_mov_b64 exec, s[10:11]
    ds_max_u32 v74, v65 offset:{LEN}
    ds_write_b16 v73, v80 offset:{PERM}
    s_mov_b64 exec, -1
L_s3d:
    s_waitcnt lgkmcnt(0)
    s_barrier
    """)
    a(f"""
    ds_read_b32 v40, v35 offset:{LEN}
    v_mov_b32 v42, {FLAG}
    ds_read_b32 v42, v42
    s_lshl_b32 s18, s3, 2
    s_add_u32 s19, s18, 1
    s_add_u32 s20, s18, 2
    s_add_u32 s21, s18, 3
    s_waitcnt lgkmcnt(0)
    v_mov_b32 v41, v40
    v_readfirstlane_b32 s22, v42
    """)
    a.scan(41)
    a(f"""
    s_nop 0
    v_readlane_b32 s23, v41, 63
    v_sub_u32 v41, v41, v40
    v_readlane_b32 s30, v40, s18
    v_readlane_b32 s31, v40, s19
    v_readlane_b32 s32, v40, s20
    v_readlane_b32 s33, v40, s21
    v_readlane_b32 s34, v41, s18
    s_cmp_gt_u32 s23, {ROWCAP}
    s_cselect_b32 s22, 1, s22
    s_cmp_lg_u32 s22, 0
    s_cbranch_scc1 L_slow
    """)
    if a.force_slow: a("s_branch L_slow")
    a(f"""
    s_cmp_gt_u32 s35, 6
    s_cbranch_scc1 L_s4e
    ds_bpermute_b32 v70, v74, v41
    ds_bpermute_b32 v75, v74, v40
    v_lshlrev_b32 v71, 2, v71
    v_add_u32 v71, {ELL}, v71
    v_mov_b32 v72, {CNT+0x7fc}
    v_mov_b32 v73, {TRASH}
    ds_write_b32 v72, v73
    s_waitcnt lgkmcnt(0)
    v_lshl_add_u32 v70, v70, 5, v71
    s_mov_b64 exec, s[10:11]
    ds_write_b32 v64, v70 offset:{CNT}
    s_mov_b64 exec, -1
    s_branch L_s4d
L_s4e:
    """)
    if int(AL[3]):
        a("s_cmp_lg_u32 s16, 1\ns_cbranch_scc1 L_s4d")
        eaq(int(AL[3]))
    a(f"""
L_s4d:
    s_waitcnt lgkmcnt(0)
    s_barrier
    """)
    a.stamp('s4')
    a(f"""
    s_cmp_eq_u32 s16, 1
    s_cbranch_scc1 L_s5
    """)
    if 'ep2' in a.opt: poll2i(a, "a")
    a(f"""
    v_lshl_add_u32 v76, v66, 5, v70
    v_lshl_add_u32 v77, v75, 5, v70
    s_mov_b64 exec, s[10:11]
L_pad:
    v_cmpx_lt_u32 vcc, v76, v77
    s_cbranch_execz L_padd
    ds_write_b32 v76, v78
    v_add_u32 v76, 32, v76
    s_branch L_pad
L_padd:
    s_mov_b64 exec, -1
    """)
    if 'pfo2' in a.opt: a(f"""
    s_mul_i32 s18, s5, {BN*128}
    s_mul_i32 s19, s17, {98*64}
    s_add_u32 s18, s18, s19
    s_add_u32 s19, s18, 4096
    v_lshlrev_b32 v5, 6, v1
    buffer_load_dword v127, v5, {R(STABW)}, s18 offen sc1
    s_mov_b32 exec_hi, 3
    buffer_load_dword v127, v5, {R(STABW)}, s19 offen sc1
    s_mov_b32 exec_hi, -1
    """)
    a(f"""
    s_branch L_s5d
L_s5:
    """)
    if 'pf4' in a.opt:
        a("s_waitcnt vmcnt(2)\nv_cmp_ne_u64 vcc, v[8:9], v[12:13]\ns_cbranch_vccnz L_s5n")
        tpf(29)
        a("L_s5n:")
    for h in range(2):
        for j in range(8*h, 8*h+8): a(f"ds_read_b32 v{80+j}, v{80+j} offset:{CNT}")
        eaq(len(EQ))
        if h == 1: a(f"ds_read_b32 v27, v27 offset:{CNT}")
        for j in range(8*h, 8*h+8):
            a(f"s_waitcnt lgkmcnt({7+h})\nv_lshl_add_u32 v{80+j}, v{RK+j}, 5, v{80+j}\nds_write_b32 v{80+j}, v{SD+j}")
    a(f"""
    s_waitcnt lgkmcnt(8)
    v_lshl_add_u32 v27, v26, 5, v27
    ds_write_b32 v27, v30
L_s5d:
    """)
    msetup(a)
    poll2(a, "a", 1 if 'ep2' in a.opt else None)
    if 'pf4' in a.opt: a("s_waitcnt lgkmcnt(0)")
    else: a(f"s_cmp_lg_u32 s16, 1\ns_cbranch_scc1 L_s5w\ns_waitcnt vmcnt({3 if 'pf3' in a.opt else 1})\nL_s5w:\ns_waitcnt lgkmcnt(0)")
    sel(a, AP, UR, CK if a.pair else 0)
    a.stamp('s5p')
    a("s_barrier")

def consts(a, lab, va, off):
    spin(a, lab, va, off, 'ge', 2, 84)
    a(f"""
    v_and_b32 v92, 7, v1
    v_lshrrev_b32 v93, 4, v1
    v_lshl_add_u32 v88, v92, 2, v93
    v_lshlrev_b32 v88, 1, v88
    ds_read_u16 v84, v88 offset:{WCL}
    ds_read_u16 v85, v88 offset:{WCL+64}
    ds_read_u16 v86, v88 offset:{WCL+128}
    ds_read_u16 v87, v88 offset:{WCL+192}
    v_bfe_u32 v94, v1, 2, 2
    v_and_b32 v95, 3, v1
    v_cmp_eq_u32 s[36:37], v93, v95
    v_mul_u32_u24 v{CAU}, {AUS}, v92
    v_add_u32 v{CAU}, {AU}, v{CAU}
    s_mul_i32 s18, s5, {BN*256}
    s_lshl_b32 s19, s4, 6
    s_add_u32 s18, s18, s19
    v_lshl_add_u32 v{COUT}, v92, 3, s18
    v_cmp_eq_u32 vcc, v94, v93
    v_mov_b32 v89, 0x3f80
    v_mov_b32 v90, 4
    {'v_mov_b32 v90, v95' if 'f4' in a.opt else 'v_cndmask_b32 v90, v90, v95, vcc'}
    v_cmp_eq_u32 s[18:19], 0, v90
    v_cmp_eq_u32 s[20:21], 1, v90
    v_cmp_eq_u32 vcc, 2, v90
    v_cndmask_b32 v{SEL}, 0, v89, s[18:19]
    v_cmp_eq_u32 s[18:19], 3, v90
    v_cndmask_b32 v{SEL+1}, 0, v89, s[20:21]
    v_cndmask_b32 v{SEL+2}, 0, v89, vcc
    v_cndmask_b32 v{SEL+3}, 0, v89, s[18:19]
    v_cmp_gt_u32 vcc, 2, v95
    v_and_b32 v91, 1, v95
    v_lshlrev_b32 v91, 4, v91
    v_lshlrev_b32 v91, v91, v89
    v_cndmask_b32 v{IDM}, 0, v91, vcc
    v_xor_b32 v{IDM+1}, v{IDM}, v91
    s_mov_b32 s20, {NLOG2E:#x}
    s_mov_b32 s21, {NLOG2E:#x}
    v_and_b32 v88, 8, v1
    v_cmp_eq_u32 vcc, 0, v88
    s_waitcnt lgkmcnt(0)
    v_lshlrev_b32 v84, 16, v84
    v_lshlrev_b32 v85, 16, v85
    v_lshlrev_b32 v86, 16, v86
    v_lshlrev_b32 v87, 16, v87
    v_pk_mul_f32 v[84:85], v[84:85], s[20:21]
    v_pk_mul_f32 v[86:87], v[86:87], s[20:21]
    v_cvt_pk_bf16_f32 v84, v84, v85
    v_cvt_pk_bf16_f32 v85, v86, v87
    v_cndmask_b32 v{WC+0}, 0, v84, vcc
    v_cndmask_b32 v{WC+1}, 0, v85, vcc
    v_xor_b32 v{WC+2}, v{WC+0}, v84
    v_xor_b32 v{WC+3}, v{WC+1}, v85
    """)

def msetup(a):
    D = a.D
    eps = f2u(1e-6 * 2.0**KS) if a.pair else EPS
    a(f"""
    v_lshrrev_b32 v2, 3, v1
    s_lshl_b32 s19, s3, 6
    v_lshl_add_u32 v7, v2, 3, s19
    ds_read_b64 {v2(IDS)}, v7 offset:{PERM}
    v_bfe_u32 v4, v1, 2, 2
    v_and_b32 v3, 7, v1
    v_lshlrev_b32 v{IDX+1}, 4, v3
    v_lshlrev_b32 v{IDX+3}, 4, v3
    s_lshl_b32 s18, s34, 5
    s_add_u32 s18, s18, {ELL}
    s_add_u32 s19, s18, 2
    v_lshl_add_u32 v{PTR}, v2, 2, s19
    v_lshl_add_u32 v{PTR+1}, v4, 3, s18
    s_movk_i32 s35, 256
    s_movk_i32 s38, {D*32}
    s_movk_i32 s39, {D*32}
    s_mov_b32 s28, {eps:#x}
    s_mov_b32 s29, {eps:#x}
    s_sub_u32 s24, s30, 2
    """)
    if a.pair:
        a(f"s_mov_b32 s26, {f2u(2.0**-KS):#x}\ns_mov_b32 s27, s26\ns_mov_b32 s20, {f2u(-float(KS)):#x}\ns_mov_b32 s21, s20")
    a(f"""
    s_waitcnt lgkmcnt(0)
    v_mad_u32_u16 v{VOUT}, v{IDS}, s35, v{COUT}
    v_mad_u32_u16 v{VAU}, v{IDS}, 16, v{CAU}
    buffer_load_dwordx2 {v2(XR)}, v{VOUT}, {R(SX)}, 0 offen
    ds_read_b128 {v4(UR)}, v{VAU}
    v_mad_u32_u16 v{VAU}, v{IDS}, 16, v{CAU} op_sel:[1,0,0,0]
    ds_read_b128 {v4(AUN)}, v{VAU}
    v_mov_b64 {v2(EA0)}, 0
    v_mov_b64 {v2(EA0+2)}, 0
    v_mov_b64 {v2(EA0+4)}, 0
    v_mov_b64 {v2(EA0+6)}, 0
    v_mov_b64 {v2(DEN)}, s[28:29]
    v_mov_b64 {v2(DEN+2)}, s[28:29]
    v_mov_b64 {v2(NUM)}, 0
    v_mov_b64 {v2(NUM+2)}, 0
    """)
    if a.pair: a(f"v_mov_b64 {v2(CK)}, s[20:21]\nv_mov_b64 {v2(CK+2)}, s[20:21]")

def poll2i(a, sfx):
    a(f"""
    s_cmp_lg_u32 s3, 12
    s_cbranch_scc1 L_ni2{sfx}
    v_lshlrev_b32 v20, 3, v1
    s_lshl_b32 s12, s4, 9
    s_add_u32 s12, s12, {FL2}
    buffer_load_dwordx2 v[22:23], v20, {R(SSEG)}, s12 offen sc1
    v_mov_b32 v18, {NONCE}
    ds_read_b64 v[18:19], v18
    s_mov_b32 s13, 0x40000
L_ni2{sfx}:
    """)

def poll2(a, sfx, younger=None):
    if younger is None: poll2i(a, sfx)
    a(f"""
    s_cmp_lg_u32 s3, 12
    s_cbranch_scc1 L_np2{sfx}
    v_lshlrev_b32 v20, 3, v1
    s_waitcnt vmcnt({younger or 0}) lgkmcnt(0)
L_poll2{sfx}:
    v_cmpx_ne_u64 vcc, v[18:19], v[22:23]
    s_sub_u32 s13, s13, 1
    s_cbranch_scc1 L_poll2d{sfx}
    s_cbranch_vccz L_poll2d{sfx}
    s_sleep 1
    buffer_load_dwordx2 v[22:23], v20, {R(SSEG)}, s12 offen sc1
    s_waitcnt vmcnt(0)
    s_branch L_poll2{sfx}
L_poll2d{sfx}:
    s_mov_b64 exec, -1
L_np2{sfx}:
    """)

DEN, NUM, AP, T0, EA0, UR, AUN, GR, WC, SEL, IDM, XR = 28, 32, 36, 40, 48, 56, 60, 64, 112, 116, 120, 96
A1, PP, NN, T3, CK = 8, 12, 16, 20, 24
IDX, EAD, PTR, IDS, VAU, VOUT, CAU, COUT, OT = 98, 102, 104, 106, 108, 109, 122, 123, 12
def v4(r): return f"v[{r}:{r+3}]"
def v2(r): return f"v[{r}:{r+1}]"
EAOFF = f"offset0:{EALO//256} offset1:{EAHI//256}"

def TB(a, j):
    return (T0, T0+4, A1, T3)[j & 3] if a.pair else T0 + 4*(j & 1)

def mm(d, x, y, c): return f"v_mfma_f32_16x16x32_bf16 {v4(d)}, {v4(x)}, {v4(y)}, {v4(c) if c else 0}"

def m4(d, h, y, c): return f"v_mfma_f32_4x4x4_16b_bf16 {v4(d)}, {v2(SEL+2*h)}, {v2(y+2*h)}, {v4(c) if c else 0}"
def sel(a, d, y, c):
    if 'f4' in a.opt: a(m4(d, 0, y, c) + "\ns_nop 1\n" + m4(d, 1, y, d))
    else: a(mm(d, SEL, y, c))

def tblock(a, k):
    D = a.D; cl = " clamp" if a.pair else ""
    T = TB(a, k); Tn = TB(a, k+1)
    if 'f4' in a.opt:
        G1 = GR + 4*((k+1) % D)
        a(f"""
        {mm(Tn, EA0 + 4*((k+1) & 1), WC, AP)}
        v_exp_f32 v{T}, v{T}{cl}
        {m4(Tn, 0, G1, Tn)}
        v_exp_f32 v{T+1}, v{T+1}{cl}
        v_exp_f32 v{T+2}, v{T+2}{cl}
        {m4(Tn, 1, G1, Tn)}
        v_exp_f32 v{T+3}, v{T+3}{cl}
        """)
        return
    a(f"""
    {mm(Tn, EA0 + 4*((k+1) & 1), WC, AP)}
    v_exp_f32 v{T}, v{T}{cl}
    {mm(Tn, SEL, GR + 4*((k+1) % D), Tn)}
    v_exp_f32 v{T+1}, v{T+1}{cl}
    v_exp_f32 v{T+2}, v{T+2}{cl}
    v_exp_f32 v{T+3}, v{T+3}{cl}
    """)

def unit(a, k, kind, sw):
    D = a.D; lag = 2 if a.pair else 1; NL = D - lag
    T = TB(a, k); Tp = TB(a, k-1)
    EAw = EA0 + 4*((k+1) & 1)
    Gc = GR + 4*k; Gl = GR + 4*((k-lag) % D); Gp = GR + 4*((k-1) % D)
    Iu = IDX + 2*((k+1) & 1); Iw = IDX + 2*(k & 1)
    one = "s[26:27]" if a.pair else "1.0 op_sel_hi:[1,0]"
    def pk(op, d, x, y, z=None):
        for h in (0, 2):
            a(f"v_pk_{op}_f32 {v2(d+h)}, {v2(x+h)}, " + (v2(y+h) if isinstance(y, int) else y) + (f", {v2(z+h)}" if z is not None else ""))
    def rcp(r):
        for i in range(4): a(f"v_rcp_f32 v{r+i}, v{r+i}")
    a("s_waitcnt lgkmcnt(0)")
    if sw: sel(a, AP, AUN, CK if a.pair else 0)
    a(f"""
    {"; " if 'xl' in a.opt else ""}buffer_load_dwordx4 {v4(Gl)}, {v2(Iu)}, {R(STAB)}, 0 idxen offen sc1
    s_mov_b64 exec, s[36:37]
    ds_read2st64_b32 {v2(EAw)}, v{EAD} {EAOFF}
    ds_read2st64_b32 {v2(EAw+2)}, v{EAD+1} {EAOFF}
    ds_read_u16 v{EAD}, v{PTR+1} offset:{(k+4)*32}
    ds_read_u16 v{EAD+1}, v{PTR+1} offset:{(k+4)*32+4}
    s_mov_b64 exec, -1
    ds_read_u16 v{Iw}, v{PTR} offset:{(k+NL+1)*32}
    s_waitcnt vmcnt({NL-2})
    """)
    if k == D-1: a(f"v_lshl_add_u64 {v2(PTR)}, {v2(PTR)}, 0, s[38:39]")
    if kind == 'U':
        pk('add', T, T, one); rcp(T); pk('add', DEN, DEN, T); pk('fma', NUM, T, Gc, NUM)
    elif kind == 'S':
        pk('add', Tp, Tp, one); pk('add', T, T, one); pk('mul', PP, Tp, T); rcp(PP)
        pk('mul', NN, T, Gp); pk('add', T, T, Tp); pk('fma', NN, Tp, Gc, NN)
        pk('fma', DEN, T, PP, DEN); pk('fma', NUM, NN, PP, NUM)

def phase_m(a):
    D = a.D; lag = 2 if a.pair else 1; NL = D - lag
    a.stamp(9)
    if a.prof:
        a("v_mov_b32 v126, v15\ns_memtime s[86:87]\ns_waitcnt lgkmcnt(0)\ns_sub_u32 s92, s86, s92\nv_writelane_b32 v126, s92, 30"); a.sreg = 126
    if 'prio' in a.opt: a("s_setprio 3\ns_mov_b32 s23, 3")
    for q in range(NL): a(f"ds_read_u16 v{8+q}, v{PTR} offset:{q*32}")
    a(f"""
    ds_read_u16 v16, v{PTR+1}
    ds_read_u16 v17, v{PTR+1} offset:4
    ds_read_u16 v18, v{PTR+1} offset:32
    ds_read_u16 v19, v{PTR+1} offset:36
    ds_read_u16 v{IDX+2}, v{PTR} offset:{NL*32}
    """)
    for q in range(NL):
        a(f"s_waitcnt lgkmcnt({NL-1-q+5})\nv_lshl_add_u32 v{8+q}, v{8+q}, 7, v{IDX+1}\nbuffer_load_dwordx4 {v4(GR+4*q)}, v{8+q}, {R(STABW)}, 0 offen sc1")
        if q == 0: a(f"""
        s_waitcnt lgkmcnt(1)
        s_mov_b64 exec, s[36:37]
        ds_read2st64_b32 {v2(EA0)}, v16 {EAOFF}
        ds_read2st64_b32 {v2(EA0+2)}, v17 {EAOFF}
        ds_read2st64_b32 {v2(EA0+4)}, v18 {EAOFF}
        ds_read2st64_b32 {v2(EA0+6)}, v19 {EAOFF}
        ds_read_u16 v{EAD}, v{PTR+1} offset:64
        ds_read_u16 v{EAD+1}, v{PTR+1} offset:68
        s_mov_b64 exec, -1
        """)
    a(f"""
    s_waitcnt lgkmcnt(0)
    {mm(TB(a, 0), EA0, WC, AP)}
    s_waitcnt vmcnt({NL-1})
    s_nop 4
    """)
    sel(a, TB(a, 0), GR, TB(a, 0))
    a(f"""
    s_mov_b64 exec, s[36:37]
    ds_read2st64_b32 {v2(EA0)}, v{EAD} {EAOFF}
    ds_read2st64_b32 {v2(EA0+2)}, v{EAD+1} {EAOFF}
    ds_read_u16 v{EAD}, v{PTR+1} offset:96
    ds_read_u16 v{EAD+1}, v{PTR+1} offset:100
    s_mov_b64 exec, -1
    s_waitcnt vmcnt({NL-2})
    s_nop 1
    """)
    a.stamp(10)
    tblock(a, 0)
    if a.prof:
        a(f"s_mov_b32 s90, {len(a.names)}"); a.names += ['g1', 'g2', 'g3', 'g4']
    for c in ((0, 1) if a.pair else (0,)):
        for j in range(D):
            k = (j + c) % D; kind = 'FS'[j & 1] if a.pair else 'U'
            lab = kind if a.pair else 'F'
            a(f"L_m{lab}{k}:\ns_sub_u32 s24, s24, 1\ns_cbranch_scc1 L_b{lab}{k}")
            unit(a, k, kind, False)
            tblock(a, k+1)
        a(f"s_branch L_mF{c}")
    for k0 in range(D):
      for kd in ('FS' if a.pair else 'F'):
        k = (k0 + 1) % D
        a(f"L_b{kd}{k0}:")
        unit(a, k0, kd if a.pair else 'U', True)
        tblock(a, k0+1)
        unit(a, k, 'S' if a.pair and kd == 'F' else 'U', False)
        if a.pair and kd == 'F':
            a(f"s_branch L_ep{k}"); continue
        a(f"""
L_ep{k}:
        v_rcp_f32 v{DEN}, v{DEN}
        v_rcp_f32 v{DEN+1}, v{DEN+1}
        v_rcp_f32 v{DEN+2}, v{DEN+2}
        v_rcp_f32 v{DEN+3}, v{DEN+3}
        s_cmp_ge_u32 s30, {NL-2}
        s_cbranch_scc1 L_bx{k}
        s_waitcnt vmcnt(0)
L_bx{k}:
        v_pk_fma_f32 {v2(NUM)}, {v2(NUM)}, {v2(DEN)}, {v2(UR)}
        v_pk_fma_f32 {v2(NUM+2)}, {v2(NUM+2)}, {v2(DEN+2)}, {v2(UR+2)}
        ds_read_b128 {v4(UR)}, v{VAU}
        v_max_f32 v{NUM}, 0, v{NUM}
        v_max_f32 v{NUM+1}, 0, v{NUM+1}
        v_max_f32 v{NUM+2}, 0, v{NUM+2}
        v_max_f32 v{NUM+3}, 0, v{NUM+3}
        v_lshrrev_b64 {v2(IDS)}, 16, {v2(IDS)}
        v_mov_b64 {v2(DEN)}, s[28:29]
        v_mfma_f32_4x4x4_16b_bf16 {v4(OT)}, {v2(IDM)}, {v2(XR)}, {v4(NUM)}
        v_mov_b64 {v2(DEN+2)}, s[28:29]
        v_mad_u32_u16 v{VAU}, v{IDS}, 16, v{CAU} op_sel:[1,0,0,0]
        v_mov_b64 {v2(NUM)}, 0
        v_mov_b64 {v2(NUM+2)}, 0
        ds_read_b128 {v4(AUN)}, v{VAU}
        v_cvt_pk_bf16_f32 v{OT}, v{OT}, v{OT+1}
        v_cvt_pk_bf16_f32 v{OT+1}, v{OT+2}, v{OT+3}
        s_mov_b32 s30, s31
        s_mov_b32 s31, s32
        s_mov_b32 s32, s33
        s_mov_b32 s33, 0
        buffer_store_dwordx2 {v2(OT)}, v{VOUT}, {R(SOUT)}, 0 offen{' sc1' if 'osc1' in a.opt else ''}{' nt' if 'ont' in a.opt else ''}
        """)
        if a.prof: a("s_memrealtime s[100:101]\ns_waitcnt lgkmcnt(0)\ns_add_u32 s90, s90, 1\ns_mov_b32 m0, s90\nv_writelane_b32 v126, s100, m0")
        a(f"""
        v_mad_u32_u16 v{VOUT}, v{IDS}, s35, v{COUT}
        s_sub_u32 s24, s30, 2
        s_cbranch_scc1 L_fin
        buffer_load_dwordx2 {v2(XR)}, v{VOUT}, {R(SX)}, 0 offen
        """)
        if 'p4' in a.opt: a(f"""
        s_cmp_lg_u32 s32, 0
        s_cbranch_scc1 L_pt{k}
        s_setprio 2
        s_cmp_lg_u32 s31, 0
        s_cbranch_scc1 L_pt{k}
        s_setprio 1
L_pt{k}:
        """)
        elif 'prio' in a.opt: a(f"""
        s_sub_u32 s23, s23, 1
        s_cmp_eq_u32 s23, 2
        s_cbranch_scc0 L_pr{k}
        s_setprio 2
L_pr{k}:
        s_cmp_eq_u32 s23, 1
        s_cbranch_scc0 L_ps{k}
        s_setprio 1
L_ps{k}:
        s_cmp_eq_u32 s23, 0
        s_cbranch_scc0 L_pt{k}
        s_setprio 0
L_pt{k}:
        """)
        tblock(a, k+1)
        a(f"s_branch L_mF{(k+1) % D}")

def slow(a):
    a(f"""
L_slow:
    s_waitcnt vmcnt(0) lgkmcnt(0)
    s_barrier
    v_mov_b64 v[4:5], 0
    v_mov_b64 v[6:7], 0
    v_lshlrev_b32 v2, 4, v0
    v_add_u32 v2, {ACC}, v2
    s_mov_b32 s18, 0
L_sz:
    v_cmp_gt_u32 vcc, {ACC+100352}, v2
    s_mov_b64 exec, vcc
    ds_write_b128 v2, v[4:7]
    s_mov_b64 exec, -1
    v_add_u32 v2, 16384, v2
    s_add_u32 s18, s18, 1
    s_cmp_lt_u32 s18, 7
    s_cbranch_scc1 L_sz
    s_cmp_gt_u32 s3, 1
    s_cbranch_scc1 L_swc
    v_lshrrev_b32 v3, 4, v0
    v_bfe_u32 v4, v0, 2, 2
    v_and_b32 v5, 3, v0
    v_lshl_add_u32 v3, v3, 2, v5
    v_lshlrev_b32 v3, 1, v3
    v_lshl_add_u32 v3, v4, 8, v3
    s_lshl_b32 s20, s4, 6
    buffer_load_ushort v3, v3, {R(SWC)}, s20 offen
    v_lshlrev_b32 v4, 2, v0
    v_add_u32 v4, {WCF}, v4
    s_waitcnt vmcnt(0)
    v_lshlrev_b32 v3, 16, v3
    v_mul_f32 v3, {NLOG2E:#x}, v3
    ds_write_b32 v4, v3
L_swc:
    """)
    poll2(a, "b")
    a(f"""
    s_waitcnt vmcnt(0) lgkmcnt(0)
    s_barrier
    s_mul_i32 s20, s5, {BN}
    s_mov_b32 s21, {E}
    s_movk_i32 s22, {BN}
    v_mov_b32 v2, v0
    s_mov_b32 s18, 0
L_se:
    v_lshlrev_b32 v3, 2, v2
    v_lshlrev_b32 v4, 3, v2
    buffer_load_dword v5, v3, {R(SDST)}, 0 offen
    v_cmp_gt_u32 s[24:25], s21, v2
    s_waitcnt vmcnt(0)
    v_subrev_u32 v5, s20, v5
    v_cmp_gt_u32 vcc, s22, v5
    s_and_b64 exec, vcc, s[24:25]
    s_cbranch_execz L_sn
    buffer_load_dword v6, v3, {R(SSRC)}, 0 offen
    buffer_load_dwordx2 v[8:9], v4, {R(SEA)}, 0 offen
    v_lshlrev_b32 v7, 4, v5
    v_add_u32 v7, {AU}, v7
    v_lshlrev_b32 v14, 8, v5
    v_add_u32 v14, {ACC}, v14
    v_mov_b32 v15, {WCF}
    s_mov_b32 s19, 0
    s_waitcnt vmcnt(0)
    v_lshlrev_b32 v6, 7, v6
    v_lshlrev_b32 v10, 16, v8
    v_and_b32 v11, 0xffff0000, v8
    v_lshlrev_b32 v12, 16, v9
    v_and_b32 v13, 0xffff0000, v9
L_sc:
    buffer_load_dwordx4 v[16:19], v6, {R(STABW)}, s19 offen sc1
    ds_read_b128 v[20:23], v7
    ds_read_b128 v[24:27], v15
    ds_read_b128 v[28:31], v15 offset:16
    ds_read_b128 v[32:35], v15 offset:32
    ds_read_b128 v[36:39], v15 offset:48
    s_waitcnt vmcnt(0) lgkmcnt(0)
    """)
    for r in range(4):
        a(f"""
        v_lshlrev_b32 v40, 16, v{16+r}
        v_lshlrev_b32 v41, 16, v{20+r}
        v_add_f32 v40, v40, v41
        v_fmac_f32 v40, v10, v{24+r}
        v_fmac_f32 v40, v11, v{28+r}
        v_fmac_f32 v40, v12, v{32+r}
        v_fmac_f32 v40, v13, v{36+r}
        v_exp_f32 v40, v40
        s_nop 0
        v_add_f32 v40, 1.0, v40
        v_rcp_f32 v40, v40
        s_nop 0
        v_mul_f32 v41, v40, v{16+r}
        ds_add_f32 v14, v40 offset:{4*r}
        ds_add_f32 v14, v41 offset:{128+4*r}
        """)
    a(f"""
    v_add_u32 v7, {AUS}, v7
    v_add_u32 v14, 16, v14
    v_add_u32 v15, 64, v15
    s_add_u32 s19, s19, 16
    s_cmp_lt_u32 s19, 128
    s_cbranch_scc1 L_sc
L_sn:
    s_mov_b64 exec, -1
    v_add_u32 v2, 1024, v2
    s_add_u32 s18, s18, 1
    s_cmp_lt_u32 s18, {(E+1023)//1024}
    s_cbranch_scc1 L_se
    s_waitcnt lgkmcnt(0)
    s_barrier
    s_mul_i32 s20, s5, {BN*256}
    s_lshl_b32 s19, s4, 6
    s_add_u32 s20, s20, s19
    v_mov_b32 v2, v0
    s_mov_b32 s18, 0
L_so:
    v_cmp_gt_u32 vcc, {BN*8}, v2
    s_mov_b64 exec, vcc
    s_cbranch_execz L_fin
    v_lshrrev_b32 v3, 3, v2
    v_and_b32 v4, 7, v2
    v_lshlrev_b32 v5, 8, v3
    v_lshl_add_u32 v6, v4, 3, v5
    buffer_load_dwordx2 v[8:9], v6, {R(SX)}, s20 offen
    v_lshl_add_u32 v5, v4, 4, v5
    v_add_u32 v5, {ACC}, v5
    ds_read_b128 v[16:19], v5
    ds_read_b128 v[20:23], v5 offset:128
    v_mul_u32_u24 v7, {AUS}, v4
    v_lshl_add_u32 v7, v3, 4, v7
    v_add_u32 v7, {AU}, v7
    ds_read_b128 v[24:27], v7
    s_waitcnt vmcnt(0) lgkmcnt(0)
    v_lshlrev_b32 v10, 16, v8
    v_and_b32 v11, 0xffff0000, v8
    v_lshlrev_b32 v12, 16, v9
    v_and_b32 v13, 0xffff0000, v9
    """)
    for r in range(4):
        a(f"""
        v_add_f32 v{16+r}, {EPS:#x}, v{16+r}
        v_rcp_f32 v{16+r}, v{16+r}
        s_nop 0
        v_fmac_f32 v{24+r}, v{16+r}, v{20+r}
        v_max_f32 v{24+r}, 0, v{24+r}
        v_add_f32 v{24+r}, v{24+r}, v{10+r}
        """)
    a(f"""
    v_cvt_pk_bf16_f32 v8, v24, v25
    v_cvt_pk_bf16_f32 v9, v26, v27
    buffer_store_dwordx2 v[8:9], v6, {R(SOUT)}, s20 offen
    v_add_u32 v2, 1024, v2
    s_add_u32 s18, s18, 1
    s_cmp_lt_u32 s18, 4
    s_cbranch_scc1 L_so
    """)

def fin(a):
    a("L_fin:")
    if a.prof:
        a("s_mov_b64 exec, -1\ns_waitcnt vmcnt(0)")
        a.stamp(11)
        a(f"""
        v_writelane_b32 v126, s84, 0
        s_memtime s[88:89]
        s_waitcnt lgkmcnt(0)
        s_sub_u32 s88, s88, s86
        v_writelane_b32 v126, s88, 31
        s_lshl_b32 s18, s2, 11
        s_lshl_b32 s19, s3, 7
        s_add_u32 s18, s18, s19
        s_add_u32 s18, s18, {PROFOFF}
        v_lshlrev_b32 v3, 2, v1
        s_mov_b32 exec_lo, -1
        s_mov_b32 exec_hi, 0
        buffer_store_dword v126, v3, {R(SSEG)}, s18 offen
        """)
        a("; STAMPS " + ",".join(["start"] + [str(x) for x in a.names]))
    a("L_end:\ns_endpgm")

def build(D=8, prof=False, force_slow=False, opt=()):
    a = G(D, prof, force_slow, opt)
    prologue(a); phase_p(a); phase_g(a); phase_s(a); phase_m(a); slow(a); fin(a)
    errs = hz.check(a.L)
    for e in errs: print("WARN", e, file=sys.stderr)
    ref = open(f"cdna_kernels/{NAME}.s.ref").read().split('\n')
    head = [l for l in ref if l.startswith(';') and '@launch' not in l]
    out = head + [f"; @launch grid=(256,1,1) block=(1024,1,1) lds={LDS_SIZE}",
        '.amdgcn_target "amdgcn-amd-amdhsa--gfx950"', '.text', f'.globl {NAME}_kernel', '.p2align 8',
        f'.type {NAME}_kernel,@function', f'{NAME}_kernel:'] + a.L + [
        '.section .rodata,"a"', '.p2align 6', f'.amdhsa_kernel {NAME}_kernel',
        '  .amdhsa_next_free_vgpr 128', '  .amdhsa_next_free_sgpr 102', '  .amdhsa_accum_offset 128',
        '  .amdhsa_group_segment_fixed_size 0', '  .amdhsa_kernarg_size 96', '  .amdhsa_user_sgpr_count 2',
        '  .amdhsa_user_sgpr_kernarg_segment_ptr 1', '  .amdhsa_system_sgpr_workgroup_id_x 1', '.end_amdhsa_kernel', '']
    return '\n'.join(out)

if __name__ == '__main__':
    ap = argparse.ArgumentParser()
    ap.add_argument('-o', default=f"cdna_kernels/{NAME}.s")
    ap.add_argument('-D', type=int, default=8)
    ap.add_argument('--prof', action='store_true')
    ap.add_argument('--slow', action='store_true')
    ap.add_argument('--opt', default='')
    x = ap.parse_args()
    open(x.o, 'w').write(build(x.D, x.prof, x.slow, x.opt.split(',')))
```

```python
import sys, struct, argparse
import hz

NAME = "standalone__edge_featured_mpnn_gatedgcn__graph"
N, E = 25000, 400000
BN = 392
CH = 1564
MARK = 0x800007FC
DUMMY = 25100
OVF = 8 << 20
FL2 = 7 << 20
TABOFF = 16 << 20
TABSL = 25600 * 128
PROFOFF = 64 << 20
PCNT, HIST, LEN, FLAG, PC1, OVC, PC3, XGO, PC2, F1, WCNT, XL, NONCE, TRASH, PERM, CNT, WCL = 0, 256, 512, 768, 772, 776, 780, 784, 788, 792, 796, 800, 808, 816, 1024, 2048, 3712
XD0, XD1 = F1, 820
TAGM = 0xF803
RETRY = 2048
XT = 4096
WL = XT + BN * 256
IMG = WL + 32768
OVL = IMG + 24576
LDS_SIZE = 163840
AUS = 6288
AU = LDS_SIZE - 8 * AUS
STG = WL
EALO = 4096
EASZ = 34816
EAHI = EALO + EASZ
ELL = EAHI + EASZ
ROWCAP = 1008
ZSLOT = 32768 + 63 * 4
ACC = 4096
WCF = WL
assert ELL + 32768 <= AU and STG + 8192 <= AU and OVL + 1024 <= LDS_SIZE
NLOG2E = struct.unpack('<I', struct.pack('<f', -1.4426950408889634))[0]
KS = 48
def f2u(x): return struct.unpack('<I', struct.pack('<f', x))[0]
EPS = struct.unpack('<I', struct.pack('<f', 1e-6))[0]

class G:
    def __init__(s, D=8, prof=False, force_slow=False, opt=()):
        s.opt = set(opt); s.pair = 'pair' in opt; s.XE = ([int(o[1:]) for o in opt if o[:1] == 'X'] + [0])[0]; s.EE = ([int(o[1:]) for o in opt if o[:1] == 'E'] + [0])[0]; s.YE = ([int(o[1:]) for o in opt if o[:1] == 'Y'] + [0])[0]; s.HD = ([int(o[1:]) for o in opt if o[:1] == 'H'] + [0])[0]; s.T = ([int(o[1:]) for o in opt if o[:1] == 'T'] + [0])[0]
        s.L = []; s.D = D; s.prof = prof; s.force_slow = force_slow; s.nst = 0; s.names = []; s.sreg = 15
    def __call__(s, txt):
        for l in txt.strip('\n').split('\n'):
            l = l.strip()
            if l: s.L.append(('' if l.endswith(':') else '    ') + l)
    def srd(s, d, p, n, extra1=None):
        s(f"s_mov_b32 s{d}, s{p}")
        if extra1 is None: s(f"s_mov_b32 s{d+1}, s{p+1}")
        else: s(f"s_or_b32 s{d+1}, s{p+1}, {extra1:#x}")
        s(f"s_mov_b32 s{d+2}, {n:#x}\ns_mov_b32 s{d+3}, 0x20000")
    def stamp(s, k):
        if s.prof:
            s.names.append(k)
            s(f"s_memrealtime s[100:101]\ns_waitcnt lgkmcnt(0)\nv_writelane_b32 v{s.sreg}, s100, {len(s.names)}")
    def scan(s, v):
        for m in ("row_shr:1 row_mask:0xf bank_mask:0xf bound_ctrl:0", "row_shr:2 row_mask:0xf bank_mask:0xf bound_ctrl:0",
                  "row_shr:4 row_mask:0xf bank_mask:0xf bound_ctrl:0", "row_shr:8 row_mask:0xf bank_mask:0xf bound_ctrl:0",
                  "row_bcast:15 row_mask:0xa bank_mask:0xf", "row_bcast:31 row_mask:0xc bank_mask:0xf"):
            s(f"s_nop 1\nv_add_u32_dpp v{v}, v{v}, v{v} {m}")

SX, SEA, SSRC, SDST, SW, SOUT, SDBG, SSEG, STABW, STAB, SWC = 40, 44, 48, 52, 56, 60, 64, 68, 72, 76, 80
def R(d): return f"s[{d}:{d+3}]"

def w2(a, lab, k, extra):
    a(f"s_cbranch_scc1 {lab}\ns_waitcnt vmcnt({k})\n{lab}:\ns_waitcnt vmcnt({k+extra})")

def srds(a):
    a.srd(SOUT, 34, N*256); a.srd(SDBG, 36, 256)
    a.srd(SSEG, 38, (PROFOFF + (1 << 20)) if a.prof else TABOFF)
    a(f"""
    s_mul_i32 s9, s4, {TABSL}
    s_add_u32 s9, s9, {TABOFF}
    s_add_u32 s12, s38, s9
    s_addc_u32 s13, s39, 0
    """)
    a.srd(STABW, 12, TABSL); a.srd(STAB, 12, 25600, extra1=128 << 16)

def xdma(a, lab):
    a(f"""
    s_mul_i32 s14, s5, {BN*256}
    s_lshl_b32 s15, s3, 13
    s_add_u32 s14, s14, s15
    s_add_u32 m0, s15, {XT}
    v_xor_b32 v17, 64, v16
    v_xor_b32 v18, 0x80, v16
    v_xor_b32 v19, 0xc0, v16
    s_cmp_eq_u32 s3, 12
    buffer_load_dwordx4 v16, {R(SX)}, s14 offen lds
    buffer_load_dwordx4 v17, {R(SX)}, s14 offen offset:1024 lds
    s_cbranch_scc1 {lab}
    buffer_load_dwordx4 v18, {R(SX)}, s14 offen offset:2048 lds
    buffer_load_dwordx4 v19, {R(SX)}, s14 offen offset:3072 lds
    s_add_u32 m0, s15, {XT+4096}
    s_add_u32 s14, s14, 4096
    buffer_load_dwordx4 v16, {R(SX)}, s14 offen lds
    buffer_load_dwordx4 v17, {R(SX)}, s14 offen offset:1024 lds
    buffer_load_dwordx4 v18, {R(SX)}, s14 offen offset:2048 lds
    buffer_load_dwordx4 v19, {R(SX)}, s14 offen offset:3072 lds
{lab}:
    """)

def spin(a, lab, vaddr, off, cmp, val, vt=32):
    a(f"""
{lab}:
    ds_read_b32 v{vt}, v{vaddr} offset:{off}
    s_waitcnt lgkmcnt(0)
    v_readfirstlane_b32 s18, v{vt}
    s_cmp_{cmp}_u32 s18, {val}
    s_cbranch_scc1 {lab}d
    s_sleep 1
    s_branch {lab}
{lab}d:
    """)

def allsrds(a):
    a.srd(SDST, 22, E*4); a.srd(SSRC, 20, E*4); a.srd(SEA, 18, E*8)
    a.srd(SWC, 28, 1024)
    srds(a)

MAP = ["""s_and_b32 s4, s2, 3
    s_lshr_b32 s5, s2, 3
    s_bfe_u32 s6, s2, 0x10002
    s_lshl_b32 s6, s6, 5
    s_add_u32 s5, s5, s6""",
    """s_and_b32 s4, s2, 1
    s_lshl_b32 s4, s4, 1
    s_bfe_u32 s6, s2, 0x10003
    s_add_u32 s4, s4, s6
    s_lshr_b32 s5, s2, 4
    s_bfe_u32 s6, s2, 0x20001
    s_lshl_b32 s6, s6, 4
    s_add_u32 s5, s5, s6""",
    """s_bfe_u32 s4, s2, 0x20003
    s_lshr_b32 s5, s2, 5
    s_and_b32 s6, s2, 7
    s_lshl_b32 s6, s6, 3
    s_add_u32 s5, s5, s6"""]

def prologue(a):
    a(f"""
    s_cmp_ge_u32 s2, 256
    s_cbranch_scc1 L_end
    s_load_dwordx16 s[16:31], s[0:1], 0
    s_load_dwordx8 s[32:39], s[0:1], 64
    """)
    if a.prof: a("s_memrealtime s[84:85]\ns_memtime s[92:93]\nv_mov_b32 v15, 0")
    a(f"""
    v_lshrrev_b32 v2, 6, v0
    v_and_b32 v1, 63, v0
    v_lshlrev_b32 v4, 4, v0
    v_readfirstlane_b32 s3, v2
    v_mov_b32 v3, 0
    s_lshl_b32 s9, s2, 4
    s_add_u32 s9, s9, s3
    s_cmp_lg_u32 s9, 14
    s_cbranch_scc1 L_i0
    s_memrealtime s[12:13]
    s_waitcnt lgkmcnt(0)
    s_mul_i32 s14, s12, 0x9E3779B1
    s_mul_i32 s12, s12, 0x85EBCA6B
    s_xor_b32 s13, s13, s12
    s_bitset1_b32 s13, 31
    v_mov_b32 v8, s14
    v_mov_b32 v9, s13
    s_mov_b64 exec, 1
    global_store_dwordx2 v3, v[8:9], s[36:37] offset:136 sc1
    s_mov_b64 exec, -1
L_i0:
    v_lshrrev_b32 v6, 3, v0
    v_mul_u32_u24 v6, 384, v6
    v_and_b32 v7, 7, v0
    v_lshl_add_u32 v6, v7, 4, v6
    v_add_u32 v6, {IMG+256}, v6
    v_subrev_u32 v7, {512*16}, v4
    s_cmp_lt_u32 s3, 8
    s_cselect_b32 s9, {MARK:#x}, 0
    v_mov_b32 v20, s9
    v_mov_b32 v21, s9
    v_mov_b32 v22, s9
    v_mov_b32 v23, s9
    s_cbranch_scc1 L_i1
    v_mov_b32 v6, v7
L_i1:
    s_cmp_ge_u32 s3, 12
    s_cbranch_scc1 L_i2
    ds_write_b128 v6, v[20:23]
L_i2:
    {MAP[2 if 'map4' in a.opt else 1 if 'map2' in a.opt else 0]}
    v_subrev_u32 v3, {320*16}, v4
    v_lshlrev_b32 v4, 1, v3
    s_mul_i32 s6, s2, {CH*4}
    s_lshl_b32 s7, s6, 1
    s_movk_i32 s8, {CH*4}
    s_cmp_eq_u32 s2, 255
    s_cselect_b32 s8, {(E-255*CH)*4}, s8
    v_cmp_gt_u32 s[10:11], s8, v3
    v_lshrrev_b32 v5, 2, v1
    v_and_b32 v6, 3, v1
    v_lshlrev_b32 v6, 4, v6
    v_lshl_or_b32 v5, v5, 8, v6
    v_lshrrev_b32 v6, 4, v1
    v_and_b32 v7, 15, v1
    v_xor_b32 v16, v7, v6
    v_lshlrev_b32 v6, 8, v6
    v_lshl_or_b32 v16, v16, 4, v6
    v_mov_b32 v2, 1
    v_mov_b32 v30, {FLAG}
    s_cmp_lt_u32 s3, 5
    s_cbranch_scc1 L_i3
    s_setprio 2
L_i3:
    s_waitcnt lgkmcnt(0)
    s_barrier
    """)
    a.srd(SX, 16, N*256)
    a(f"""
    s_cmp_ge_u32 s3, 5
    s_cbranch_scc1 L_l0
    s_cmp_eq_u32 s3, 4
    s_cbranch_scc1 L_e1
    s_cmp_eq_u32 s3, 0
    s_cselect_b64 s[12:13], s[26:27], s[32:33]
    s_cmp_eq_u32 s3, 2
    s_cselect_b64 s[12:13], s[24:25], s[12:13]
    s_cmp_eq_u32 s3, 3
    s_cselect_b64 s[12:13], s[30:31], s[12:13]
    """)
    a.srd(SW, 12, 32768)
    a(f"""
    s_lshl_b32 s15, s3, 13
    s_lshl_b32 s14, s4, 6
    """)
    for q in range(8):
        if q % 4 == 0: a(f"s_add_u32 m0, s15, {WL + q*1024}")
        a(f"s_add_u32 s12, s14, {q*4096 - (q%4)*1024}\nbuffer_load_dwordx4 v5, {R(SW)}, s12 offen offset:{(q%4)*1024} lds")
    a("L_e1:")
    if a.T:
        allsrds(a)
        a(f"""
        s_cmp_lt_u32 s3, {a.T}
        s_cbranch_scc1 L_e2
        s_mov_b64 exec, 1
        s_waitcnt vmcnt(0)
        ds_add_u32 v30, v2 offset:{WCNT-FLAG}
        s_mov_b64 exec, -1
        s_branch L_xw
L_e2:
        """)
    if a.EE:
        allsrds(a)
        a(f"""
        s_cmp_lt_u32 s3, {a.EE}
        s_cbranch_scc1 L_e3
        s_mov_b64 exec, 1
        s_waitcnt vmcnt(0)
        ds_add_u32 v30, v2 offset:{WCNT-FLAG}
        s_mov_b64 exec, -1
        s_mov_b32 s19, 2
        s_branch L_xg
L_e3:
        """)
    xdma(a, "L_nx1")
    if not a.T and not a.EE: allsrds(a)
    a(f"""
    s_mov_b64 exec, 1
    s_waitcnt vmcnt(8)
    ds_add_u32 v30, v2 offset:{WCNT-FLAG}
    s_mov_b64 exec, -1
    s_branch L_g
L_l0:
    s_cmp_ge_u32 s3, 13
    s_cbranch_scc1 L_h0
    """)
    a.srd(SDST, 22, E*4); a.srd(SSRC, 20, E*4); a.srd(SEA, 18, E*8)
    a(f"""
    s_cmp_eq_u64 s[10:11], 0
    s_cbranch_scc1 L_noedge
    s_mov_b64 exec, s[10:11]
    buffer_load_dwordx4 v[8:11], v3, {R(SDST)}, s6 offen
    buffer_load_dwordx4 v[40:43], v3, {R(SSRC)}, s6 offen
    buffer_load_dwordx4 v[32:35], v4, {R(SEA)}, s7 offen
    buffer_load_dwordx4 v[36:39], v4, {R(SEA)}, s7 offen offset:16
    s_mov_b64 exec, -1
L_noedge:
    """)
    a.srd(SWC, 28, 1024)
    srds(a)

def tags(a):
    a(f"""
    v_and_b32 v45, 7, v1
    v_cmp_eq_u32 vcc, 0, v45
    v_lshlrev_b32 v45, 2, v45
    v_lshrrev_b64 v[46:47], v45, v[46:47]
    v_mov_b32 v44, {TAGM:#x}
    v_cndmask_b32 v44, v44, 2, vcc
    v_and_b32 v40, v44, v46
    v_lshrrev_b32 v41, 5, v46
    v_lshrrev_b32 v42, 10, v46
    v_lshrrev_b32 v43, 15, v46
    v_and_b32 v41, {TAGM:#x}, v41
    v_and_b32 v42, {TAGM:#x}, v42
    v_and_b32 v43, {TAGM:#x}, v43
    """)

def phase_p(a):
    M = ("s[12:13]", "s[14:15]", "s[20:21]", "s[22:23]")
    a(f"""
    s_cmp_eq_u64 s[10:11], 0
    s_cbranch_scc1 L_p_done
    s_mov_b64 exec, s[10:11]
    s_mov_b32 s16, 42800
    s_mov_b32 s17, {(-MARK) & 0xffffffff:#x}
    s_movk_i32 s18, 384
    v_mov_b32 v3, {IMG}
    s_waitcnt vmcnt(3)
    """)
    for j in range(4): a(f"v_mul_u32_u24 v{44+j}, s16, v{8+j}")
    for j in range(4): a(f"v_lshrrev_b32 v{44+j}, 24, v{44+j}")
    for j in range(4): a(f"v_lshlrev_b32 v{48+j}, 2, v{44+j}\nds_add_rtn_u32 v{20+j}, v{48+j}, v2 offset:{PCNT}")
    for j in range(4):
        a(f"""
        v_mul_u32_u24 v{48+j}, {BN*4}, v{44+j}
        v_lshl_add_u32 v{8+j}, v{8+j}, 2, s17
        v_sub_u32 v{8+j}, v{8+j}, v{48+j}
        v_mad_u32_u24 v{48+j}, v{44+j}, s18, v3
        """)
    a("s_waitcnt vmcnt(2)")
    for j in range(4): a(f"v_lshl_add_u32 v{8+j}, v{40+j}, 16, v{8+j}")
    for j in range(4):
        a(f"""
        s_waitcnt lgkmcnt({3-j})
        v_add_u32 v{52+j}, v{20+j}, v{44+j}
        v_cmp_gt_u32 {M[j]}, 32, v{20+j}
        v_and_b32 v{52+j}, 31, v{52+j}
        v_lshl_add_u32 v{52+j}, v{52+j}, 2, v{48+j}
        """)
    for j in range(4): a(f"s_mov_b64 exec, {M[j]}\nds_add_u32 v{52+j}, v{8+j} offset:256")
    for j in range(4):
        if j % 2 == 0: a(f"s_waitcnt vmcnt({1 - j//2})")
        a(f"s_mov_b64 exec, {M[j]}\nds_write2_b32 v{52+j}, v{32+2*j}, v{33+2*j} offset0:0 offset1:32")
    for j in range(4):
        rk, bk, base, sd, lo, hi = 20+j, 44+j, 48+j, 8+j, 32+2*j, 33+2*j
        a(f"""
        s_andn2_b64 exec, s[10:11], {M[j]}
        s_cbranch_execz L_po{j}
        ds_add_rtn_u32 v28, v30, v2 offset:{OVC-FLAG}
        v_mov_b32 v24, v{lo}
        v_mov_b32 v25, v{hi}
        v_add_u32 v26, {MARK:#x}, v{sd}
        v_lshlrev_b32 v27, 9, v{bk}
        v_lshl_add_u32 v27, v{rk}, 4, v27
        v_mov_b32 v29, 0x800
        s_waitcnt lgkmcnt(0)
        v_max_u32 v31, v28, v{rk}
        v_cmp_lt_u32 vcc, 62, v31
        v_lshlrev_b32 v28, 4, v28
        v_add_u32 v28, {OVL}, v28
        s_andn2_b64 s[24:25], exec, vcc
        s_mov_b64 exec, vcc
        ds_or_b32 v30, v2
        s_mov_b64 exec, s[24:25]
        ds_add_u32 v{base}, v29 offset:256
        ds_write_b128 v28, v[24:27]
L_po{j}:
        """)
    a(f"""
L_p_done:
    s_mov_b64 exec, 1
    ds_add_u32 v30, v2 offset:{PC1-FLAG}
    s_mov_b64 exec, -1
    s_setprio 0
    """)
    a.stamp('p_w')
    if 'xpf' in a.opt: a(f"""
    s_cmp_lg_u32 s3, 12
    s_cbranch_scc1 L_xpf
    s_mul_i32 s14, s5, {BN*256}
    s_mul_i32 s15, s4, {232*64}
    s_add_u32 s14, s14, s15
    s_add_u32 s14, s14, {160*256}
    s_add_u32 s15, s14, {116*64}
    v_lshlrev_b32 v8, 6, v1
    s_mov_b32 exec_hi, {(1 << 26) - 1:#x}
    buffer_load_dword v9, v8, {R(SX)}, s14 offen
    buffer_load_dword v9, v8, {R(SX)}, s14 offen offset:{58*64}
    buffer_load_dword v9, v8, {R(SX)}, s15 offen
    buffer_load_dword v9, v8, {R(SX)}, s15 offen offset:{58*64}
    s_mov_b32 exec_hi, -1
    s_waitcnt vmcnt(0)
L_xpf:
    """)
    if a.XE: a(f"s_cmp_lt_u32 s3, {a.XE}\ns_cbranch_scc1 L_xgd")
    if a.YE: a(f"s_cmp_lt_u32 s3, {a.YE}\ns_cselect_b32 s19, 2, 3")
    if 'noxgo' not in a.opt: spin(a, "L_xg", 30, XGO-FLAG, "ge", "s19" if a.YE else 3)
    if a.T:
        a(f"L_xw:\ns_sub_u32 s19, s3, {a.T-1}\ns_cselect_b32 s19, 0, s19")
        spin(a, "L_xt", 30, XL-FLAG, "ge", "s19")
    a.stamp('xgo')
    xdma(a, "L_nx2")
    a(f"""
    s_branch L_g
L_h0:
    """)
    allsrds(a)
    a(f"""
    v_lshlrev_b32 v4, 4, v1
    s_mul_i32 s16, s2, 24576
    v_mov_b32 v3, 0
    s_movk_i32 s17, 384
    s_cmp_eq_u32 s3, 13
    s_cbranch_scc1 L_h13
    v_lshrrev_b32 v8, 4, v1
    v_lshlrev_b32 v9, 4, v7
    v_mad_u32_u24 v8, v8, s17, v9
    s_cmp_lg_u32 s3, 15
    s_cbranch_scc1 L_h2
    v_add_u32 v8, {32*384}, v8
    v_lshl_or_b32 v6, v7, 2, v6
    s_movk_i32 m0, {WCL}
    s_lshl_b32 s9, s4, 6
    buffer_load_dword v6, {R(SWC)}, s9 offen lds
L_h2:
    v_add_u32 v9, {IMG}, v8
    s_add_u32 s17, s16, {3*1536}
    s_add_u32 s19, s16, {6*1536}
    s_setprio 0
    """)
    spin(a, "L_hp", 30, PC1-FLAG, "ge", 8)
    a("s_setprio 3")
    a.stamp('b1')
    for i in range(8): a(f"ds_read_b128 v[{64+4*i}:{67+4*i}], v9 offset:{i*1536}")
    for i in range(8):
        a(f"s_waitcnt lgkmcnt({7-i})\nbuffer_store_dwordx4 v[{64+4*i}:{67+4*i}], v8, {R(SSEG)}, s{(16,17,19)[i//3]} offen offset:{(i%3)*1536} sc1")
    a(f"""
    s_mov_b64 exec, 1
    ds_add_u32 v30, v2 offset:{XGO-FLAG}
    """)
    a.stamp('imi')
    a(f"""
    s_waitcnt vmcnt(0)
    ds_add_u32 v30, v2 offset:{PC2-FLAG}
    s_branch L_pso
L_h13:
    v_lshrrev_b32 v8, 3, v1
    v_and_b32 v9, 0x70, v4
    v_mad_u32_u24 v8, v8, s17, v9
    v_add_u32 v9, {IMG+256}, v8
    v_add_u32 v5, {OVL}, v4
    s_mov_b32 s18, 0x40000
L_tag:
    buffer_load_dwordx2 v[46:47], v3, {R(SDBG)}, 0 offen offset:136 sc1
    s_waitcnt vmcnt(0)
    v_cmp_eq_u32 vcc, 0, v47
    s_sub_u32 s18, s18, 1
    s_cbranch_scc1 L_tagd
    s_cbranch_vccz L_tagd
    s_sleep 1
    s_branch L_tag
L_tagd:
    v_or_b32 v47, 0x80000000, v47
    ds_write_b64 v30, v[46:47] offset:{NONCE-FLAG}
    """)
    a.stamp('tag')
    tags(a)
    a("s_setprio 0")
    spin(a, "L_hq", 30, PC1-FLAG, "ge", 8)
    a(f"""
    s_setprio 3
    ds_read_b96 v[36:38], v30
    ds_read_b128 v[24:27], v5
    """)
    for i in range(8): a(f"ds_read_b128 v[{64+4*i}:{67+4*i}], v9 offset:{i*3072}")
    a(f"""
    s_lshl_b32 s19, s2, 15
    s_add_u32 s19, s19, {OVF-512}
    s_waitcnt lgkmcnt(8)
    v_cmp_gt_u32 s[20:21], v38, v1
    v_cmp_eq_u32 vcc, 0, v36
    v_and_b32 v36, 1, v36
    v_bfi_b32 v36, v44, 0, v36
    v_or_b32 v40, v40, v36
    s_and_b64 exec, s[20:21], vcc
    s_cbranch_scc0 L_psn
    buffer_store_dwordx4 v[24:27], v27, {R(SSEG)}, s19 offen sc1
L_psn:
    s_mov_b64 exec, 1
    ds_add_u32 v30, v2 offset:{(TRASH if 'xsd' in a.opt else XGO)-FLAG}
    s_mov_b64 exec, -1
    """)
    for i in range(8):
        a(f"s_waitcnt lgkmcnt({8-i})")
        for j in range(4): a(f"v_xor_b32 v{64+4*i+j}, v{64+4*i+j}, v{40+j}")
    a("s_waitcnt vmcnt(0)")
    spin(a, "L_hr", 30, PC2-FLAG, "ge", 2)
    for i in range(8):
        a(f"buffer_store_dwordx4 v[{64+4*i}:{67+4*i}], v8, {R(SSEG)}, s16 offen offset:256 sc1")
        if i < 7: a("s_add_u32 s16, s16, 3072")
    if 'xsd' in a.opt: a(f"s_mov_b64 exec, 1\nds_add_u32 v30, v2 offset:{XGO-FLAG}")
    a(f"""
L_pso:
    s_sub_u32 s17, s3, 8
    """)
    a.stamp('sig1')
    if a.HD and 'eh' not in a.opt: spin(a, "L_hd", 30, XD0-FLAG, "ge", a.HD)
    a(f"""
    s_branch L_sw
L_g:
    """)

SD = 48
ACCS = (48, 64, 80, 96)
def phase_g(a):
    a(f"""
    v_and_b32 v20, 31, v1
    v_lshrrev_b32 v21, 5, v1
    s_lshl_b32 s18, s3, 13
    s_add_u32 s18, s18, {XT}
    v_and_b32 v22, 15, v1
    v_xor_b32 v22, v22, v21
    v_lshlrev_b32 v22, 4, v22
    v_lshl_or_b32 v22, v20, 8, v22
    v_add_u32 v4, s18, v22
    v_bfe_u32 v22, v1, 2, 2
    v_lshl_add_u32 v22, v21, 3, v22
    v_lshlrev_b32 v22, 6, v22
    v_and_b32 v23, 16, v1
    v_lshl_add_u32 v22, v23, 1, v22
    v_and_b32 v23, 3, v1
    v_lshl_add_u32 v22, v23, 3, v22
    v_add_u32 v5, {WL}, v22
    v_bfe_u32 v22, v1, 1, 3
    v_xor_b32 v22, v22, v21
    v_lshlrev_b32 v22, 4, v22
    v_lshl_or_b32 v22, v20, 7, v22
    v_add_u32 v6, s18, v22
    v_lshl_add_u32 v7, v1, 4, s18
    v_and_b32 v22, 7, v1
    v_lshrrev_b32 v23, 4, v1
    v_xor_b32 v22, v22, v23
    v_lshlrev_b32 v22, 4, v22
    v_lshrrev_b32 v23, 3, v1
    v_lshl_or_b32 v8, v23, 7, v22
    v_xor_b32 v9, 64, v8
    v_mul_u32_u24 v22, {AUS}, v21
    v_lshl_add_u32 v22, v20, 4, v22
    s_lshl_b32 s18, s3, 9
    s_add_u32 s18, s18, {AU}
    v_add_u32 v10, s18, v22
    v_xor_b32 v11, 32, v6
    v_xor_b32 v12, 64, v6
    v_xor_b32 v13, 0x60, v6
    s_mul_i32 s19, s5, {BN*128}
    s_lshl_b32 s18, s3, 12
    s_add_u32 s19, s19, s18
    s_mov_b32 s20, {NLOG2E:#x}
    s_mov_b32 s21, {NLOG2E:#x}
    s_mov_b32 s22, 0x07060100
    s_mov_b32 s23, 0x07060302
    s_cmp_eq_u32 s3, 12
    s_cselect_b32 s26, 0xff, -1
    s_cselect_b32 s27, 0xff, -1
    """)
    for ks in range(1, 8): a(f"v_xor_b32 v{48+ks}, {ks*32:#x}, v4")
    Q = []
    def ds(txt, tag=None):
        a(txt); Q.append(tag)
    def wait(tag):
        if tag in Q:
            i = max(k for k, t in enumerate(Q) if t == tag)
            n = len(Q) - 1 - i
            assert n <= 15
            a(f"s_waitcnt lgkmcnt({n})")
            del Q[:i+1]
    def frag(t):
        p, ks, mm = t >> 4, (t >> 1) & 7, t & 1
        r = 112 + 4*(t & 3); o = (2*p+mm)*8192 + ks*1024
        ds(f"ds_read_b64_tr_b16 v[{r}:{r+1}], v5 offset:{o}", ('f', t))
        ds(f"ds_read_b64_tr_b16 v[{r+2}:{r+3}], v5 offset:{o+256}", ('f', t))
    spin(a, "L_wc", 30, WCNT-FLAG, "ge", 5)
    for t in range(4): frag(t)
    a("s_waitcnt vmcnt(0) lgkmcnt(0)"); Q.clear()
    if a.T:
        a("s_mov_b64 exec, 1"); ds(f"ds_add_u32 v30, v2 offset:{XL-FLAG}"); a("s_mov_b64 exec, -1")
    a.stamp('xl')
    for ks in range(8): ds(f"ds_read_b128 v[{16+4*ks}:{19+4*ks}], v{4 if ks == 0 else 48+ks}", ('x', ks))
    def pack(B, V, i):
        b = B + 4*i; v = V + 4*i
        return [f"v_pk_mul_f32 v[{b}:{b+1}], v[{b}:{b+1}], s[20:21]", f"v_pk_mul_f32 v[{b+2}:{b+3}], v[{b+2}:{b+3}], s[20:21]",
                f"v_cvt_pk_bf16_f32 v{b}, v{b}, v{b+1}", f"v_cvt_pk_bf16_f32 v{b+1}, v{b+2}, v{b+3}",
                f"v_perm_b32 v{v}, v{v}, v{b}, s22", f"v_perm_b32 v{v+1}, v{v+1}, v{b}, s23",
                f"v_perm_b32 v{v+2}, v{v+2}, v{b+1}, s22", f"v_perm_b32 v{v+3}, v{v+3}, v{b+1}, s23"]
    ep = []
    for i in range(4):
        ep += [('v', x) for x in pack(48, 64, i)]
        ep += [('w', i)]
    ep += [('r', i) for i in range(4)] + [('s', i) for i in range(4)]
    def emit(e):
        k, x = e
        if k == 'v': a(x)
        elif k == 'w':
            a("s_mov_b64 exec, s[26:27]")
            ds(f"ds_write_b128 v{(6, 11, 12, 13)[x]}, v[{64+4*x}:{67+4*x}]")
            a("s_mov_b64 exec, -1")
        elif k == 'r': ds(f"ds_read_b128 v[{48+4*x}:{51+4*x}], v7 offset:{x*1024}", ('r', x))
        elif k == 's':
            wait(('r', x))
            if x: a(f"s_cbranch_scc1 L_gs{x}")
            a(f"buffer_store_dwordx4 v[{48+4*x}:{51+4*x}], v{8+(x&1)}, {R(STABW)}, s19 offen offset:{x*1024} sc1")
            if x: a(f"L_gs{x}:")
    a("s_cmp_eq_u32 s3, 12")
    for t in range(32):
        p, ks, mm = t >> 4, (t >> 1) & 7, t & 1
        wait(('f', t)); wait(('x', ks))
        d = ACCS[2*p+mm]; r = 112 + 4*(t & 3)
        c = "0" if ks == 0 else f"v[{d}:{d+15}]"
        a(f"v_mfma_f32_32x32x16_bf16 v[{d}:{d+15}], v[{r}:{r+3}], v[{16+4*ks}:{19+4*ks}], {c}")
        if t + 4 < 32: frag(t + 4)
        if t >= 18:
            n = 5 if ep and ep[0][0] in 'vw' else (4 if ep and ep[0][0] == 'r' else 1)
            for _ in range(n):
                if ep: emit(ep.pop(0))
    while ep: emit(ep.pop(0))
    a(f"""
    s_cselect_b32 s18, s5, 0
    v_mov_b32 v32, 0x7180
    v_mov_b32 v33, 0x7180
    v_mov_b32 v34, 0x7180
    v_mov_b32 v35, 0x7180
    v_lshlrev_b32 v12, 4, v1
    s_cmp_lg_u32 s18, 63
    s_cbranch_scc1 L_nodum
    s_mov_b32 s18, {DUMMY*128}
    buffer_store_dwordx4 v[32:35], v12, {R(STABW)}, s18 offen sc1
    buffer_store_dwordx4 v[32:35], v12, {R(STABW)}, s18 offen offset:1024 sc1
    buffer_store_dwordx4 v[32:35], v12, {R(STABW)}, s18 offen offset:2048 sc1
    buffer_store_dwordx4 v[32:35], v12, {R(STABW)}, s18 offen offset:3072 sc1
L_nodum:
    s_movk_i32 s18, {XD1}
    s_cmp_lt_u32 s3, 5
    s_cselect_b32 s18, {XD0}, s18
    s_cmp_lt_u32 s3, 9
    s_cselect_b32 s18, s18, {TRASH}
    v_mov_b32 v31, 1
    v_mov_b32 v30, s18
    s_mov_b64 exec, 1
    ds_add_u32 v30, v31
    s_mov_b64 exec, -1
    v_mov_b32 v30, {FLAG}
    """)
    for i in range(4):
        for x in pack(80, 96, i): a(x)
    a.stamp('gd')
    a(f"""
    s_mov_b32 s17, s3
    s_cmp_lt_u32 s3, 5
    s_cbranch_scc1 L_sw
    s_mov_b32 s16, 0
    s_sub_u32 s17, s3, 5
    """)
    consts(a, "L_c1", 30, PC2-FLAG)
    a("s_waitcnt vmcnt(0)")
    sig2(a, "L_sig2a", 30, PC3-FLAG)
    a.stamp('gdr')

def sig2(a, lab, flag, cntoff):
    a(f"""
    s_mov_b64 exec, 1
    ds_add_rtn_u32 v4, v{flag}, v31 offset:{cntoff}
    ds_read_b64 v[6:7], v{flag} offset:{cntoff+NONCE-PC3}
    s_lshl_b32 s18, s4, 9
    s_lshl_b32 s19, s5, 3
    s_add_u32 s18, s18, s19
    s_add_u32 s18, s18, {FL2}
    v_mov_b32 v3, 0
    s_waitcnt lgkmcnt(0)
    v_readfirstlane_b32 s19, v4
    s_cmp_lg_u32 s19, 12
    s_cbranch_scc1 {lab}
    buffer_store_dwordx2 v[6:7], v3, {R(SSEG)}, s18 offen sc1
{lab}:
    s_mov_b64 exec, -1
    """)

RK = 64
def segaddr(a):
    a(f"""
    v_lshrrev_b32 v2, 3, v1
    v_mul_u32_u24 v2, 24576, v2
    v_and_b32 v3, 7, v1
    v_lshl_add_u32 v2, v3, 4, v2
    s_mul_i32 s25, s17, {32*24576}
    s_mul_i32 s19, s5, 384
    s_add_u32 s25, s25, s19
    s_lshl_b32 s28, s17, 12
    v_mov_b32 v34, 1
    """)

def phase_s(a):
    segaddr(a)
    a(f"""
    v_and_b32 v78, {31 if 'dsp' in a.opt else 0}, v1
    v_lshlrev_b32 v78, 16, v78
    v_add_u32 v78, {(DUMMY << 16) | ZSLOT:#x}, v78
    v_lshl_add_u32 v80, s17, 6, v1
    s_movk_i32 s18, {BN}
    v_cmp_gt_u32 s[10:11], s18, v80
    v_lshlrev_b32 v64, 2, v80
    s_branch L_s1
L_sw:
    s_mov_b64 exec, -1
    s_mov_b32 s16, 1
    s_setprio 0
    """)
    segaddr(a)
    a(f"""
    v_mov_b32 v14, {PC3}
    s_add_u32 s31, s25, {1*8*24576}
    s_add_u32 s32, s25, {2*8*24576}
    s_add_u32 s33, s25, {3*8*24576}
    """)
    if a.HD and 'eh' in a.opt: spin(a, "L_hd", 14, XD0-PC3, "ge", a.HD)
    JD = ([int(o[1:]) for o in a.opt if o[:1] == 'J'] + [0])[0]
    if JD: spin(a, "L_jd", 14, XD1-PC3, "ge", JD)
    SQ = (25, 31, 32, 33)
    def sdl(q): a(f"buffer_load_dwordx4 v[{SD+4*q}:{SD+4*q+3}], v2, {R(SSEG)}, s{SQ[q]} offen offset:256 sc1{' nt' if 'snt' in a.opt else ''}")
    for q in range(4): sdl(q)
    a.stamp('sdi')
    consts(a, "L_c2", 14, PC2-PC3)
    a(f"""
L_nw:
    ds_read_b64 v[46:47], v14 offset:{NONCE-PC3}
    s_waitcnt lgkmcnt(0)
    v_readfirstlane_b32 s18, v47
    s_cmp_lg_u32 s18, 0
    s_cbranch_scc1 L_nwd
    s_sleep 1
    s_branch L_nw
L_nwd:
    """)
    tags(a)
    a(f"""
    v_mov_b32 v26, 0
    v_mov_b32 v3, 0
    v_lshlrev_b32 v38, 4, v1
    s_lshl_b32 s22, s17, 20
    s_lshl_b32 s27, s5, 9
    s_add_u32 s22, s22, s27
    s_add_u32 s22, s22, {OVF}
    s_mov_b64 s[6:7], -1
    s_mov_b64 s[8:9], -1
    s_mov_b64 s[10:11], -1
    s_mov_b64 s[12:13], -1
    s_mov_b32 s26, 0x0f0f0f0f
    s_mov_b32 s27, s26
    s_movk_i32 s21, {RETRY}
    s_mov_b32 s23, {TAGM:#x}
    s_cmp_ge_u32 s3, 5
    s_cbranch_scc1 L_sig2b
    s_waitcnt vmcnt(4)
    """)
    sig2(a, "L_sig2b", 14, 0)
    for j in range(0, 16, 2): a(f"v_mov_b64 v[{RK+j}:{RK+j+1}], 0")
    a(f"""
L_sv1:
    s_mov_b32 s20, 0
    s_waitcnt vmcnt(0)
    """)
    for q in range(4):
        d = SD + 4*q
        a(f"""
        s_and_b64 exec, s[{6+2*q}:{7+2*q}], s[{6+2*q}:{7+2*q}]
        s_cbranch_scc0 L_sq{q}
        v_xor_b32 v{d}, v{d}, v40
        v_xor_b32 v{d+1}, v{d+1}, v41
        v_xor_b32 v{d+2}, v{d+2}, v42
        v_xor_b32 v{d+3}, v{d+3}, v43
        v_and_b32 v45, v{d}, v44
        v_or3_b32 v46, v{d+1}, v{d+2}, v{d+3}
        v_and_or_b32 v45, v46, s23, v45
        v_cmp_ne_u32 vcc, 0, v45
        s_wqm_b64 s[{6+2*q}:{7+2*q}], vcc
        s_cbranch_scc0 L_sq{q}
        s_lshr_b64 s[14:15], s[{6+2*q}:{7+2*q}], 4
        s_or_b64 s[{6+2*q}:{7+2*q}], s[{6+2*q}:{7+2*q}], s[14:15]
        s_and_b64 s[{6+2*q}:{7+2*q}], s[{6+2*q}:{7+2*q}], s[26:27]
        s_lshl_b64 s[14:15], s[{6+2*q}:{7+2*q}], 4
        s_or_b64 s[{6+2*q}:{7+2*q}], s[{6+2*q}:{7+2*q}], s[14:15]
        s_mov_b64 exec, s[{6+2*q}:{7+2*q}]
        s_mov_b32 s20, 1
        """)
        sdl(q)
        a(f"L_sq{q}:")
    a(f"""
    s_mov_b64 exec, -1
    s_cmp_eq_u32 s20, 0
    s_cbranch_scc1 L_svd
    s_sub_u32 s21, s21, 1
    s_cbranch_scc0 L_sv1
    s_waitcnt vmcnt(0)
    v_mov_b32 v39, {FLAG}
    ds_or_b32 v39, v34
    """)
    for j in range(16): a(f"v_mov_b32 v{SD+j}, {MARK:#x}")
    a(f"""
L_svd:
    """)
    a.stamp('s_sd')
    a("v_bfe_u32 v45, v52, 11, 5\nv_bfe_u32 v46, v56, 11, 5\nv_bfe_u32 v47, v60, 11, 5\nv_bfe_u32 v36, v48, 11, 5")
    for q in range(1, 4):
        a(f"v_mov_b32_dpp v{44+q}, v{44+q} row_shr:{q} row_mask:0xf bank_mask:0xf bound_ctrl:0")
    a("v_or_b32 v36, v36, v45\nv_or3_b32 v36, v36, v46, v47")
    a(f"""
    v_or3_b32 v45, v48, v52, v56
    v_or_b32 v45, v45, v60
    v_cmp_ne_u32 s[14:15], 0, v36
    v_and_b32 v45, 1, v45
    v_mov_b32 v39, {FLAG}
    v_mov_b32 v28, 0
    v_mov_b32 v29, 0
    v_mov_b32 v30, {MARK:#x}
    s_mov_b32 s24, 0
    v_cmpx_ne_u32 vcc, 0, v45
    ds_or_b32 v39, v34
    """)
    def ranks(q):
        for j in range(4*q, 4*q+4):
            a(f"""
            v_and_b32 v{80+j}, 0x7fc, v{SD+j}
            v_cmpx_le_i32 vcc, 0, v{SD+j}
            ds_add_rtn_u32 v{RK+j}, v{80+j}, v34 offset:{CNT}
            s_mov_b64 exec, -1
            """)
    a(f"""
    s_cbranch_vccnz L_ovd
L_ov:
    s_cmp_eq_u64 s[14:15], 0
    s_cbranch_scc1 L_ovd
    s_ff1_i32_b64 s23, s[14:15]
    s_bitset0_b64 s[14:15], s23
    v_readlane_b32 s26, v36, s23
    s_and_b32 s27, s23, 7
    s_lshl_b32 s27, s27, 18
    s_lshr_b32 s23, s23, 3
    s_lshl_b32 s23, s23, 15
    s_add_u32 s23, s23, s27
    s_add_u32 s23, s23, s22
    s_lshl_b32 s27, s24, 4
    s_sub_u32 s23, s23, s27
    s_bfm_b64 exec, s26, s24
    s_add_u32 s24, s24, s26
    s_cmp_gt_u32 s24, 63
    s_cbranch_scc1 L_ovbad
    buffer_load_dwordx4 v[28:31], v38, {R(SSEG)}, s23 offen sc1
    s_branch L_ov
L_ovbad:
    s_mov_b64 exec, 1
    ds_or_b32 v39, v34
L_ovd:
    s_mov_b64 exec, -1
    """)
    a.stamp('s_ov')
    def ead(base, go, i):
        if i % 2 == 0: a(f"s_add_u32 m0, s28, {base}")
        a(f"s_add_u32 s19, s25, {i*8*24576 - i*1024 + go}\nbuffer_load_dwordx4 v2, {R(SSEG)}, s19 offen offset:{i*1024} sc1 lds")
    if 'eafirst' not in a.opt:
        for q in range(4): ranks(q)
    EQ = [(EALO, 0, i) for i in range(4)] + [(EAHI, 128, i) for i in range(4)]
    AL = ([o[1:] for o in a.opt if o[:1] == 'A'] + ['4220'])[0]
    def eaq(n):
        for _ in range(n):
            b, g, i = EQ.pop(0)
            a(f"s_add_u32 m0, s28, {b}\ns_add_u32 s19, s25, {i*8*24576 - i*1024 + g}\nbuffer_load_dwordx4 v2, {R(SSEG)}, s19 offen offset:{i*1024} sc1{' nt' if 'ent' in a.opt else ''} lds")
    nea = int(AL[0])
    if nea: spin(a, "L_e5", 14, XD0-PC3, "ge", 5)
    eaq(nea)
    if 'eapre' in a.opt:
        spin(a, "L_e9", 14, XD1-PC3, "ge", 4)
        for i in range(4): ead(EAHI, 128, i)
        nea = 8
    a.stamp('s_ea')
    if 'eafirst' in a.opt:
        for q in range(4): ranks(q)
    a(f"""
    v_lshlrev_b32 v37, 2, v1
    s_lshl_b32 s18, s17, 8
    s_add_u32 s18, s18, 32768
    v_add_u32 v37, s18, v37
    s_mov_b32 s18, 0xffff0000
    v_lshl_add_u32 v36, v1, 4, s28
    """)
    for j in range(16):
        off = (j >> 2) * 1024 + (j & 3) * 4
        if off:
            a(f"v_add_u32 v38, {off}, v36\nv_and_or_b32 v{SD+j}, v{SD+j}, s18, v38")
        else:
            a(f"v_and_or_b32 v{SD+j}, v{SD+j}, s18, v36")
    a(f"""
    s_waitcnt vmcnt({nea})
    v_and_b32 v27, 0x7fc, v30
    v_cmpx_le_i32 vcc, 0, v30
    ds_add_rtn_u32 v26, v27, v34 offset:{CNT}
    s_mov_b64 exec, -1
    v_and_or_b32 v30, v30, s18, v37
    """)
    a(f"""
L_s1:
    v_lshlrev_b32 v35, 2, v1
    s_lshl_b32 s35, s16, 3
    s_or_b32 s35, s35, s17
    s_cmp_eq_u32 s3, 12
    s_cselect_b32 s26, 0xff, -1
    s_cselect_b32 s27, 0xff, -1
    s_waitcnt lgkmcnt(0)
    """)
    a.stamp('s_pb')
    a("s_barrier")
    a.stamp('s1')
    def auw():
        a("s_mov_b64 exec, s[26:27]")
        for i in range(4): a(f"ds_write_b128 v10, v[{96+4*i}:{99+4*i}] offset:{i*2*AUS}")
        a("s_mov_b64 exec, -1")
    a(f"""
    s_cmp_eq_u32 s16, 1
    s_cbranch_scc1 L_s2e
    ds_read_b32 v66, v64 offset:{CNT}
    """)
    if 'eapre' not in a.opt and 'eas' not in a.opt:
        for i in range(4): ead(EAHI, 128, i)
    a(f"""
    s_waitcnt lgkmcnt(0)
    v_min_u32 v67, 63, v66
    v_sub_u32 v67, 63, v67
    v_lshlrev_b32 v67, 2, v67
    s_mov_b64 exec, s[10:11]
    ds_add_rtn_u32 v68, v67, v34 offset:{HIST}
    """)
    auw()
    a(f"""
    s_waitcnt lgkmcnt(4)
    s_barrier
    s_branch L_s2d
L_s2e:
    """)
    eaq(int(AL[1]))
    a(f"""
    s_barrier
    """)
    eaq(int(AL[2]))
    def tpf(sb):
        a(f"""
        s_mul_i32 s18, s{sb}, {BN*128}
        s_mul_i32 s19, s17, {98*64}
        s_add_u32 s18, s18, s19
        s_add_u32 s19, s18, 4096
        v_lshlrev_b32 v5, 6, v1
        buffer_load_dword v127, v5, {R(STABW)}, s18 offen sc1
        s_mov_b32 exec_hi, 3
        buffer_load_dword v127, v5, {R(STABW)}, s19 offen sc1
        s_mov_b32 exec_hi, -1
        """)
    if 'pf4' in a.opt: a(f"""
    s_xor_b32 s29, s5, 32
    s_lshl_b32 s18, s4, 9
    s_lshl_b32 s19, s29, 3
    s_add_u32 s18, s18, s19
    s_add_u32 s18, s18, {FL2}
    v_mov_b32 v3, 0
    ds_read_b64 v[8:9], v14 offset:{NONCE-PC3}
    buffer_load_dwordx2 v[12:13], v3, {R(SSEG)}, s18 offen sc1
    """)
    if 'pf3' in a.opt: tpf(5)
    a(f"""
    ds_write2st64_b32 v37, v28, v29 offset0:{EALO//256} offset1:{EAHI//256}
    s_cmp_ge_u32 s3, 13
    s_cbranch_scc1 L_s2f
    """)
    auw()
    a(f"""
L_s2f:
L_s2d:
    """)
    a.stamp('s2')
    a(f"""
    s_cmp_gt_u32 s35, 6
    s_cbranch_scc1 L_s3d
    ds_read_b32 v69, v35 offset:{HIST}
    s_waitcnt lgkmcnt(0)
    v_mov_b32 v70, v69
    """)
    a.scan(70)
    a(f"""
    v_sub_u32 v70, v70, v69
    ds_bpermute_b32 v70, v67, v70
    v_max_u32 v65, 2, v66
    s_waitcnt lgkmcnt(0)
    v_add_u32 v70, v70, v68
    v_and_b32 v71, 7, v70
    v_lshrrev_b32 v72, 7, v70
    v_bfe_u32 v73, v70, 3, 4
    v_bfe_i32 v74, v70, 7, 1
    v_and_b32 v74, 15, v74
    v_xor_b32 v73, v73, v74
    v_lshl_add_u32 v74, v73, 2, v72
    v_lshlrev_b32 v74, 2, v74
    v_lshl_add_u32 v73, v73, 3, v71
    v_lshlrev_b32 v73, 3, v73
    v_lshl_add_u32 v73, v72, 1, v73
    s_mov_b64 exec, s[10:11]
    ds_max_u32 v74, v65 offset:{LEN}
    ds_write_b16 v73, v80 offset:{PERM}
    s_mov_b64 exec, -1
L_s3d:
    s_waitcnt lgkmcnt(0)
    s_barrier
    """)
    a(f"""
    ds_read_b32 v40, v35 offset:{LEN}
    v_mov_b32 v42, {FLAG}
    ds_read_b32 v42, v42
    s_lshl_b32 s18, s3, 2
    s_add_u32 s19, s18, 1
    s_add_u32 s20, s18, 2
    s_add_u32 s21, s18, 3
    s_waitcnt lgkmcnt(0)
    v_mov_b32 v41, v40
    v_readfirstlane_b32 s22, v42
    """)
    a.scan(41)
    a(f"""
    s_nop 0
    v_readlane_b32 s23, v41, 63
    v_sub_u32 v41, v41, v40
    v_readlane_b32 s30, v40, s18
    v_readlane_b32 s31, v40, s19
    v_readlane_b32 s32, v40, s20
    v_readlane_b32 s33, v40, s21
    v_readlane_b32 s34, v41, s18
    s_cmp_gt_u32 s23, {ROWCAP}
    s_cselect_b32 s22, 1, s22
    s_cmp_lg_u32 s22, 0
    s_cbranch_scc1 L_slow
    """)
    if a.force_slow: a("s_branch L_slow")
    a(f"""
    s_cmp_gt_u32 s35, 6
    s_cbranch_scc1 L_s4e
    ds_bpermute_b32 v70, v74, v41
    ds_bpermute_b32 v75, v74, v40
    v_lshlrev_b32 v71, 2, v71
    v_add_u32 v71, {ELL}, v71
    v_mov_b32 v72, {CNT+0x7fc}
    v_mov_b32 v73, {TRASH}
    ds_write_b32 v72, v73
    s_waitcnt lgkmcnt(0)
    v_lshl_add_u32 v70, v70, 5, v71
    s_mov_b64 exec, s[10:11]
    ds_write_b32 v64, v70 offset:{CNT}
    s_mov_b64 exec, -1
    s_branch L_s4d
L_s4e:
    """)
    if int(AL[3]):
        a("s_cmp_lg_u32 s16, 1\ns_cbranch_scc1 L_s4d")
        eaq(int(AL[3]))
    a(f"""
L_s4d:
    s_waitcnt lgkmcnt(0)
    s_barrier
    """)
    a.stamp('s4')
    a(f"""
    s_cmp_eq_u32 s16, 1
    s_cbranch_scc1 L_s5
    """)
    if 'ep2' in a.opt: poll2i(a, "a")
    a(f"""
    v_lshl_add_u32 v76, v66, 5, v70
    v_lshl_add_u32 v77, v75, 5, v70
    s_mov_b64 exec, s[10:11]
L_pad:
    v_cmpx_lt_u32 vcc, v76, v77
    s_cbranch_execz L_padd
    ds_write_b32 v76, v78
    v_add_u32 v76, 32, v76
    s_branch L_pad
L_padd:
    s_mov_b64 exec, -1
    """)
    if 'pfo2' in a.opt: a(f"""
    s_mul_i32 s18, s5, {BN*128}
    s_mul_i32 s19, s17, {98*64}
    s_add_u32 s18, s18, s19
    s_add_u32 s19, s18, 4096
    v_lshlrev_b32 v5, 6, v1
    buffer_load_dword v127, v5, {R(STABW)}, s18 offen sc1
    s_mov_b32 exec_hi, 3
    buffer_load_dword v127, v5, {R(STABW)}, s19 offen sc1
    s_mov_b32 exec_hi, -1
    """)
    a(f"""
    s_branch L_s5d
L_s5:
    """)
    if 'pf4' in a.opt:
        a("s_waitcnt vmcnt(2)\nv_cmp_ne_u64 vcc, v[8:9], v[12:13]\ns_cbranch_vccnz L_s5n")
        tpf(29)
        a("L_s5n:")
    for h in range(2):
        for j in range(8*h, 8*h+8): a(f"ds_read_b32 v{80+j}, v{80+j} offset:{CNT}")
        eaq(len(EQ))
        if h == 1: a(f"ds_read_b32 v27, v27 offset:{CNT}")
        for j in range(8*h, 8*h+8):
            a(f"s_waitcnt lgkmcnt({7+h})\nv_lshl_add_u32 v{80+j}, v{RK+j}, 5, v{80+j}\nds_write_b32 v{80+j}, v{SD+j}")
    a(f"""
    s_waitcnt lgkmcnt(8)
    v_lshl_add_u32 v27, v26, 5, v27
    ds_write_b32 v27, v30
L_s5d:
    """)
    msetup(a)
    xy = 0 if 'xlate' in a.opt else 1
    poll2(a, "a", xy if 'ep2' in a.opt else None)
    if 'pf4' in a.opt: a("s_waitcnt lgkmcnt(0)")
    else: a(f"s_cmp_lg_u32 s16, 1\ns_cbranch_scc1 L_s5w\ns_waitcnt vmcnt({xy + (2 if 'pf3' in a.opt else 0)})\nL_s5w:\ns_waitcnt lgkmcnt(0)")
    sel(a, AP, UR, CK if a.pair else 0)
    a.stamp('s5p')
    a("s_barrier")

def consts(a, lab, va, off):
    spin(a, lab, va, off, 'ge', 2, 84)
    a(f"""
    v_and_b32 v92, 7, v1
    v_lshrrev_b32 v93, 4, v1
    v_lshl_add_u32 v88, v92, 2, v93
    v_lshlrev_b32 v88, 1, v88
    ds_read_u16 v84, v88 offset:{WCL}
    ds_read_u16 v85, v88 offset:{WCL+64}
    ds_read_u16 v86, v88 offset:{WCL+128}
    ds_read_u16 v87, v88 offset:{WCL+192}
    v_bfe_u32 v94, v1, 2, 2
    v_and_b32 v95, 3, v1
    v_cmp_eq_u32 s[36:37], v93, v95
    v_mul_u32_u24 v{CAU}, {AUS}, v92
    v_add_u32 v{CAU}, {AU}, v{CAU}
    s_mul_i32 s18, s5, {BN*256}
    s_lshl_b32 s19, s4, 6
    s_add_u32 s18, s18, s19
    v_lshl_add_u32 v{COUT}, v92, 3, s18
    v_cmp_eq_u32 vcc, v94, v93
    v_mov_b32 v89, 0x3f80
    v_mov_b32 v90, 4
    {'v_mov_b32 v90, v95' if 'f4' in a.opt else 'v_cndmask_b32 v90, v90, v95, vcc'}
    v_cmp_eq_u32 s[18:19], 0, v90
    v_cmp_eq_u32 s[20:21], 1, v90
    v_cmp_eq_u32 vcc, 2, v90
    v_cndmask_b32 v{SEL}, 0, v89, s[18:19]
    v_cmp_eq_u32 s[18:19], 3, v90
    v_cndmask_b32 v{SEL+1}, 0, v89, s[20:21]
    v_cndmask_b32 v{SEL+2}, 0, v89, vcc
    v_cndmask_b32 v{SEL+3}, 0, v89, s[18:19]
    ; identity for 4x4x4: lane i=l&3 holds row i
    v_cmp_gt_u32 vcc, 2, v95
    v_and_b32 v91, 1, v95
    v_lshlrev_b32 v91, 4, v91
    v_lshlrev_b32 v91, v91, v89
    v_cndmask_b32 v{IDM}, 0, v91, vcc
    v_xor_b32 v{IDM+1}, v{IDM}, v91
    s_mov_b32 s20, {NLOG2E:#x}
    s_mov_b32 s21, {NLOG2E:#x}
    v_and_b32 v88, 8, v1
    v_cmp_eq_u32 vcc, 0, v88
    s_waitcnt lgkmcnt(0)
    v_lshlrev_b32 v84, 16, v84
    v_lshlrev_b32 v85, 16, v85
    v_lshlrev_b32 v86, 16, v86
    v_lshlrev_b32 v87, 16, v87
    v_pk_mul_f32 v[84:85], v[84:85], s[20:21]
    v_pk_mul_f32 v[86:87], v[86:87], s[20:21]
    v_cvt_pk_bf16_f32 v84, v84, v85
    v_cvt_pk_bf16_f32 v85, v86, v87
    v_cndmask_b32 v{WC+0}, 0, v84, vcc
    v_cndmask_b32 v{WC+1}, 0, v85, vcc
    v_xor_b32 v{WC+2}, v{WC+0}, v84
    v_xor_b32 v{WC+3}, v{WC+1}, v85
    """)

def msetup(a):
    D = a.D
    eps = f2u(1e-6 * 2.0**KS) if a.pair else EPS
    a(f"""
    v_lshrrev_b32 v2, 3, v1
    s_lshl_b32 s19, s3, 6
    v_lshl_add_u32 v7, v2, 3, s19
    ds_read_b64 {v2(IDS)}, v7 offset:{PERM}
    v_bfe_u32 v4, v1, 2, 2
    v_and_b32 v3, 7, v1
    v_lshlrev_b32 v{IDX+1}, 4, v3
    v_lshlrev_b32 v{IDX+3}, 4, v3
    s_lshl_b32 s18, s34, 5
    s_add_u32 s18, s18, {ELL}
    s_add_u32 s19, s18, 2
    v_lshl_add_u32 v{PTR}, v2, 2, s19
    v_lshl_add_u32 v{PTR+1}, v4, 3, s18
    s_movk_i32 s35, 256
    s_movk_i32 s38, {D*32}
    s_movk_i32 s39, {D*32}
    s_mov_b32 s28, {eps:#x}
    s_mov_b32 s29, {eps:#x}
    s_sub_u32 s24, s30, 2
    """)
    if a.pair:
        a(f"s_mov_b32 s26, {f2u(2.0**-KS):#x}\ns_mov_b32 s27, s26\ns_mov_b32 s20, {f2u(-float(KS)):#x}\ns_mov_b32 s21, s20")
    a(f"""
    s_waitcnt lgkmcnt(0)
    v_mad_u32_u16 v{VOUT}, v{IDS}, s35, v{COUT}
    v_mad_u32_u16 v{VAU}, v{IDS}, 16, v{CAU}
    {'s_mov_b32 s22, 0' if 'xlate' in a.opt else xrl(a)}
    ds_read_b128 {v4(UR)}, v{VAU}
    v_mad_u32_u16 v{VAU}, v{IDS}, 16, v{CAU} op_sel:[1,0,0,0]
    ds_read_b128 {v4(AUN)}, v{VAU}
    v_mov_b64 {v2(EA0)}, 0
    v_mov_b64 {v2(EA0+2)}, 0
    v_mov_b64 {v2(EA0+4)}, 0
    v_mov_b64 {v2(EA0+6)}, 0
    v_mov_b64 {v2(DEN)}, s[28:29]
    v_mov_b64 {v2(DEN+2)}, s[28:29]
    v_mov_b64 {v2(NUM)}, 0
    v_mov_b64 {v2(NUM+2)}, 0
    """)
    if a.pair: a(f"v_mov_b64 {v2(CK)}, s[20:21]\nv_mov_b64 {v2(CK+2)}, s[20:21]")

def poll2i(a, sfx):
    a(f"""
    s_cmp_lg_u32 s3, 12
    s_cbranch_scc1 L_ni2{sfx}
    v_lshlrev_b32 v20, 3, v1
    s_lshl_b32 s12, s4, 9
    s_add_u32 s12, s12, {FL2}
    buffer_load_dwordx2 v[22:23], v20, {R(SSEG)}, s12 offen sc1
    v_mov_b32 v18, {NONCE}
    ds_read_b64 v[18:19], v18
    s_mov_b32 s13, 0x40000
L_ni2{sfx}:
    """)

def poll2(a, sfx, younger=None):
    if younger is None: poll2i(a, sfx)
    a(f"""
    s_cmp_lg_u32 s3, 12
    s_cbranch_scc1 L_np2{sfx}
    v_lshlrev_b32 v20, 3, v1
    s_waitcnt vmcnt({younger or 0}) lgkmcnt(0)
L_poll2{sfx}:
    v_cmpx_ne_u64 vcc, v[18:19], v[22:23]
    s_sub_u32 s13, s13, 1
    s_cbranch_scc1 L_poll2d{sfx}
    s_cbranch_vccz L_poll2d{sfx}
    s_sleep 1
    buffer_load_dwordx2 v[22:23], v20, {R(SSEG)}, s12 offen sc1
    s_waitcnt vmcnt(0)
    s_branch L_poll2{sfx}
L_poll2d{sfx}:
    s_mov_b64 exec, -1
L_np2{sfx}:
    """)

DEN, NUM, AP, T0, EA0, UR, AUN, GR, WC, SEL, IDM, XR = 28, 32, 36, 40, 48, 56, 60, 64, 112, 116, 120, 96
A1, PP, NN, T3, CK = 8, 12, 16, 20, 24
IDX, EAD, PTR, IDS, VAU, VOUT, CAU, COUT, OT = 98, 102, 104, 106, 108, 109, 122, 123, 12
def v4(r): return f"v[{r}:{r+3}]"
def v2(r): return f"v[{r}:{r+1}]"
EAOFF = f"offset0:{EALO//256} offset1:{EAHI//256}"

def xrl(a): return f"buffer_load_dwordx2 {v2(XR)}, v{VOUT}, {R(SX)}, 0 offen" + (' nt' if 'xnt' in a.opt else '')

def TB(a, j):
    return (T0, T0+4, A1, T3)[j & 3] if a.pair else T0 + 4*(j & 1)

def mm(d, x, y, c): return f"v_mfma_f32_16x16x32_bf16 {v4(d)}, {v4(x)}, {v4(y)}, {v4(c) if c else 0}"

def m4(d, h, y, c): return f"v_mfma_f32_4x4x4_16b_bf16 {v4(d)}, {v2(SEL+2*h)}, {v2(y+2*h)}, {v4(c) if c else 0}"
def sel(a, d, y, c):
    if 'f4' in a.opt: a(m4(d, 0, y, c) + "\ns_nop 1\n" + m4(d, 1, y, d))
    else: a(mm(d, SEL, y, c))

def tblock(a, k):
    D = a.D; cl = " clamp" if a.pair else ""
    T = TB(a, k); Tn = TB(a, k+1)
    if 'f4' in a.opt:
        G1 = GR + 4*((k+1) % D)
        a(f"""
        {mm(Tn, EA0 + 4*((k+1) & 1), WC, AP)}
        v_exp_f32 v{T}, v{T}{cl}
        {m4(Tn, 0, G1, Tn)}
        v_exp_f32 v{T+1}, v{T+1}{cl}
        v_exp_f32 v{T+2}, v{T+2}{cl}
        {m4(Tn, 1, G1, Tn)}
        v_exp_f32 v{T+3}, v{T+3}{cl}
        """)
        return
    a(f"""
    {mm(Tn, EA0 + 4*((k+1) & 1), WC, AP)}
    v_exp_f32 v{T}, v{T}{cl}
    {mm(Tn, SEL, GR + 4*((k+1) % D), Tn)}
    v_exp_f32 v{T+1}, v{T+1}{cl}
    v_exp_f32 v{T+2}, v{T+2}{cl}
    v_exp_f32 v{T+3}, v{T+3}{cl}
    """)

def unit(a, k, kind, sw):
    D = a.D; lag = 2 if a.pair else 1; NL = D - lag
    T = TB(a, k); Tp = TB(a, k-1)
    EAw = EA0 + 4*((k+1) & 1)
    Gc = GR + 4*k; Gl = GR + 4*((k-lag) % D); Gp = GR + 4*((k-1) % D)
    Iu = IDX + 2*((k+1) & 1); Iw = IDX + 2*(k & 1)
    one = "s[26:27]" if a.pair else "1.0 op_sel_hi:[1,0]"
    def pk(op, d, x, y, z=None):
        for h in (0, 2):
            a(f"v_pk_{op}_f32 {v2(d+h)}, {v2(x+h)}, " + (v2(y+h) if isinstance(y, int) else y) + (f", {v2(z+h)}" if z is not None else ""))
    def rcp(r):
        for i in range(4): a(f"v_rcp_f32 v{r+i}, v{r+i}")
    a("s_waitcnt lgkmcnt(0)")
    if sw: sel(a, AP, AUN, CK if a.pair else 0)
    a(f"""
    {"; " if 'xl' in a.opt else ""}buffer_load_dwordx4 {v4(Gl)}, {v2(Iu)}, {R(STAB)}, 0 idxen offen sc1
    s_mov_b64 exec, s[36:37]
    ds_read2st64_b32 {v2(EAw)}, v{EAD} {EAOFF}
    ds_read2st64_b32 {v2(EAw+2)}, v{EAD+1} {EAOFF}
    ds_read_u16 v{EAD}, v{PTR+1} offset:{(k+4)*32}
    ds_read_u16 v{EAD+1}, v{PTR+1} offset:{(k+4)*32+4}
    s_mov_b64 exec, -1
    ds_read_u16 v{Iw}, v{PTR} offset:{(k+NL+1)*32}
    s_waitcnt vmcnt({NL-2})
    """)
    if sw and 'xlate' in a.opt: a(f"s_cmp_lg_u32 s22, 0\ns_cbranch_scc1 L_xl{kind}{k}\n{xrl(a)}\nL_xl{kind}{k}:")
    if k == D-1: a(f"v_lshl_add_u64 {v2(PTR)}, {v2(PTR)}, 0, s[38:39]")
    if kind == 'U':
        pk('add', T, T, one); rcp(T); pk('add', DEN, DEN, T); pk('fma', NUM, T, Gc, NUM)
    elif kind == 'S':
        pk('add', Tp, Tp, one); pk('add', T, T, one); pk('mul', PP, Tp, T); rcp(PP)
        pk('mul', NN, T, Gp); pk('add', T, T, Tp); pk('fma', NN, Tp, Gc, NN)
        pk('fma', DEN, T, PP, DEN); pk('fma', NUM, NN, PP, NUM)

def phase_m(a):
    D = a.D; lag = 2 if a.pair else 1; NL = D - lag
    a.stamp(9)
    if a.prof:
        a("v_mov_b32 v126, v15\ns_memtime s[86:87]\ns_waitcnt lgkmcnt(0)\ns_sub_u32 s92, s86, s92\nv_writelane_b32 v126, s92, 30"); a.sreg = 126
    if 'prio' in a.opt: a("s_setprio 3\ns_mov_b32 s23, 3")
    for q in range(NL): a(f"ds_read_u16 v{8+q}, v{PTR} offset:{q*32}")
    a(f"""
    ds_read_u16 v16, v{PTR+1}
    ds_read_u16 v17, v{PTR+1} offset:4
    ds_read_u16 v18, v{PTR+1} offset:32
    ds_read_u16 v19, v{PTR+1} offset:36
    ds_read_u16 v{IDX+2}, v{PTR} offset:{NL*32}
    """)
    for q in range(NL):
        a(f"s_waitcnt lgkmcnt({NL-1-q+5})\nv_lshl_add_u32 v{8+q}, v{8+q}, 7, v{IDX+1}\nbuffer_load_dwordx4 {v4(GR+4*q)}, v{8+q}, {R(STABW)}, 0 offen sc1")
        if q == 0: a(f"""
        s_waitcnt lgkmcnt(1)
        s_mov_b64 exec, s[36:37]
        ds_read2st64_b32 {v2(EA0)}, v16 {EAOFF}
        ds_read2st64_b32 {v2(EA0+2)}, v17 {EAOFF}
        ds_read2st64_b32 {v2(EA0+4)}, v18 {EAOFF}
        ds_read2st64_b32 {v2(EA0+6)}, v19 {EAOFF}
        ds_read_u16 v{EAD}, v{PTR+1} offset:64
        ds_read_u16 v{EAD+1}, v{PTR+1} offset:68
        s_mov_b64 exec, -1
        """)
    a(f"""
    s_waitcnt lgkmcnt(0)
    {mm(TB(a, 0), EA0, WC, AP)}
    s_waitcnt vmcnt({NL-1})
    s_nop 4
    """)
    sel(a, TB(a, 0), GR, TB(a, 0))
    a(f"""
    s_mov_b64 exec, s[36:37]
    ds_read2st64_b32 {v2(EA0)}, v{EAD} {EAOFF}
    ds_read2st64_b32 {v2(EA0+2)}, v{EAD+1} {EAOFF}
    ds_read_u16 v{EAD}, v{PTR+1} offset:96
    ds_read_u16 v{EAD+1}, v{PTR+1} offset:100
    s_mov_b64 exec, -1
    s_waitcnt vmcnt({NL-2})
    s_nop 1
    """)
    a.stamp(10)
    tblock(a, 0)
    if a.prof:
        a(f"s_mov_b32 s90, {len(a.names)}"); a.names += ['g1', 'g2', 'g3', 'g4']
    for c in ((0, 1) if a.pair else (0,)):
        for j in range(D):
            k = (j + c) % D; kind = 'FS'[j & 1] if a.pair else 'U'
            lab = kind if a.pair else 'F'
            a(f"L_m{lab}{k}:\ns_sub_u32 s24, s24, 1\ns_cbranch_scc1 L_b{lab}{k}")
            unit(a, k, kind, False)
            tblock(a, k+1)
        a(f"s_branch L_mF{c}")
    for k0 in range(D):
      for kd in ('FS' if a.pair else 'F'):
        k = (k0 + 1) % D
        a(f"L_b{kd}{k0}:")
        unit(a, k0, kd if a.pair else 'U', True)
        tblock(a, k0+1)
        unit(a, k, 'S' if a.pair and kd == 'F' else 'U', False)
        if a.pair and kd == 'F':
            a(f"s_branch L_ep{k}"); continue
        a(f"""
L_ep{k}:
        v_rcp_f32 v{DEN}, v{DEN}
        v_rcp_f32 v{DEN+1}, v{DEN+1}
        v_rcp_f32 v{DEN+2}, v{DEN+2}
        v_rcp_f32 v{DEN+3}, v{DEN+3}
        s_cmp_ge_u32 s{22 if 'xlate' in a.opt else 30}, {NL-2}
        s_cbranch_scc1 L_bx{k}
        s_waitcnt vmcnt(1)
L_bx{k}:
        v_pk_fma_f32 {v2(NUM)}, {v2(NUM)}, {v2(DEN)}, {v2(UR)}
        v_pk_fma_f32 {v2(NUM+2)}, {v2(NUM+2)}, {v2(DEN+2)}, {v2(UR+2)}
        ds_read_b128 {v4(UR)}, v{VAU}
        v_max_f32 v{NUM}, 0, v{NUM}
        v_max_f32 v{NUM+1}, 0, v{NUM+1}
        v_max_f32 v{NUM+2}, 0, v{NUM+2}
        v_max_f32 v{NUM+3}, 0, v{NUM+3}
        v_lshrrev_b64 {v2(IDS)}, 16, {v2(IDS)}
        v_mov_b64 {v2(DEN)}, s[28:29]
        v_mfma_f32_4x4x4_16b_bf16 {v4(OT)}, {v2(IDM)}, {v2(XR)}, {v4(NUM)}
        v_mov_b64 {v2(DEN+2)}, s[28:29]
        v_mad_u32_u16 v{VAU}, v{IDS}, 16, v{CAU} op_sel:[1,0,0,0]
        v_mov_b64 {v2(NUM)}, 0
        v_mov_b64 {v2(NUM+2)}, 0
        ds_read_b128 {v4(AUN)}, v{VAU}
        v_cvt_pk_bf16_f32 v{OT}, v{OT}, v{OT+1}
        v_cvt_pk_bf16_f32 v{OT+1}, v{OT+2}, v{OT+3}
        s_mov_b32 s30, s31
        {'s_mov_b32 s22, s31' if 'xlate' in a.opt else ''}
        s_mov_b32 s31, s32
        s_mov_b32 s32, s33
        s_mov_b32 s33, 0
        buffer_store_dwordx2 {v2(OT)}, v{VOUT}, {R(SOUT)}, 0 offen{' sc1' if 'osc1' in a.opt else ''}{' nt' if 'ont' in a.opt else ''}
        """)
        if a.prof: a("s_memrealtime s[100:101]\ns_waitcnt lgkmcnt(0)\ns_add_u32 s90, s90, 1\ns_mov_b32 m0, s90\nv_writelane_b32 v126, s100, m0")
        a(f"""
        v_mad_u32_u16 v{VOUT}, v{IDS}, s35, v{COUT}
        s_sub_u32 s24, s30, 2
        s_cbranch_scc1 L_fin
        {xrl(a)}
        """)
        if 'p4' in a.opt: a(f"""
        s_cmp_lg_u32 s32, 0
        s_cbranch_scc1 L_pt{k}
        s_setprio 2
        s_cmp_lg_u32 s31, 0
        s_cbranch_scc1 L_pt{k}
        s_setprio 1
L_pt{k}:
        """)
        elif 'prio' in a.opt: a(f"""
        s_sub_u32 s23, s23, 1
        s_cmp_eq_u32 s23, 2
        s_cbranch_scc0 L_pr{k}
        s_setprio 2
L_pr{k}:
        s_cmp_eq_u32 s23, 1
        s_cbranch_scc0 L_ps{k}
        s_setprio 1
L_ps{k}:
        s_cmp_eq_u32 s23, 0
        s_cbranch_scc0 L_pt{k}
        s_setprio 0
L_pt{k}:
        """)
        tblock(a, k+1)
        a(f"s_branch L_mF{(k+1) % D}")

def slow(a):
    a(f"""
L_slow:
    s_waitcnt vmcnt(0) lgkmcnt(0)
    s_barrier
    v_mov_b64 v[4:5], 0
    v_mov_b64 v[6:7], 0
    v_lshlrev_b32 v2, 4, v0
    v_add_u32 v2, {ACC}, v2
    s_mov_b32 s18, 0
L_sz:
    v_cmp_gt_u32 vcc, {ACC+100352}, v2
    s_mov_b64 exec, vcc
    ds_write_b128 v2, v[4:7]
    s_mov_b64 exec, -1
    v_add_u32 v2, 16384, v2
    s_add_u32 s18, s18, 1
    s_cmp_lt_u32 s18, 7
    s_cbranch_scc1 L_sz
    s_cmp_gt_u32 s3, 1
    s_cbranch_scc1 L_swc
    v_lshrrev_b32 v3, 4, v0
    v_bfe_u32 v4, v0, 2, 2
    v_and_b32 v5, 3, v0
    v_lshl_add_u32 v3, v3, 2, v5
    v_lshlrev_b32 v3, 1, v3
    v_lshl_add_u32 v3, v4, 8, v3
    s_lshl_b32 s20, s4, 6
    buffer_load_ushort v3, v3, {R(SWC)}, s20 offen
    v_lshlrev_b32 v4, 2, v0
    v_add_u32 v4, {WCF}, v4
    s_waitcnt vmcnt(0)
    v_lshlrev_b32 v3, 16, v3
    v_mul_f32 v3, {NLOG2E:#x}, v3
    ds_write_b32 v4, v3
L_swc:
    """)
    poll2(a, "b")
    a(f"""
    s_waitcnt vmcnt(0) lgkmcnt(0)
    s_barrier
    s_mul_i32 s20, s5, {BN}
    s_mov_b32 s21, {E}
    s_movk_i32 s22, {BN}
    v_mov_b32 v2, v0
    s_mov_b32 s18, 0
L_se:
    v_lshlrev_b32 v3, 2, v2
    v_lshlrev_b32 v4, 3, v2
    buffer_load_dword v5, v3, {R(SDST)}, 0 offen
    v_cmp_gt_u32 s[24:25], s21, v2
    s_waitcnt vmcnt(0)
    v_subrev_u32 v5, s20, v5
    v_cmp_gt_u32 vcc, s22, v5
    s_and_b64 exec, vcc, s[24:25]
    s_cbranch_execz L_sn
    buffer_load_dword v6, v3, {R(SSRC)}, 0 offen
    buffer_load_dwordx2 v[8:9], v4, {R(SEA)}, 0 offen
    v_lshlrev_b32 v7, 4, v5
    v_add_u32 v7, {AU}, v7
    v_lshlrev_b32 v14, 8, v5
    v_add_u32 v14, {ACC}, v14
    v_mov_b32 v15, {WCF}
    s_mov_b32 s19, 0
    s_waitcnt vmcnt(0)
    v_lshlrev_b32 v6, 7, v6
    v_lshlrev_b32 v10, 16, v8
    v_and_b32 v11, 0xffff0000, v8
    v_lshlrev_b32 v12, 16, v9
    v_and_b32 v13, 0xffff0000, v9
L_sc:
    buffer_load_dwordx4 v[16:19], v6, {R(STABW)}, s19 offen sc1
    ds_read_b128 v[20:23], v7
    ds_read_b128 v[24:27], v15
    ds_read_b128 v[28:31], v15 offset:16
    ds_read_b128 v[32:35], v15 offset:32
    ds_read_b128 v[36:39], v15 offset:48
    s_waitcnt vmcnt(0) lgkmcnt(0)
    """)
    for r in range(4):
        a(f"""
        v_lshlrev_b32 v40, 16, v{16+r}
        v_lshlrev_b32 v41, 16, v{20+r}
        v_add_f32 v40, v40, v41
        v_fmac_f32 v40, v10, v{24+r}
        v_fmac_f32 v40, v11, v{28+r}
        v_fmac_f32 v40, v12, v{32+r}
        v_fmac_f32 v40, v13, v{36+r}
        v_exp_f32 v40, v40
        s_nop 0
        v_add_f32 v40, 1.0, v40
        v_rcp_f32 v40, v40
        s_nop 0
        v_mul_f32 v41, v40, v{16+r}
        ds_add_f32 v14, v40 offset:{4*r}
        ds_add_f32 v14, v41 offset:{128+4*r}
        """)
    a(f"""
    v_add_u32 v7, {AUS}, v7
    v_add_u32 v14, 16, v14
    v_add_u32 v15, 64, v15
    s_add_u32 s19, s19, 16
    s_cmp_lt_u32 s19, 128
    s_cbranch_scc1 L_sc
L_sn:
    s_mov_b64 exec, -1
    v_add_u32 v2, 1024, v2
    s_add_u32 s18, s18, 1
    s_cmp_lt_u32 s18, {(E+1023)//1024}
    s_cbranch_scc1 L_se
    s_waitcnt lgkmcnt(0)
    s_barrier
    s_mul_i32 s20, s5, {BN*256}
    s_lshl_b32 s19, s4, 6
    s_add_u32 s20, s20, s19
    v_mov_b32 v2, v0
    s_mov_b32 s18, 0
L_so:
    v_cmp_gt_u32 vcc, {BN*8}, v2
    s_mov_b64 exec, vcc
    s_cbranch_execz L_fin
    v_lshrrev_b32 v3, 3, v2
    v_and_b32 v4, 7, v2
    v_lshlrev_b32 v5, 8, v3
    v_lshl_add_u32 v6, v4, 3, v5
    buffer_load_dwordx2 v[8:9], v6, {R(SX)}, s20 offen
    v_lshl_add_u32 v5, v4, 4, v5
    v_add_u32 v5, {ACC}, v5
    ds_read_b128 v[16:19], v5
    ds_read_b128 v[20:23], v5 offset:128
    v_mul_u32_u24 v7, {AUS}, v4
    v_lshl_add_u32 v7, v3, 4, v7
    v_add_u32 v7, {AU}, v7
    ds_read_b128 v[24:27], v7
    s_waitcnt vmcnt(0) lgkmcnt(0)
    v_lshlrev_b32 v10, 16, v8
    v_and_b32 v11, 0xffff0000, v8
    v_lshlrev_b32 v12, 16, v9
    v_and_b32 v13, 0xffff0000, v9
    """)
    for r in range(4):
        a(f"""
        v_add_f32 v{16+r}, {EPS:#x}, v{16+r}
        v_rcp_f32 v{16+r}, v{16+r}
        s_nop 0
        v_fmac_f32 v{24+r}, v{16+r}, v{20+r}
        v_max_f32 v{24+r}, 0, v{24+r}
        v_add_f32 v{24+r}, v{24+r}, v{10+r}
        """)
    a(f"""
    v_cvt_pk_bf16_f32 v8, v24, v25
    v_cvt_pk_bf16_f32 v9, v26, v27
    buffer_store_dwordx2 v[8:9], v6, {R(SOUT)}, s20 offen
    v_add_u32 v2, 1024, v2
    s_add_u32 s18, s18, 1
    s_cmp_lt_u32 s18, 4
    s_cbranch_scc1 L_so
    """)

def fin(a):
    a("L_fin:")
    if a.prof:
        a("s_mov_b64 exec, -1\ns_waitcnt vmcnt(0)")
        a.stamp(11)
        a(f"""
        v_writelane_b32 v126, s84, 0
        s_memtime s[88:89]
        s_waitcnt lgkmcnt(0)
        s_sub_u32 s88, s88, s86
        v_writelane_b32 v126, s88, 31
        s_lshl_b32 s18, s2, 11
        s_lshl_b32 s19, s3, 7
        s_add_u32 s18, s18, s19
        s_add_u32 s18, s18, {PROFOFF}
        v_lshlrev_b32 v3, 2, v1
        s_mov_b32 exec_lo, -1
        s_mov_b32 exec_hi, 0
        buffer_store_dword v126, v3, {R(SSEG)}, s18 offen
        """)
        a("; STAMPS " + ",".join(["start"] + [str(x) for x in a.names]))
    a("L_end:\ns_endpgm")

def build(D=8, prof=False, force_slow=False, opt=()):
    a = G(D, prof, force_slow, opt)
    prologue(a); phase_p(a); phase_g(a); phase_s(a); phase_m(a); slow(a); fin(a)
    errs = hz.check(a.L)
    for e in errs: print("WARN", e, file=sys.stderr)
    ref = open(f"cdna_kernels/{NAME}.s.ref").read().split('\n')
    head = [l for l in ref if l.startswith(';') and '@launch' not in l]
    out = head + [f"; @launch grid=(256,1,1) block=(1024,1,1) lds={LDS_SIZE}",
        '.amdgcn_target "amdgcn-amd-amdhsa--gfx950"', '.text', f'.globl {NAME}_kernel', '.p2align 8',
        f'.type {NAME}_kernel,@function', f'{NAME}_kernel:'] + a.L + [
        '.section .rodata,"a"', '.p2align 6', f'.amdhsa_kernel {NAME}_kernel',
        '  .amdhsa_next_free_vgpr 128', '  .amdhsa_next_free_sgpr 102', '  .amdhsa_accum_offset 128',
        '  .amdhsa_group_segment_fixed_size 0', '  .amdhsa_kernarg_size 96', '  .amdhsa_user_sgpr_count 2',
        '  .amdhsa_user_sgpr_kernarg_segment_ptr 1', '  .amdhsa_system_sgpr_workgroup_id_x 1', '.end_amdhsa_kernel', '']
    return '\n'.join(out)

if __name__ == '__main__':
    ap = argparse.ArgumentParser()
    ap.add_argument('-o', default=f"cdna_kernels/{NAME}.s")
    ap.add_argument('-D', type=int, default=8)
    ap.add_argument('--prof', action='store_true')
    ap.add_argument('--slow', action='store_true')
    ap.add_argument('--opt', default='')
    x = ap.parse_args()
    open(x.o, 'w').write(build(x.D, x.prof, x.slow, x.opt.split(',')))
```

```python
import sys, struct, argparse
import hz

NAME = "standalone__edge_featured_mpnn_gatedgcn__graph"
N, E = 25000, 400000
BN = 392
CH = 1564
MARK = 0x800007FC
DUMMY = 25100
OVF = 8 << 20
FL2 = 7 << 20
TABOFF = 16 << 20
TABSL = 25600 * 128
PROFOFF = 64 << 20
PCNT, HIST, LEN, FLAG, PC1, OVC, PC3, XGO, PC2, F1, WCNT, XL, NONCE, TRASH, PERM, CNT, WCL = 0, 256, 512, 768, 772, 776, 780, 784, 788, 792, 796, 800, 808, 816, 1024, 2048, 3712
XD0, XD1 = F1, 820
TAGM = 0xF803
RETRY = 2048
XT = 4096
WL = XT + BN * 256
IMG = WL + 32768
OVL = IMG + 24576
LDS_SIZE = 163840
AUS = 6288
AU = LDS_SIZE - 8 * AUS
STG = WL
EALO = 4096
EASZ = 34816
EAHI = EALO + EASZ
ELL = EAHI + EASZ
ROWCAP = 1008
ZSLOT = 32768 + 63 * 4
ACC = 4096
WCF = WL
assert ELL + 32768 <= AU and STG + 8192 <= AU and OVL + 1024 <= LDS_SIZE
NLOG2E = struct.unpack('<I', struct.pack('<f', -1.4426950408889634))[0]
KC, SC = 40, 15
KS = 48
def f2u(x): return struct.unpack('<I', struct.pack('<f', x))[0]
EPS = struct.unpack('<I', struct.pack('<f', 1e-6))[0]

class G:
    def __init__(s, D=8, prof=False, force_slow=False, opt=()):
        s.opt = set(opt); s.pair = 'pair' in opt; s.XE = ([int(o[1:]) for o in opt if o[:1] == 'X'] + [0])[0]; s.EE = ([int(o[1:]) for o in opt if o[:1] == 'E'] + [0])[0]; s.YE = ([int(o[1:]) for o in opt if o[:1] == 'Y'] + [0])[0]; s.HD = ([int(o[1:]) for o in opt if o[:1] == 'H'] + [0])[0]; s.T = ([int(o[1:]) for o in opt if o[:1] == 'T'] + [0])[0]
        s.dup = ([o[3] for o in opt if o[:3] == 'dup'] + [''])[0]; s.dupw = ([int(o[4:]) for o in opt if o[:3] == 'dup'] + [0])[0]; s.ch = ([int(o[2:]) for o in opt if o[:2] == 'ch'] + [0])[0]; s.L = []; s.D = D; s.prof = prof; s.force_slow = force_slow; s.nst = 0; s.names = []; s.sreg = 15
    def __call__(s, txt):
        for l in txt.strip('\n').split('\n'):
            l = l.strip()
            if l: s.L.append(('' if l.endswith(':') else '    ') + l)
    def srd(s, d, p, n, extra1=None):
        s(f"s_mov_b32 s{d}, s{p}")
        if extra1 is None: s(f"s_mov_b32 s{d+1}, s{p+1}")
        else: s(f"s_or_b32 s{d+1}, s{p+1}, {extra1:#x}")
        s(f"s_mov_b32 s{d+2}, {n:#x}\ns_mov_b32 s{d+3}, 0x20000")
    def stamp(s, k):
        if s.prof:
            s.names.append(k)
            s(f"s_memrealtime s[100:101]\ns_waitcnt lgkmcnt(0)\nv_writelane_b32 v{s.sreg}, s100, {len(s.names)}")
    def scan(s, v):
        for m in ("row_shr:1 row_mask:0xf bank_mask:0xf bound_ctrl:0", "row_shr:2 row_mask:0xf bank_mask:0xf bound_ctrl:0",
                  "row_shr:4 row_mask:0xf bank_mask:0xf bound_ctrl:0", "row_shr:8 row_mask:0xf bank_mask:0xf bound_ctrl:0",
                  "row_bcast:15 row_mask:0xa bank_mask:0xf", "row_bcast:31 row_mask:0xc bank_mask:0xf"):
            s(f"s_nop 1\nv_add_u32_dpp v{v}, v{v}, v{v} {m}")

SX, SEA, SSRC, SDST, SW, SOUT, SDBG, SSEG, STABW, STAB, SWC = 40, 44, 48, 52, 56, 60, 64, 68, 72, 76, 80
def R(d): return f"s[{d}:{d+3}]"

def w2(a, lab, k, extra):
    a(f"s_cbranch_scc1 {lab}\ns_waitcnt vmcnt({k})\n{lab}:\ns_waitcnt vmcnt({k+extra})")

def srds(a):
    a.srd(SOUT, 34, N*256); a.srd(SDBG, 36, 256)
    a.srd(SSEG, 38, (PROFOFF + (1 << 20)) if a.prof else TABOFF)
    a(f"""
    s_mul_i32 s9, s4, {TABSL}
    s_add_u32 s9, s9, {TABOFF}
    s_add_u32 s12, s38, s9
    s_addc_u32 s13, s39, 0
    """)
    a.srd(STABW, 12, TABSL); a.srd(STAB, 12, 25600, extra1=128 << 16)

def xdma(a, lab):
    nt = ' nt' if 'dnt' in a.opt else ''
    a(f"""
    s_mul_i32 s14, s5, {BN*256}
    s_lshl_b32 s15, s3, 13
    s_add_u32 s14, s14, s15
    s_add_u32 m0, s15, {XT}
    v_xor_b32 v17, 64, v16
    v_xor_b32 v18, 0x80, v16
    v_xor_b32 v19, 0xc0, v16
    s_cmp_eq_u32 s3, 12
    buffer_load_dwordx4 v16, {R(SX)}, s14 offen{nt} lds
    buffer_load_dwordx4 v17, {R(SX)}, s14 offen offset:1024{nt} lds
    s_cbranch_scc1 {lab}
    buffer_load_dwordx4 v18, {R(SX)}, s14 offen offset:2048{nt} lds
    buffer_load_dwordx4 v19, {R(SX)}, s14 offen offset:3072{nt} lds
    s_add_u32 m0, s15, {XT+4096}
    s_add_u32 s14, s14, 4096
    buffer_load_dwordx4 v16, {R(SX)}, s14 offen{nt} lds
    buffer_load_dwordx4 v17, {R(SX)}, s14 offen offset:1024{nt} lds
    buffer_load_dwordx4 v18, {R(SX)}, s14 offen offset:2048{nt} lds
    buffer_load_dwordx4 v19, {R(SX)}, s14 offen offset:3072{nt} lds
{lab}:
    """)

def spin(a, lab, vaddr, off, cmp, val, vt=32):
    a(f"""
{lab}:
    ds_read_b32 v{vt}, v{vaddr} offset:{off}
    s_waitcnt lgkmcnt(0)
    v_readfirstlane_b32 s18, v{vt}
    s_cmp_{cmp}_u32 s18, {val}
    s_cbranch_scc1 {lab}d
    s_sleep 1
    s_branch {lab}
{lab}d:
    """)

def allsrds(a):
    a.srd(SDST, 22, E*4); a.srd(SSRC, 20, E*4); a.srd(SEA, 18, E*8)
    a.srd(SWC, 28, 1024)
    srds(a)

MAP = ["""s_and_b32 s4, s2, 3
    s_lshr_b32 s5, s2, 3
    s_bfe_u32 s6, s2, 0x10002
    s_lshl_b32 s6, s6, 5
    s_add_u32 s5, s5, s6""",
    """s_and_b32 s4, s2, 1
    s_lshl_b32 s4, s4, 1
    s_bfe_u32 s6, s2, 0x10003
    s_add_u32 s4, s4, s6
    s_lshr_b32 s5, s2, 4
    s_bfe_u32 s6, s2, 0x20001
    s_lshl_b32 s6, s6, 4
    s_add_u32 s5, s5, s6""",
    """s_bfe_u32 s4, s2, 0x20003
    s_lshr_b32 s5, s2, 5
    s_and_b32 s6, s2, 7
    s_lshl_b32 s6, s6, 3
    s_add_u32 s5, s5, s6"""]

def prologue(a):
    a(f"""
    s_cmp_ge_u32 s2, 256
    s_cbranch_scc1 L_end
    s_load_dwordx16 s[16:31], s[0:1], 0
    s_load_dwordx8 s[32:39], s[0:1], 64
    """)
    if a.prof: a("s_memrealtime s[84:85]\ns_memtime s[92:93]\nv_mov_b32 v15, 0")
    a(f"""
    v_lshrrev_b32 v2, 6, v0
    v_and_b32 v1, 63, v0
    v_lshlrev_b32 v4, 4, v0
    v_readfirstlane_b32 s3, v2
    v_mov_b32 v3, 0
    s_lshl_b32 s9, s2, 4
    s_add_u32 s9, s9, s3
    s_cmp_lg_u32 s9, 14
    s_cbranch_scc1 L_i0
    ; launch tag: a mix of the clock, published through d_debug
    s_memrealtime s[12:13]
    s_waitcnt lgkmcnt(0)
    s_mul_i32 s14, s12, 0x9E3779B1
    s_mul_i32 s12, s12, 0x85EBCA6B
    s_xor_b32 s13, s13, s12
    s_bitset1_b32 s13, 31
    v_mov_b32 v8, s14
    v_mov_b32 v9, s13
    s_mov_b64 exec, 1
    global_store_dwordx2 v3, v[8:9], s[36:37] offset:136 sc1
    s_mov_b64 exec, -1
L_i0:
    v_lshrrev_b32 v6, 3, v0
    v_mul_u32_u24 v6, 384, v6
    v_and_b32 v7, 7, v0
    v_lshl_add_u32 v6, v7, 4, v6
    v_add_u32 v6, {IMG+256}, v6
    v_subrev_u32 v7, {512*16}, v4
    s_cmp_lt_u32 s3, 8
    s_cselect_b32 s9, {MARK:#x}, 0
    v_mov_b32 v20, s9
    v_mov_b32 v21, s9
    v_mov_b32 v22, s9
    v_mov_b32 v23, s9
    s_cbranch_scc1 L_i1
    v_mov_b32 v6, v7
L_i1:
    s_cmp_ge_u32 s3, 12
    s_cbranch_scc1 L_i2
    ds_write_b128 v6, v[20:23]
L_i2:
    {MAP[2 if 'map4' in a.opt else 1 if 'map2' in a.opt else 0]}
    v_subrev_u32 v3, {320*16}, v4
    v_lshlrev_b32 v4, 1, v3
    s_mul_i32 s6, s2, {CH*4}
    s_lshl_b32 s7, s6, 1
    s_movk_i32 s8, {CH*4}
    s_cmp_eq_u32 s2, 255
    s_cselect_b32 s8, {(E-255*CH)*4}, s8
    v_cmp_gt_u32 s[10:11], s8, v3
    v_lshrrev_b32 v5, 2, v1
    v_and_b32 v6, 3, v1
    v_lshlrev_b32 v6, 4, v6
    v_lshl_or_b32 v5, v5, 8, v6
    v_lshrrev_b32 v6, 4, v1
    v_and_b32 v7, 15, v1
    v_xor_b32 v16, v7, v6
    v_lshlrev_b32 v6, 8, v6
    v_lshl_or_b32 v16, v16, 4, v6
    v_mov_b32 v2, 1
    v_mov_b32 v30, {FLAG}
    s_cmp_lt_u32 s3, 5
    s_cbranch_scc1 L_i3
    s_setprio 2
L_i3:
    s_waitcnt lgkmcnt(0)
    s_barrier
    """)
    a.srd(SX, 16, N*256)
    a(f"""
    s_cmp_ge_u32 s3, 5
    s_cbranch_scc1 L_l0
    s_cmp_eq_u32 s3, 4
    s_cbranch_scc1 L_e1
    s_cmp_eq_u32 s3, 0
    s_cselect_b64 s[12:13], s[26:27], s[32:33]
    s_cmp_eq_u32 s3, 2
    s_cselect_b64 s[12:13], s[24:25], s[12:13]
    s_cmp_eq_u32 s3, 3
    s_cselect_b64 s[12:13], s[30:31], s[12:13]
    """)
    a.srd(SW, 12, 32768)
    a(f"""
    s_lshl_b32 s15, s3, 13
    s_lshl_b32 s14, s4, 6
    """)
    for q in range(8):
        if q % 4 == 0: a(f"s_add_u32 m0, s15, {WL + q*1024}")
        a(f"s_add_u32 s12, s14, {q*4096 - (q%4)*1024}\nbuffer_load_dwordx4 v5, {R(SW)}, s12 offen offset:{(q%4)*1024} lds")
    a("L_e1:")
    if a.T:
        allsrds(a)
        a(f"""
        s_cmp_lt_u32 s3, {a.T}
        s_cbranch_scc1 L_e2
        s_mov_b64 exec, 1
        s_waitcnt vmcnt(0)
        ds_add_u32 v30, v2 offset:{WCNT-FLAG}
        s_mov_b64 exec, -1
        s_branch L_xw
L_e2:
        """)
    if a.EE:
        allsrds(a)
        a(f"""
        s_cmp_lt_u32 s3, {a.EE}
        s_cbranch_scc1 L_e3
        s_mov_b64 exec, 1
        s_waitcnt vmcnt(0)
        ds_add_u32 v30, v2 offset:{WCNT-FLAG}
        s_mov_b64 exec, -1
        s_mov_b32 s19, 2
        s_branch L_xg
L_e3:
        """)
    xdma(a, "L_nx1")
    if not a.T and not a.EE: allsrds(a)
    a(f"""
    s_mov_b64 exec, 1
    s_waitcnt vmcnt(8)
    ds_add_u32 v30, v2 offset:{WCNT-FLAG}
    s_mov_b64 exec, -1
    s_branch L_g
L_l0:
    s_cmp_ge_u32 s3, 13
    s_cbranch_scc1 L_h0
    """)
    a.srd(SDST, 22, E*4); a.srd(SSRC, 20, E*4); a.srd(SEA, 18, E*8)
    a(f"""
    s_cmp_eq_u64 s[10:11], 0
    s_cbranch_scc1 L_noedge
    s_mov_b64 exec, s[10:11]
    buffer_load_dwordx4 v[8:11], v3, {R(SDST)}, s6 offen{' nt' if 'int' in a.opt else ''}
    buffer_load_dwordx4 v[40:43], v3, {R(SSRC)}, s6 offen{' nt' if 'int' in a.opt else ''}
    buffer_load_dwordx4 v[32:35], v4, {R(SEA)}, s7 offen{' nt' if 'int' in a.opt else ''}
    buffer_load_dwordx4 v[36:39], v4, {R(SEA)}, s7 offen offset:16{' nt' if 'int' in a.opt else ''}
    s_mov_b64 exec, -1
L_noedge:
    """)
    a.srd(SWC, 28, 1024)
    srds(a)

def tags(a):
    a(f"""
    v_and_b32 v45, 7, v1
    v_cmp_eq_u32 vcc, 0, v45
    v_lshlrev_b32 v45, 2, v45
    v_lshrrev_b64 v[46:47], v45, v[46:47]
    v_mov_b32 v44, {TAGM:#x}
    v_cndmask_b32 v44, v44, 2, vcc
    v_and_b32 v40, v44, v46
    v_lshrrev_b32 v41, 5, v46
    v_lshrrev_b32 v42, 10, v46
    v_lshrrev_b32 v43, 15, v46
    v_and_b32 v41, {TAGM:#x}, v41
    v_and_b32 v42, {TAGM:#x}, v42
    v_and_b32 v43, {TAGM:#x}, v43
    """)

def phase_p(a):
    M = ("s[12:13]", "s[14:15]", "s[20:21]", "s[22:23]")
    a(f"""
    s_cmp_eq_u64 s[10:11], 0
    s_cbranch_scc1 L_p_done
    s_mov_b64 exec, s[10:11]
    s_mov_b32 s16, 42800
    s_mov_b32 s17, {(-MARK) & 0xffffffff:#x}
    s_movk_i32 s18, 384
    v_mov_b32 v3, {IMG}
    s_waitcnt vmcnt(3)
    """)
    for j in range(4): a(f"v_mul_u32_u24 v{44+j}, s16, v{8+j}")
    for j in range(4): a(f"v_lshrrev_b32 v{44+j}, 24, v{44+j}")
    for j in range(4): a(f"v_lshlrev_b32 v{48+j}, 2, v{44+j}\nds_add_rtn_u32 v{20+j}, v{48+j}, v2 offset:{PCNT}")
    for j in range(4):
        a(f"""
        v_mul_u32_u24 v{48+j}, {BN*4}, v{44+j}
        v_lshl_add_u32 v{8+j}, v{8+j}, 2, s17
        v_sub_u32 v{8+j}, v{8+j}, v{48+j}
        v_mad_u32_u24 v{48+j}, v{44+j}, s18, v3
        """)
    a("s_waitcnt vmcnt(2)")
    for j in range(4): a(f"v_lshl_add_u32 v{8+j}, v{40+j}, 16, v{8+j}")
    for j in range(4):
        a(f"""
        s_waitcnt lgkmcnt({3-j})
        v_add_u32 v{52+j}, v{20+j}, v{44+j}
        v_cmp_gt_u32 {M[j]}, 32, v{20+j}
        v_and_b32 v{52+j}, 31, v{52+j}
        v_lshl_add_u32 v{52+j}, v{52+j}, 2, v{48+j}
        """)
    for j in range(4): a(f"s_mov_b64 exec, {M[j]}\nds_add_u32 v{52+j}, v{8+j} offset:256")
    for j in range(4):
        if j % 2 == 0: a(f"s_waitcnt vmcnt({1 - j//2})")
        a(f"s_mov_b64 exec, {M[j]}\nds_write2_b32 v{52+j}, v{32+2*j}, v{33+2*j} offset0:0 offset1:32")
    for j in range(4):
        rk, bk, base, sd, lo, hi = 20+j, 44+j, 48+j, 8+j, 32+2*j, 33+2*j
        a(f"""
        s_andn2_b64 exec, s[10:11], {M[j]}
        s_cbranch_execz L_po{j}
        ds_add_rtn_u32 v28, v30, v2 offset:{OVC-FLAG}
        v_mov_b32 v24, v{lo}
        v_mov_b32 v25, v{hi}
        v_add_u32 v26, {MARK:#x}, v{sd}
        v_lshlrev_b32 v27, 9, v{bk}
        v_lshl_add_u32 v27, v{rk}, 4, v27
        v_mov_b32 v29, 0x800
        s_waitcnt lgkmcnt(0)
        v_max_u32 v31, v28, v{rk}
        v_cmp_lt_u32 vcc, 62, v31
        v_lshlrev_b32 v28, 4, v28
        v_add_u32 v28, {OVL}, v28
        s_andn2_b64 s[24:25], exec, vcc
        s_mov_b64 exec, vcc
        ds_or_b32 v30, v2
        s_mov_b64 exec, s[24:25]
        ds_add_u32 v{base}, v29 offset:256
        ds_write_b128 v28, v[24:27]
L_po{j}:
        """)
    a(f"""
L_p_done:
    s_mov_b64 exec, 1
    ds_add_u32 v30, v2 offset:{PC1-FLAG}
    s_mov_b64 exec, -1
    s_setprio 0
    """)
    a.stamp('p_w')
    if 'xpf' in a.opt: a(f"""
    s_cmp_lg_u32 s3, 12
    s_cbranch_scc1 L_xpf
    s_mul_i32 s14, s5, {BN*256}
    s_mul_i32 s15, s4, {232*64}
    s_add_u32 s14, s14, s15
    s_add_u32 s14, s14, {160*256}
    s_add_u32 s15, s14, {116*64}
    v_lshlrev_b32 v8, 6, v1
    s_mov_b32 exec_hi, {(1 << 26) - 1:#x}
    buffer_load_dword v9, v8, {R(SX)}, s14 offen
    buffer_load_dword v9, v8, {R(SX)}, s14 offen offset:{58*64}
    buffer_load_dword v9, v8, {R(SX)}, s15 offen
    buffer_load_dword v9, v8, {R(SX)}, s15 offen offset:{58*64}
    s_mov_b32 exec_hi, -1
    s_waitcnt vmcnt(0)
L_xpf:
    """)
    if a.XE: a(f"s_cmp_lt_u32 s3, {a.XE}\ns_cbranch_scc1 L_xgd")
    if a.YE: a(f"s_cmp_lt_u32 s3, {a.YE}\ns_cselect_b32 s19, 2, 3")
    if 'noxgo' not in a.opt: spin(a, "L_xg", 30, XGO-FLAG, "ge", "s19" if a.YE else 3)
    if a.T:
        a(f"L_xw:\ns_sub_u32 s19, s3, {a.T-1}\ns_cselect_b32 s19, 0, s19")
        spin(a, "L_xt", 30, XL-FLAG, "ge", "s19")
    a.stamp('xgo')
    xdma(a, "L_nx2")
    a(f"""
    s_branch L_g
L_h0:
    """)
    allsrds(a)
    a(f"""
    v_lshlrev_b32 v4, 4, v1
    s_mul_i32 s16, s2, 24576
    v_mov_b32 v3, 0
    s_movk_i32 s17, 384
    s_cmp_eq_u32 s3, 13
    s_cbranch_scc1 L_h13
    v_lshrrev_b32 v8, 4, v1
    v_lshlrev_b32 v9, 4, v7
    v_mad_u32_u24 v8, v8, s17, v9
    s_cmp_lg_u32 s3, 15
    s_cbranch_scc1 L_h2
    v_add_u32 v8, {32*384}, v8
    v_lshl_or_b32 v6, v7, 2, v6
    s_movk_i32 m0, {WCL}
    s_lshl_b32 s9, s4, 6
    buffer_load_dword v6, {R(SWC)}, s9 offen lds
L_h2:
    v_add_u32 v9, {IMG}, v8
    s_add_u32 s17, s16, {3*1536}
    s_add_u32 s19, s16, {6*1536}
    s_setprio 0
    """)
    spin(a, "L_hp", 30, PC1-FLAG, "ge", 8)
    a("s_setprio 3")
    a.stamp('b1')
    for i in range(8): a(f"ds_read_b128 v[{64+4*i}:{67+4*i}], v9 offset:{i*1536}")
    for i in range(8):
        a(f"s_waitcnt lgkmcnt({7-i})\nbuffer_store_dwordx4 v[{64+4*i}:{67+4*i}], v8, {R(SSEG)}, s{(16,17,19)[i//3]} offen offset:{(i%3)*1536} sc1{' nt' if 'int' in a.opt else ''}")
    a(f"""
    s_mov_b64 exec, 1
    ds_add_u32 v30, v2 offset:{XGO-FLAG}
    """)
    a.stamp('imi')
    a(f"""
    s_waitcnt vmcnt(0)
    ds_add_u32 v30, v2 offset:{PC2-FLAG}
    s_branch L_pso
L_h13:
    v_lshrrev_b32 v8, 3, v1
    v_and_b32 v9, 0x70, v4
    v_mad_u32_u24 v8, v8, s17, v9
    v_add_u32 v9, {IMG+256}, v8
    v_add_u32 v5, {OVL}, v4
    s_mov_b32 s18, 0x40000
L_tag:
    buffer_load_dwordx2 v[46:47], v3, {R(SDBG)}, 0 offen offset:136 sc1
    s_waitcnt vmcnt(0)
    v_cmp_eq_u32 vcc, 0, v47
    s_sub_u32 s18, s18, 1
    s_cbranch_scc1 L_tagd
    s_cbranch_vccz L_tagd
    s_sleep 1
    s_branch L_tag
L_tagd:
    v_or_b32 v47, 0x80000000, v47
    ds_write_b64 v30, v[46:47] offset:{NONCE-FLAG}
    """)
    a.stamp('tag')
    tags(a)
    a("s_setprio 0")
    spin(a, "L_hq", 30, PC1-FLAG, "ge", 8)
    a(f"""
    s_setprio 3
    ds_read_b96 v[36:38], v30
    ds_read_b128 v[24:27], v5
    """)
    for i in range(8): a(f"ds_read_b128 v[{64+4*i}:{67+4*i}], v9 offset:{i*3072}")
    a(f"""
    s_lshl_b32 s19, s2, 15
    s_add_u32 s19, s19, {OVF-512}
    s_waitcnt lgkmcnt(8)
    v_cmp_gt_u32 s[20:21], v38, v1
    v_cmp_eq_u32 vcc, 0, v36
    v_and_b32 v36, 1, v36
    v_bfi_b32 v36, v44, 0, v36
    v_or_b32 v40, v40, v36
    s_and_b64 exec, s[20:21], vcc
    s_cbranch_scc0 L_psn
    buffer_store_dwordx4 v[24:27], v27, {R(SSEG)}, s19 offen sc1
L_psn:
    s_mov_b64 exec, 1
    ds_add_u32 v30, v2 offset:{(TRASH if 'xsd' in a.opt else XGO)-FLAG}
    s_mov_b64 exec, -1
    """)
    for i in range(8):
        a(f"s_waitcnt lgkmcnt({8-i})")
        for j in range(4): a(f"v_xor_b32 v{64+4*i+j}, v{64+4*i+j}, v{40+j}")
    a("s_waitcnt vmcnt(0)")
    spin(a, "L_hr", 30, PC2-FLAG, "ge", 2)
    for i in range(8):
        a(f"buffer_store_dwordx4 v[{64+4*i}:{67+4*i}], v8, {R(SSEG)}, s16 offen offset:256 sc1{' nt' if 'int' in a.opt else ''}")
        if i < 7: a("s_add_u32 s16, s16, 3072")
    if 'xsd' in a.opt: a(f"s_mov_b64 exec, 1\nds_add_u32 v30, v2 offset:{XGO-FLAG}")
    a(f"""
L_pso:
    s_sub_u32 s17, s3, 8
    """)
    a.stamp('sig1')
    if a.HD and 'eh' not in a.opt: spin(a, "L_hd", 30, XD0-FLAG, "ge", a.HD)
    a(f"""
    s_branch L_sw
L_g:
    """)

SD = 48
ACCS = (48, 64, 80, 96)
def phase_g(a):
    a(f"""
    v_and_b32 v20, 31, v1
    v_lshrrev_b32 v21, 5, v1
    s_lshl_b32 s18, s3, 13
    s_add_u32 s18, s18, {XT}
    v_and_b32 v22, 15, v1
    v_xor_b32 v22, v22, v21
    v_lshlrev_b32 v22, 4, v22
    v_lshl_or_b32 v22, v20, 8, v22
    v_add_u32 v4, s18, v22
    v_bfe_u32 v22, v1, 2, 2
    v_lshl_add_u32 v22, v21, 3, v22
    v_lshlrev_b32 v22, 6, v22
    v_and_b32 v23, 16, v1
    v_lshl_add_u32 v22, v23, 1, v22
    v_and_b32 v23, 3, v1
    v_lshl_add_u32 v22, v23, 3, v22
    v_add_u32 v5, {WL}, v22
    v_bfe_u32 v22, v1, 1, 3
    v_xor_b32 v22, v22, v21
    v_lshlrev_b32 v22, 4, v22
    v_lshl_or_b32 v22, v20, 7, v22
    v_add_u32 v6, s18, v22
    v_lshl_add_u32 v7, v1, 4, s18
    v_and_b32 v22, 7, v1
    v_lshrrev_b32 v23, 4, v1
    v_xor_b32 v22, v22, v23
    v_lshlrev_b32 v22, 4, v22
    v_lshrrev_b32 v23, 3, v1
    v_lshl_or_b32 v8, v23, 7, v22
    v_xor_b32 v9, 64, v8
    v_mul_u32_u24 v22, {AUS}, v21
    v_lshl_add_u32 v22, v20, 4, v22
    s_lshl_b32 s18, s3, 9
    s_add_u32 s18, s18, {AU}
    v_add_u32 v10, s18, v22
    v_xor_b32 v11, 32, v6
    v_xor_b32 v12, 64, v6
    v_xor_b32 v13, 0x60, v6
    s_mul_i32 s19, s5, {BN*128}
    s_lshl_b32 s18, s3, 12
    s_add_u32 s19, s19, s18
    s_mov_b32 s20, {NLOG2E:#x}
    s_mov_b32 s21, {NLOG2E:#x}
    s_mov_b32 s22, 0x07060100
    s_mov_b32 s23, 0x07060302
    s_cmp_eq_u32 s3, 12
    s_cselect_b32 s26, 0xff, -1
    s_cselect_b32 s27, 0xff, -1
    """)
    for ks in range(1, 8): a(f"v_xor_b32 v{48+ks}, {ks*32:#x}, v4")
    if a.dup: a(f"s_mov_b64 s[96:97], s[{STABW}:{STABW+1}]\ns_mov_b32 s99, s{STABW+3}\ns_cmp_ge_u32 s3, {a.dupw}\ns_cselect_b32 s98, s{STABW+2}, 0")
    Q = []
    def ds(txt, tag=None):
        a(txt); Q.append(tag)
    def wait(tag):
        if tag in Q:
            i = max(k for k, t in enumerate(Q) if t == tag)
            n = len(Q) - 1 - i
            assert n <= 15
            a(f"s_waitcnt lgkmcnt({n})")
            del Q[:i+1]
    def frag(t):
        p, ks, mm = t >> 4, (t >> 1) & 7, t & 1
        r = 112 + 4*(t & 3); o = (2*p+mm)*8192 + ks*1024
        ds(f"ds_read_b64_tr_b16 v[{r}:{r+1}], v5 offset:{o}", ('f', t))
        ds(f"ds_read_b64_tr_b16 v[{r+2}:{r+3}], v5 offset:{o+256}", ('f', t))
    spin(a, "L_wc", 30, WCNT-FLAG, "ge", 5)
    for t in range(4): frag(t)
    a("s_waitcnt vmcnt(0) lgkmcnt(0)"); Q.clear()
    if a.T:
        a("s_mov_b64 exec, 1"); ds(f"ds_add_u32 v30, v2 offset:{XL-FLAG}"); a("s_mov_b64 exec, -1")
    a.stamp('xl')
    for ks in range(8): ds(f"ds_read_b128 v[{16+4*ks}:{19+4*ks}], v{4 if ks == 0 else 48+ks}", ('x', ks))
    def pack(B, V, i):
        b = B + 4*i; v = V + 4*i
        return [f"v_pk_mul_f32 v[{b}:{b+1}], v[{b}:{b+1}], s[20:21]", f"v_pk_mul_f32 v[{b+2}:{b+3}], v[{b+2}:{b+3}], s[20:21]",
                f"v_cvt_pk_bf16_f32 v{b}, v{b}, v{b+1}", f"v_cvt_pk_bf16_f32 v{b+1}, v{b+2}, v{b+3}",
                f"v_perm_b32 v{v}, v{v}, v{b}, s22", f"v_perm_b32 v{v+1}, v{v+1}, v{b}, s23",
                f"v_perm_b32 v{v+2}, v{v+2}, v{b+1}, s22", f"v_perm_b32 v{v+3}, v{v+3}, v{b+1}, s23"]
    ep = []
    for i in range(4):
        ep += [('v', x) for x in pack(48, 64, i)]
        ep += [('w', i)]
    ep += [('r', i) for i in range(4)] + [('s', i) for i in range(4)]
    def emit(e):
        k, x = e
        if k == 'v': a(x)
        elif k == 'w':
            a("s_mov_b64 exec, s[26:27]")
            ds(f"ds_write_b128 v{(6, 11, 12, 13)[x]}, v[{64+4*x}:{67+4*x}]")
            a("s_mov_b64 exec, -1")
        elif k == 'r': ds(f"ds_read_b128 v[{48+4*x}:{51+4*x}], v7 offset:{x*1024}", ('r', x))
        elif k == 's':
            wait(('r', x))
            if x: a(f"s_cbranch_scc1 L_gs{x}")
            dup = f"buffer_store_dwordx4 v[{48+4*x}:{51+4*x}], v{8+(x&1)}, s[96:99], s19 offen offset:{x*1024}"
            if a.dup == 'b': a(dup)
            a(f"buffer_store_dwordx4 v[{48+4*x}:{51+4*x}], v{8+(x&1)}, {R(STABW)}, s19 offen offset:{x*1024} sc1")
            if a.dup == 'a': a(dup)
            if x: a(f"L_gs{x}:")
    a("s_cmp_eq_u32 s3, 12")
    for t in range(32):
        p, ks, mm = t >> 4, (t >> 1) & 7, t & 1
        wait(('f', t)); wait(('x', ks))
        d = ACCS[2*p+mm]; r = 112 + 4*(t & 3)
        c = "0" if ks == 0 else f"v[{d}:{d+15}]"
        a(f"v_mfma_f32_32x32x16_bf16 v[{d}:{d+15}], v[{r}:{r+3}], v[{16+4*ks}:{19+4*ks}], {c}")
        if t + 4 < 32: frag(t + 4)
        if t >= 18:
            n = 5 if ep and ep[0][0] in 'vw' else (4 if ep and ep[0][0] == 'r' else 1)
            for _ in range(n):
                if ep: emit(ep.pop(0))
    while ep: emit(ep.pop(0))
    a(f"""
    s_cselect_b32 s18, s5, 0
    v_mov_b32 v32, 0x7180
    v_mov_b32 v33, 0x7180
    v_mov_b32 v34, 0x7180
    v_mov_b32 v35, 0x7180
    v_lshlrev_b32 v12, 4, v1
    s_cmp_lg_u32 s18, 63
    s_cbranch_scc1 L_nodum
    s_mov_b32 s18, {DUMMY*128}
    buffer_store_dwordx4 v[32:35], v12, {R(STABW)}, s18 offen sc1
    buffer_store_dwordx4 v[32:35], v12, {R(STABW)}, s18 offen offset:1024 sc1
    buffer_store_dwordx4 v[32:35], v12, {R(STABW)}, s18 offen offset:2048 sc1
    buffer_store_dwordx4 v[32:35], v12, {R(STABW)}, s18 offen offset:3072 sc1
L_nodum:
    s_movk_i32 s18, {XD1}
    s_cmp_lt_u32 s3, 5
    s_cselect_b32 s18, {XD0}, s18
    s_cmp_lt_u32 s3, 9
    s_cselect_b32 s18, s18, {TRASH}
    v_mov_b32 v31, 1
    v_mov_b32 v30, s18
    s_mov_b64 exec, 1
    ds_add_u32 v30, v31
    s_mov_b64 exec, -1
    v_mov_b32 v30, {FLAG}
    """)
    for i in range(4):
        for x in pack(80, 96, i): a(x)
    a.stamp('gd')
    a(f"""
    s_mov_b32 s17, s3
    s_cmp_lt_u32 s3, 5
    s_cbranch_scc1 L_sw
    s_mov_b32 s16, 0
    s_sub_u32 s17, s3, 5
    """)
    consts(a, "L_c1", 30, PC2-FLAG)
    a("s_waitcnt vmcnt(0)")
    sig2(a, "L_sig2a", 30, PC3-FLAG)
    a.stamp('gdr')

def sig2(a, lab, flag, cntoff):
    a(f"""
    s_mov_b64 exec, 1
    ds_add_rtn_u32 v4, v{flag}, v31 offset:{cntoff}
    ds_read_b64 v[6:7], v{flag} offset:{cntoff+NONCE-PC3}
    s_lshl_b32 s18, s4, 9
    s_lshl_b32 s19, s5, 3
    s_add_u32 s18, s18, s19
    s_add_u32 s18, s18, {FL2}
    v_mov_b32 v3, 0
    s_waitcnt lgkmcnt(0)
    v_readfirstlane_b32 s19, v4
    s_cmp_lg_u32 s19, 12
    s_cbranch_scc1 {lab}
    buffer_store_dwordx2 v[6:7], v3, {R(SSEG)}, s18 offen sc1
{lab}:
    s_mov_b64 exec, -1
    """)

RK = 64
def segaddr(a):
    a(f"""
    v_lshrrev_b32 v2, 3, v1
    v_mul_u32_u24 v2, 24576, v2
    v_and_b32 v3, 7, v1
    v_lshl_add_u32 v2, v3, 4, v2
    s_mul_i32 s25, s17, {32*24576}
    s_mul_i32 s19, s5, 384
    s_add_u32 s25, s25, s19
    s_lshl_b32 s28, s17, 12
    v_mov_b32 v34, 1
    """)

def phase_s(a):
    segaddr(a)
    a(f"""
    v_and_b32 v78, {31 if 'dsp' in a.opt else 0}, v1
    v_lshlrev_b32 v78, 16, v78
    v_add_u32 v78, {(DUMMY << 16) | ZSLOT:#x}, v78
    v_lshl_add_u32 v80, s17, 6, v1
    s_movk_i32 s18, {BN}
    v_cmp_gt_u32 s[10:11], s18, v80
    v_lshlrev_b32 v64, 2, v80
    s_branch L_s1
L_sw:
    s_mov_b64 exec, -1
    s_mov_b32 s16, 1
    s_setprio 0
    """)
    segaddr(a)
    a(f"""
    v_mov_b32 v14, {PC3}
    s_add_u32 s31, s25, {1*8*24576}
    s_add_u32 s32, s25, {2*8*24576}
    s_add_u32 s33, s25, {3*8*24576}
    """)
    if a.HD and 'eh' in a.opt: spin(a, "L_hd", 14, XD0-PC3, "ge", a.HD)
    JD = ([int(o[1:]) for o in a.opt if o[:1] == 'J'] + [0])[0]
    if JD: spin(a, "L_jd", 14, XD1-PC3, "ge", JD)
    SQ = (25, 31, 32, 33)
    def sdl(q): a(f"buffer_load_dwordx4 v[{SD+4*q}:{SD+4*q+3}], v2, {R(SSEG)}, s{SQ[q]} offen offset:256 sc1{' nt' if 'snt' in a.opt else ''}")
    for q in range(4): sdl(q)
    a.stamp('sdi')
    consts(a, "L_c2", 14, PC2-PC3)
    a(f"""
L_nw:
    ds_read_b64 v[46:47], v14 offset:{NONCE-PC3}
    s_waitcnt lgkmcnt(0)
    v_readfirstlane_b32 s18, v47
    s_cmp_lg_u32 s18, 0
    s_cbranch_scc1 L_nwd
    s_sleep 1
    s_branch L_nw
L_nwd:
    """)
    tags(a)
    a(f"""
    v_mov_b32 v26, 0
    v_mov_b32 v3, 0
    v_lshlrev_b32 v38, 4, v1
    s_lshl_b32 s22, s17, 20
    s_lshl_b32 s27, s5, 9
    s_add_u32 s22, s22, s27
    s_add_u32 s22, s22, {OVF}
    s_mov_b64 s[6:7], -1
    s_mov_b64 s[8:9], -1
    s_mov_b64 s[10:11], -1
    s_mov_b64 s[12:13], -1
    s_mov_b32 s26, 0x0f0f0f0f
    s_mov_b32 s27, s26
    s_movk_i32 s21, {RETRY}
    s_mov_b32 s23, {TAGM:#x}
    s_cmp_ge_u32 s3, 5
    s_cbranch_scc1 L_sig2b
    s_waitcnt vmcnt(4)
    """)
    sig2(a, "L_sig2b", 14, 0)
    for j in range(0, 16, 2): a(f"v_mov_b64 v[{RK+j}:{RK+j+1}], 0")
    a(f"""
L_sv1:
    s_mov_b32 s20, 0
    s_waitcnt vmcnt(0)
    """)
    for q in range(4):
        d = SD + 4*q
        a(f"""
        s_and_b64 exec, s[{6+2*q}:{7+2*q}], s[{6+2*q}:{7+2*q}]
        s_cbranch_scc0 L_sq{q}
        v_xor_b32 v{d}, v{d}, v40
        v_xor_b32 v{d+1}, v{d+1}, v41
        v_xor_b32 v{d+2}, v{d+2}, v42
        v_xor_b32 v{d+3}, v{d+3}, v43
        v_and_b32 v45, v{d}, v44
        v_or3_b32 v46, v{d+1}, v{d+2}, v{d+3}
        v_and_or_b32 v45, v46, s23, v45
        v_cmp_ne_u32 vcc, 0, v45
        s_wqm_b64 s[{6+2*q}:{7+2*q}], vcc
        s_cbranch_scc0 L_sq{q}
        s_lshr_b64 s[14:15], s[{6+2*q}:{7+2*q}], 4
        s_or_b64 s[{6+2*q}:{7+2*q}], s[{6+2*q}:{7+2*q}], s[14:15]
        s_and_b64 s[{6+2*q}:{7+2*q}], s[{6+2*q}:{7+2*q}], s[26:27]
        s_lshl_b64 s[14:15], s[{6+2*q}:{7+2*q}], 4
        s_or_b64 s[{6+2*q}:{7+2*q}], s[{6+2*q}:{7+2*q}], s[14:15]
        s_mov_b64 exec, s[{6+2*q}:{7+2*q}]
        s_mov_b32 s20, 1
        """)
        sdl(q)
        a(f"L_sq{q}:")
    a(f"""
    s_mov_b64 exec, -1
    s_cmp_eq_u32 s20, 0
    s_cbranch_scc1 L_svd
    s_sub_u32 s21, s21, 1
    s_cbranch_scc0 L_sv1
    s_waitcnt vmcnt(0)
    v_mov_b32 v39, {FLAG}
    ds_or_b32 v39, v34
    """)
    for j in range(16): a(f"v_mov_b32 v{SD+j}, {MARK:#x}")
    a(f"""
L_svd:
    """)
    a.stamp('s_sd')
    a("v_bfe_u32 v45, v52, 11, 5\nv_bfe_u32 v46, v56, 11, 5\nv_bfe_u32 v47, v60, 11, 5\nv_bfe_u32 v36, v48, 11, 5")
    for q in range(1, 4):
        a(f"v_mov_b32_dpp v{44+q}, v{44+q} row_shr:{q} row_mask:0xf bank_mask:0xf bound_ctrl:0")
    a("v_or_b32 v36, v36, v45\nv_or3_b32 v36, v36, v46, v47")
    a(f"""
    v_or3_b32 v45, v48, v52, v56
    v_or_b32 v45, v45, v60
    v_cmp_ne_u32 s[14:15], 0, v36
    v_and_b32 v45, 1, v45
    v_mov_b32 v39, {FLAG}
    v_mov_b32 v28, 0
    v_mov_b32 v29, 0
    v_mov_b32 v30, {MARK:#x}
    s_mov_b32 s24, 0
    v_cmpx_ne_u32 vcc, 0, v45
    ds_or_b32 v39, v34
    """)
    def ranks(q):
        for j in range(4*q, 4*q+4):
            a(f"""
            v_and_b32 v{80+j}, 0x7fc, v{SD+j}
            v_cmpx_le_i32 vcc, 0, v{SD+j}
            ds_add_rtn_u32 v{RK+j}, v{80+j}, v34 offset:{CNT}
            s_mov_b64 exec, -1
            """)
    a(f"""
    s_cbranch_vccnz L_ovd
L_ov:
    s_cmp_eq_u64 s[14:15], 0
    s_cbranch_scc1 L_ovd
    s_ff1_i32_b64 s23, s[14:15]
    s_bitset0_b64 s[14:15], s23
    v_readlane_b32 s26, v36, s23
    s_and_b32 s27, s23, 7
    s_lshl_b32 s27, s27, 18
    s_lshr_b32 s23, s23, 3
    s_lshl_b32 s23, s23, 15
    s_add_u32 s23, s23, s27
    s_add_u32 s23, s23, s22
    s_lshl_b32 s27, s24, 4
    s_sub_u32 s23, s23, s27
    s_bfm_b64 exec, s26, s24
    s_add_u32 s24, s24, s26
    s_cmp_gt_u32 s24, 63
    s_cbranch_scc1 L_ovbad
    buffer_load_dwordx4 v[28:31], v38, {R(SSEG)}, s23 offen sc1
    s_branch L_ov
L_ovbad:
    s_mov_b64 exec, 1
    ds_or_b32 v39, v34
L_ovd:
    s_mov_b64 exec, -1
    """)
    a.stamp('s_ov')
    def ead(base, go, i):
        if i % 2 == 0: a(f"s_add_u32 m0, s28, {base}")
        a(f"s_add_u32 s19, s25, {i*8*24576 - i*1024 + go}\nbuffer_load_dwordx4 v2, {R(SSEG)}, s19 offen offset:{i*1024} sc1 lds")
    if 'eafirst' not in a.opt:
        for q in range(4): ranks(q)
    EQ = [(EALO, 0, i) for i in range(4)] + [(EAHI, 128, i) for i in range(4)]
    AL = ([o[1:] for o in a.opt if o[:1] == 'A'] + ['4220'])[0]
    def eaq(n):
        for _ in range(n):
            b, g, i = EQ.pop(0)
            a(f"s_add_u32 m0, s28, {b}\ns_add_u32 s19, s25, {i*8*24576 - i*1024 + g}\nbuffer_load_dwordx4 v2, {R(SSEG)}, s19 offen offset:{i*1024} sc1{' nt' if 'ent' in a.opt else ''} lds")
    nea = int(AL[0])
    if nea: spin(a, "L_e5", 14, XD0-PC3, "ge", 5)
    eaq(nea)
    if 'eapre' in a.opt:
        spin(a, "L_e9", 14, XD1-PC3, "ge", 4)
        for i in range(4): ead(EAHI, 128, i)
        nea = 8
    a.stamp('s_ea')
    if 'eafirst' in a.opt:
        for q in range(4): ranks(q)
    a(f"""
    v_lshlrev_b32 v37, 2, v1
    s_lshl_b32 s18, s17, 8
    s_add_u32 s18, s18, 32768
    v_add_u32 v37, s18, v37
    s_mov_b32 s18, 0xffff0000
    v_lshl_add_u32 v36, v1, 4, s28
    """)
    for j in range(16):
        off = (j >> 2) * 1024 + (j & 3) * 4
        if off:
            a(f"v_add_u32 v38, {off}, v36\nv_and_or_b32 v{SD+j}, v{SD+j}, s18, v38")
        else:
            a(f"v_and_or_b32 v{SD+j}, v{SD+j}, s18, v36")
    a(f"""
    s_waitcnt vmcnt({nea})
    v_and_b32 v27, 0x7fc, v30
    v_cmpx_le_i32 vcc, 0, v30
    ds_add_rtn_u32 v26, v27, v34 offset:{CNT}
    s_mov_b64 exec, -1
    v_and_or_b32 v30, v30, s18, v37
    """)
    a(f"""
L_s1:
    v_lshlrev_b32 v35, 2, v1
    s_lshl_b32 s35, s16, 3
    s_or_b32 s35, s35, s17
    s_cmp_eq_u32 s3, 12
    s_cselect_b32 s26, 0xff, -1
    s_cselect_b32 s27, 0xff, -1
    s_waitcnt lgkmcnt(0)
    """)
    a.stamp('s_pb')
    a("s_barrier")
    a.stamp('s1')
    def auw():
        a("s_mov_b64 exec, s[26:27]")
        for i in range(4): a(f"ds_write_b128 v10, v[{96+4*i}:{99+4*i}] offset:{i*2*AUS}")
        a("s_mov_b64 exec, -1")
    a(f"""
    s_cmp_eq_u32 s16, 1
    s_cbranch_scc1 L_s2e
    ds_read_b32 v66, v64 offset:{CNT}
    """)
    if 'eapre' not in a.opt and 'eas' not in a.opt:
        for i in range(4): ead(EAHI, 128, i)
    a(f"""
    s_waitcnt lgkmcnt(0)
    v_min_u32 v67, 63, v66
    v_sub_u32 v67, 63, v67
    v_lshlrev_b32 v67, 2, v67
    s_mov_b64 exec, s[10:11]
    ds_add_rtn_u32 v68, v67, v34 offset:{HIST}
    """)
    auw()
    a(f"""
    s_waitcnt lgkmcnt(4)
    s_barrier
    s_branch L_s2d
L_s2e:
    """)
    eaq(int(AL[1]))
    a(f"""
    s_barrier
    """)
    eaq(int(AL[2]))
    def tpf(sb):
        a(f"""
        s_mul_i32 s18, s{sb}, {BN*128}
        s_mul_i32 s19, s17, {98*64}
        s_add_u32 s18, s18, s19
        s_add_u32 s19, s18, 4096
        v_lshlrev_b32 v5, 6, v1
        buffer_load_dword v127, v5, {R(STABW)}, s18 offen sc1
        s_mov_b32 exec_hi, 3
        buffer_load_dword v127, v5, {R(STABW)}, s19 offen sc1
        s_mov_b32 exec_hi, -1
        """)
    if 'pf4' in a.opt: a(f"""
    s_xor_b32 s29, s5, 32
    s_lshl_b32 s18, s4, 9
    s_lshl_b32 s19, s29, 3
    s_add_u32 s18, s18, s19
    s_add_u32 s18, s18, {FL2}
    v_mov_b32 v3, 0
    ds_read_b64 v[8:9], v14 offset:{NONCE-PC3}
    buffer_load_dwordx2 v[12:13], v3, {R(SSEG)}, s18 offen sc1
    """)
    if 'pf3' in a.opt: tpf(5)
    a(f"""
    ds_write2st64_b32 v37, v28, v29 offset0:{EALO//256} offset1:{EAHI//256}
    s_cmp_ge_u32 s3, 13
    s_cbranch_scc1 L_s2f
    """)
    auw()
    a(f"""
L_s2f:
L_s2d:
    """)
    a.stamp('s2')
    a(f"""
    s_cmp_gt_u32 s35, 6
    s_cbranch_scc1 L_s3d
    ds_read_b32 v69, v35 offset:{HIST}
    s_waitcnt lgkmcnt(0)
    v_mov_b32 v70, v69
    """)
    a.scan(70)
    a(f"""
    v_sub_u32 v70, v70, v69
    ds_bpermute_b32 v70, v67, v70
    v_max_u32 v65, 2, v66
    s_waitcnt lgkmcnt(0)
    v_add_u32 v70, v70, v68
    v_and_b32 v71, 7, v70
    v_lshrrev_b32 v72, 7, v70
    v_bfe_u32 v73, v70, 3, 4
    v_bfe_i32 v74, v70, 7, 1
    v_and_b32 v74, 15, v74
    v_xor_b32 v73, v73, v74
    v_lshl_add_u32 v74, v73, 2, v72
    v_lshlrev_b32 v74, 2, v74
    v_lshl_add_u32 v73, v73, 3, v71
    v_lshlrev_b32 v73, 3, v73
    v_lshl_add_u32 v73, v72, 1, v73
    s_mov_b64 exec, s[10:11]
    ds_max_u32 v74, v65 offset:{LEN}
    ds_write_b16 v73, v80 offset:{PERM}
    s_mov_b64 exec, -1
L_s3d:
    s_waitcnt lgkmcnt(0)
    s_barrier
    """)
    a(f"""
    ds_read_b32 v40, v35 offset:{LEN}
    v_mov_b32 v42, {FLAG}
    ds_read_b32 v42, v42
    s_lshl_b32 s18, s3, 2
    s_add_u32 s19, s18, 1
    s_add_u32 s20, s18, 2
    s_add_u32 s21, s18, 3
    s_waitcnt lgkmcnt(0)
    v_mov_b32 v41, v40
    v_readfirstlane_b32 s22, v42
    """)
    a.scan(41)
    a(f"""
    s_nop 0
    v_readlane_b32 s23, v41, 63
    v_sub_u32 v41, v41, v40
    v_readlane_b32 s30, v40, s18
    v_readlane_b32 s31, v40, s19
    v_readlane_b32 s32, v40, s20
    v_readlane_b32 s33, v40, s21
    v_readlane_b32 s34, v41, s18
    s_cmp_gt_u32 s23, {ROWCAP}
    s_cselect_b32 s22, 1, s22
    s_cmp_lg_u32 s22, 0
    s_cbranch_scc1 L_slow
    """)
    if a.force_slow: a("s_branch L_slow")
    a(f"""
    s_cmp_gt_u32 s35, 6
    s_cbranch_scc1 L_s4e
    ds_bpermute_b32 v70, v74, v41
    ds_bpermute_b32 v75, v74, v40
    v_lshlrev_b32 v71, 2, v71
    v_add_u32 v71, {ELL}, v71
    v_mov_b32 v72, {CNT+0x7fc}
    v_mov_b32 v73, {TRASH}
    ds_write_b32 v72, v73
    s_waitcnt lgkmcnt(0)
    v_lshl_add_u32 v70, v70, 5, v71
    s_mov_b64 exec, s[10:11]
    ds_write_b32 v64, v70 offset:{CNT}
    s_mov_b64 exec, -1
    s_branch L_s4d
L_s4e:
    """)
    if int(AL[3]):
        a("s_cmp_lg_u32 s16, 1\ns_cbranch_scc1 L_s4d")
        eaq(int(AL[3]))
    a(f"""
L_s4d:
    s_waitcnt lgkmcnt(0)
    s_barrier
    """)
    a.stamp('s4')
    a(f"""
    s_cmp_eq_u32 s16, 1
    s_cbranch_scc1 L_s5
    """)
    if 'ep2' in a.opt: poll2i(a, "a")
    a(f"""
    v_lshl_add_u32 v76, v66, 5, v70
    v_lshl_add_u32 v77, v75, 5, v70
    s_mov_b64 exec, s[10:11]
L_pad:
    v_cmpx_lt_u32 vcc, v76, v77
    s_cbranch_execz L_padd
    ds_write_b32 v76, v78
    v_add_u32 v76, 32, v76
    s_branch L_pad
L_padd:
    s_mov_b64 exec, -1
    """)
    if 'pfo2' in a.opt: a(f"""
    s_mul_i32 s18, s5, {BN*128}
    s_mul_i32 s19, s17, {98*64}
    s_add_u32 s18, s18, s19
    s_add_u32 s19, s18, 4096
    v_lshlrev_b32 v5, 6, v1
    buffer_load_dword v127, v5, {R(STABW)}, s18 offen sc1
    s_mov_b32 exec_hi, 3
    buffer_load_dword v127, v5, {R(STABW)}, s19 offen sc1
    s_mov_b32 exec_hi, -1
    """)
    a(f"""
    s_branch L_s5d
L_s5:
    """)
    if 'pf4' in a.opt:
        a("s_waitcnt vmcnt(2)\nv_cmp_ne_u64 vcc, v[8:9], v[12:13]\ns_cbranch_vccnz L_s5n")
        tpf(29)
        a("L_s5n:")
    for h in range(2):
        for j in range(8*h, 8*h+8): a(f"ds_read_b32 v{80+j}, v{80+j} offset:{CNT}")
        eaq(len(EQ))
        if h == 1: a(f"ds_read_b32 v27, v27 offset:{CNT}")
        for j in range(8*h, 8*h+8):
            a(f"s_waitcnt lgkmcnt({7+h})\nv_lshl_add_u32 v{80+j}, v{RK+j}, 5, v{80+j}\nds_write_b32 v{80+j}, v{SD+j}")
    a(f"""
    s_waitcnt lgkmcnt(8)
    v_lshl_add_u32 v27, v26, 5, v27
    ds_write_b32 v27, v30
L_s5d:
    """)
    msetup(a)
    xy = 0 if 'xlate' in a.opt else 1
    poll2(a, "a", xy if 'ep2' in a.opt else None)
    if 'pf4' in a.opt: a("s_waitcnt lgkmcnt(0)")
    else: a(f"s_cmp_lg_u32 s16, 1\ns_cbranch_scc1 L_s5w\ns_waitcnt vmcnt({xy + (2 if 'pf3' in a.opt else 0)})\nL_s5w:\ns_waitcnt lgkmcnt(0)")
    sel(a, AP, UR, CK if a.pair else 0)
    a.stamp('s5p')
    a("s_barrier")

def consts(a, lab, va, off):
    spin(a, lab, va, off, 'ge', 2, 84)
    a(f"""
    v_and_b32 v92, 7, v1
    v_lshrrev_b32 v93, 4, v1
    v_lshl_add_u32 v88, v92, 2, v93
    v_lshlrev_b32 v88, 1, v88
    ds_read_u16 v84, v88 offset:{WCL}
    ds_read_u16 v85, v88 offset:{WCL+64}
    ds_read_u16 v86, v88 offset:{WCL+128}
    ds_read_u16 v87, v88 offset:{WCL+192}
    v_bfe_u32 v94, v1, 2, 2
    v_and_b32 v95, 3, v1
    v_cmp_eq_u32 s[36:37], v93, v95
    v_mul_u32_u24 v{CAU}, {AUS}, v92
    v_add_u32 v{CAU}, {AU}, v{CAU}
    s_mul_i32 s18, s5, {BN*256}
    s_lshl_b32 s19, s4, 6
    s_add_u32 s18, s18, s19
    v_lshl_add_u32 v{COUT}, v92, 3, s18
    v_cmp_eq_u32 vcc, v94, v93
    v_mov_b32 v89, 0x3f80
    v_mov_b32 v90, 4
    {'v_mov_b32 v90, v95' if 'f4' in a.opt else 'v_cndmask_b32 v90, v90, v95, vcc'}
    v_cmp_eq_u32 s[18:19], 0, v90
    v_cmp_eq_u32 s[20:21], 1, v90
    v_cmp_eq_u32 vcc, 2, v90
    v_cndmask_b32 v{SEL}, 0, v89, s[18:19]
    v_cmp_eq_u32 s[18:19], 3, v90
    v_cndmask_b32 v{SEL+1}, 0, v89, s[20:21]
    v_cndmask_b32 v{SEL+2}, 0, v89, vcc
    v_cndmask_b32 v{SEL+3}, 0, v89, s[18:19]
    ; identity for 4x4x4: lane i=l&3 holds row i
    v_cmp_gt_u32 vcc, 2, v95
    v_and_b32 v91, 1, v95
    v_lshlrev_b32 v91, 4, v91
    v_lshlrev_b32 v91, v91, v89
    v_cndmask_b32 v{IDM}, 0, v91, vcc
    v_xor_b32 v{IDM+1}, v{IDM}, v91
    s_mov_b32 s20, {NLOG2E:#x}
    s_mov_b32 s21, {NLOG2E:#x}
    v_and_b32 v88, 8, v1
    v_cmp_eq_u32 vcc, 0, v88
    s_waitcnt lgkmcnt(0)
    v_lshlrev_b32 v84, 16, v84
    v_lshlrev_b32 v85, 16, v85
    v_lshlrev_b32 v86, 16, v86
    v_lshlrev_b32 v87, 16, v87
    v_pk_mul_f32 v[84:85], v[84:85], s[20:21]
    v_pk_mul_f32 v[86:87], v[86:87], s[20:21]
    v_cvt_pk_bf16_f32 v84, v84, v85
    v_cvt_pk_bf16_f32 v85, v86, v87
    v_cndmask_b32 v{WC+0}, 0, v84, vcc
    v_cndmask_b32 v{WC+1}, 0, v85, vcc
    v_xor_b32 v{WC+2}, v{WC+0}, v84
    v_xor_b32 v{WC+3}, v{WC+1}, v85
    """)

def msetup(a):
    D = a.D
    eps = f2u(1e-6 * 2.0**KS) if a.pair else EPS
    if a.ch: eps = f2u(1e-6 * 2.0**(KC-SC))
    a(f"""
    v_lshrrev_b32 v2, 3, v1
    s_lshl_b32 s19, s3, 6
    v_lshl_add_u32 v7, v2, 3, s19
    ds_read_b64 {v2(IDS)}, v7 offset:{PERM}
    v_bfe_u32 v4, v1, 2, 2
    v_and_b32 v3, 7, v1
    v_lshlrev_b32 v{IDX+1}, 4, v3
    v_lshlrev_b32 v{IDX+3}, 4, v3
    s_lshl_b32 s18, s34, 5
    s_add_u32 s18, s18, {ELL}
    s_add_u32 s19, s18, 2
    v_lshl_add_u32 v{PTR}, v2, 2, s19
    v_lshl_add_u32 v{PTR+1}, v4, 3, s18
    s_movk_i32 s35, 256
    s_movk_i32 s38, {D*32}
    s_movk_i32 s39, {D*32}
    s_mov_b32 s28, {eps:#x}
    s_mov_b32 s29, {eps:#x}
    s_sub_u32 s24, s30, 2
    """)
    if a.ch:
        a(f"s_mov_b32 s26, {f2u(2.0**SC):#x}\ns_mov_b32 s27, {f2u(2.0**(SC-KC)):#x}\ns_mov_b32 s20, {f2u(-float(KC)):#x}\ns_mov_b32 s21, s20")
    elif a.pair:
        a(f"s_mov_b32 s26, {f2u(2.0**-KS):#x}\ns_mov_b32 s27, s26\ns_mov_b32 s20, {f2u(-float(KS)):#x}\ns_mov_b32 s21, s20")
    a(f"""
    s_waitcnt lgkmcnt(0)
    v_mad_u32_u16 v{VOUT}, v{IDS}, s35, v{COUT}
    v_mad_u32_u16 v{VAU}, v{IDS}, 16, v{CAU}
    {'s_mov_b32 s22, 0' if 'xlate' in a.opt else xrl(a)}
    ds_read_b128 {v4(UR)}, v{VAU}
    v_mad_u32_u16 v{VAU}, v{IDS}, 16, v{CAU} op_sel:[1,0,0,0]
    ds_read_b128 {v4(AUN)}, v{VAU}
    v_mov_b64 {v2(EA0)}, 0
    v_mov_b64 {v2(EA0+2)}, 0
    v_mov_b64 {v2(EA0+4)}, 0
    v_mov_b64 {v2(EA0+6)}, 0
    v_mov_b64 {v2(DEN)}, s[28:29]
    v_mov_b64 {v2(DEN+2)}, s[28:29]
    v_mov_b64 {v2(NUM)}, 0
    v_mov_b64 {v2(NUM+2)}, 0
    """)
    if a.pair: a(f"v_mov_b64 {v2(CK)}, s[20:21]\nv_mov_b64 {v2(CK+2)}, s[20:21]")

def poll2i(a, sfx):
    a(f"""
    s_cmp_lg_u32 s3, 12
    s_cbranch_scc1 L_ni2{sfx}
    v_lshlrev_b32 v20, 3, v1
    s_lshl_b32 s12, s4, 9
    s_add_u32 s12, s12, {FL2}
    buffer_load_dwordx2 v[22:23], v20, {R(SSEG)}, s12 offen sc1
    v_mov_b32 v18, {NONCE}
    ds_read_b64 v[18:19], v18
    s_mov_b32 s13, 0x40000
L_ni2{sfx}:
    """)

def poll2(a, sfx, younger=None):
    if younger is None: poll2i(a, sfx)
    a(f"""
    s_cmp_lg_u32 s3, 12
    s_cbranch_scc1 L_np2{sfx}
    v_lshlrev_b32 v20, 3, v1
    s_waitcnt vmcnt({younger or 0}) lgkmcnt(0)
L_poll2{sfx}:
    v_cmpx_ne_u64 vcc, v[18:19], v[22:23]
    s_sub_u32 s13, s13, 1
    s_cbranch_scc1 L_poll2d{sfx}
    s_cbranch_vccz L_poll2d{sfx}
    s_sleep 1
    buffer_load_dwordx2 v[22:23], v20, {R(SSEG)}, s12 offen sc1
    s_waitcnt vmcnt(0)
    s_branch L_poll2{sfx}
L_poll2d{sfx}:
    s_mov_b64 exec, -1
L_np2{sfx}:
    """)

DEN, NUM, AP, T0, EA0, UR, AUN, GR, WC, SEL, IDM, XR = 28, 32, 36, 40, 48, 56, 60, 64, 112, 116, 120, 96
A1, PP, NN, T3, CK = 8, 12, 16, 20, 24
IDX, EAD, PTR, IDS, VAU, VOUT, CAU, COUT, OT = 98, 102, 104, 106, 108, 109, 122, 123, 12
def v4(r): return f"v[{r}:{r+3}]"
def v2(r): return f"v[{r}:{r+1}]"
EAOFF = f"offset0:{EALO//256} offset1:{EAHI//256}"

def xrl(a): return ("; " if 'noxr' in a.opt else "") + f"buffer_load_dwordx2 {v2(XR)}, v{VOUT}, {R(SX)}, 0 offen" + (' nt' if 'xnt' in a.opt else '')

def TB(a, j):
    if a.ch: return T0 + 4*(j & 1)
    return (T0, T0+4, A1, T3)[j & 3] if a.pair else T0 + 4*(j & 1)

def mm(d, x, y, c): return f"v_mfma_f32_16x16x32_bf16 {v4(d)}, {v4(x)}, {v4(y)}, {v4(c) if c else 0}"

def m4(d, h, y, c): return f"v_mfma_f32_4x4x4_16b_bf16 {v4(d)}, {v2(SEL+2*h)}, {v2(y+2*h)}, {v4(c) if c else 0}"
def sel(a, d, y, c):
    if 'f4' in a.opt: a(m4(d, 0, y, c) + "\ns_nop 1\n" + m4(d, 1, y, d))
    else: a(mm(d, SEL, y, c))

def tblock(a, k):
    D = a.D; cl = " clamp" if a.pair else ""
    T = TB(a, k); Tn = TB(a, k+1)
    if 'f4' in a.opt:
        G1 = GR + 4*((k+1) % D)
        a(f"""
        {mm(Tn, EA0 + 4*((k+1) & 1), WC, AP)}
        v_exp_f32 v{T}, v{T}{cl}
        {m4(Tn, 0, G1, Tn)}
        v_exp_f32 v{T+1}, v{T+1}{cl}
        v_exp_f32 v{T+2}, v{T+2}{cl}
        {m4(Tn, 1, G1, Tn)}
        v_exp_f32 v{T+3}, v{T+3}{cl}
        """)
        return
    a(f"""
    {mm(Tn, EA0 + 4*((k+1) & 1), WC, AP)}
    v_exp_f32 v{T}, v{T}{cl}
    {mm(Tn, SEL, GR + 4*((k+1) % D), Tn)}
    v_exp_f32 v{T+1}, v{T+1}{cl}
    v_exp_f32 v{T+2}, v{T+2}{cl}
    v_exp_f32 v{T+3}, v{T+3}{cl}
    """)

def unit(a, k, kind, sw):
    D = a.D; lag = 2 if a.pair else 1; NL = D - lag
    T = TB(a, k); Tp = TB(a, k-1)
    EAw = EA0 + 4*((k+1) & 1)
    Gc = GR + 4*k; Gl = GR + 4*((k-lag) % D); Gp = GR + 4*((k-1) % D)
    Iu = IDX + 2*((k+1) & 1); Iw = IDX + 2*(k & 1)
    one = "s[26:27]" if a.pair else "1.0 op_sel_hi:[1,0]"
    def pk(op, d, x, y, z=None):
        for h in (0, 2):
            a(f"v_pk_{op}_f32 {v2(d+h)}, {v2(x+h)}, " + (v2(y+h) if isinstance(y, int) else y) + (f", {v2(z+h)}" if z is not None else ""))
    def rcp(r):
        for i in range(4): a(f"v_rcp_f32 v{r+i}, v{r+i}")
    a("s_waitcnt lgkmcnt(0)")
    if sw: sel(a, AP, AUN, CK if a.pair else 0)
    a(f"""
    {"; " if 'xl' in a.opt else ""}buffer_load_dwordx4 {v4(Gl)}, {v2(Iu)}, {R(STAB)}, 0 idxen offen sc1
    s_mov_b64 exec, s[36:37]
    ds_read2st64_b32 {v2(EAw)}, v{EAD} {EAOFF}
    ds_read2st64_b32 {v2(EAw+2)}, v{EAD+1} {EAOFF}
    ds_read_u16 v{EAD}, v{PTR+1} offset:{(k+4)*32}
    ds_read_u16 v{EAD+1}, v{PTR+1} offset:{(k+4)*32+4}
    s_mov_b64 exec, -1
    ds_read_u16 v{Iw}, v{PTR} offset:{(k+NL+1)*32}
    s_waitcnt vmcnt({NL-2})
    """)
    if sw and 'xlate' in a.opt: a(f"s_cmp_lg_u32 s22, 0\ns_cbranch_scc1 L_xl{kind}{k}\n{xrl(a)}\nL_xl{kind}{k}:")
    if k == D-1: a(f"v_lshl_add_u64 {v2(PTR)}, {v2(PTR)}, 0, s[38:39]")
    if a.ch:
        P, Nn, Dn, Q = PP, NN, A1, T3
        def av(d):
            for h in (0, 2): a(f"v_pk_fma_f32 {v2(d+h)}, {v2(T+h)}, s[26:27], s[26:27] op_sel:[0,0,1] op_sel_hi:[1,0,1]")
        def f1(d, x):
            for h in (0, 2): a(f"v_pk_fma_f32 {v2(d+h)}, {v2(d+h)}, {v2(x+h)}, 1.0 op_sel_hi:[1,1,0]")
        m, p = kind[0], int(kind[1])
        if m == 'l':
            av(T)
            if p == 0: f1(DEN, T); pk('fma', NUM, NUM, T, Gc)
            else: pk('mul', NUM, NUM, T); pk('fma', DEN, DEN, T, P); pk('fma', NUM, Gc, P, NUM)
            return
        if p == 0:
            av(P)
            if m == 'p': f1(DEN, P); pk('fma', NUM, NUM, P, Gc)
        elif p == 1:
            av(T); pk('mul', Nn, T, Gp); pk('add', Dn, P, T); pk('fma', Nn, P, Gc, Nn); pk('mul', P, P, T)
        elif p == 2:
            av(T); pk('mul', Nn, Nn, T); pk('fma', Dn, Dn, T, P); pk('fma', Nn, Gc, P, Nn); pk('mul', P, P, T)
        else:
            av(T); pk('mul', Q, P, T); rcp(Q)
            pk('mul', Nn, Nn, T); pk('fma', Dn, Dn, T, P); pk('fma', Nn, Gc, P, Nn)
            pk('fma', DEN, Dn, Q, DEN); pk('fma', NUM, Nn, Q, NUM)
        if m == 'p' and p in (1, 2):
            pk('fma', DEN, DEN, P, Dn); pk('fma', NUM, NUM, P, Nn)
        return
    if kind == 'U':
        pk('add', T, T, one); rcp(T); pk('add', DEN, DEN, T); pk('fma', NUM, T, Gc, NUM)
    elif kind == 'S':
        pk('add', Tp, Tp, one); pk('add', T, T, one); pk('mul', PP, Tp, T); rcp(PP)
        pk('mul', NN, T, Gp); pk('add', T, T, Tp); pk('fma', NN, Tp, Gc, NN)
        pk('fma', DEN, T, PP, DEN); pk('fma', NUM, NN, PP, NUM)

def phase_m(a):
    D = a.D; lag = 2 if a.pair else 1; NL = D - lag
    a.stamp(9)
    if a.prof:
        a("v_mov_b32 v126, v15\ns_memtime s[86:87]\ns_waitcnt lgkmcnt(0)\ns_sub_u32 s92, s86, s92\nv_writelane_b32 v126, s92, 30"); a.sreg = 126
    if 'prio' in a.opt: a("s_setprio 3\ns_mov_b32 s23, 3")
    for q in range(NL): a(f"ds_read_u16 v{8+q}, v{PTR} offset:{q*32}")
    a(f"""
    ds_read_u16 v16, v{PTR+1}
    ds_read_u16 v17, v{PTR+1} offset:4
    ds_read_u16 v18, v{PTR+1} offset:32
    ds_read_u16 v19, v{PTR+1} offset:36
    ds_read_u16 v{IDX+2}, v{PTR} offset:{NL*32}
    """)
    for q in range(NL):
        a(f"s_waitcnt lgkmcnt({NL-1-q+5})\nv_lshl_add_u32 v{8+q}, v{8+q}, 7, v{IDX+1}\nbuffer_load_dwordx4 {v4(GR+4*q)}, v{8+q}, {R(STABW)}, 0 offen sc1")
        if q == 0: a(f"""
        s_waitcnt lgkmcnt(1)
        s_mov_b64 exec, s[36:37]
        ds_read2st64_b32 {v2(EA0)}, v16 {EAOFF}
        ds_read2st64_b32 {v2(EA0+2)}, v17 {EAOFF}
        ds_read2st64_b32 {v2(EA0+4)}, v18 {EAOFF}
        ds_read2st64_b32 {v2(EA0+6)}, v19 {EAOFF}
        ds_read_u16 v{EAD}, v{PTR+1} offset:64
        ds_read_u16 v{EAD+1}, v{PTR+1} offset:68
        s_mov_b64 exec, -1
        """)
    a(f"""
    s_waitcnt lgkmcnt(0)
    {mm(TB(a, 0), EA0, WC, AP)}
    s_waitcnt vmcnt({NL-1})
    s_nop 4
    """)
    sel(a, TB(a, 0), GR, TB(a, 0))
    a(f"""
    s_mov_b64 exec, s[36:37]
    ds_read2st64_b32 {v2(EA0)}, v{EAD} {EAOFF}
    ds_read2st64_b32 {v2(EA0+2)}, v{EAD+1} {EAOFF}
    ds_read_u16 v{EAD}, v{PTR+1} offset:96
    ds_read_u16 v{EAD+1}, v{PTR+1} offset:100
    s_mov_b64 exec, -1
    s_waitcnt vmcnt({NL-2})
    s_nop 1
    """)
    a.stamp(10)
    tblock(a, 0)
    if a.prof:
        a(f"s_mov_b32 s90, {len(a.names)}"); a.names += ['g1', 'g2', 'g3', 'g4']
    CS = list(range(0, 4, 4 // a.ch)) if a.ch else []
    for c in CS:
        for j in range(D):
            k = (j + c) % D
            a(f"L_m{c}_{k}:\ns_sub_u32 s24, s24, 1\ns_cbranch_scc1 L_b{c}_{k}")
            unit(a, k, f"n{j & 3}", False)
            tblock(a, k+1)
        a(f"s_branch L_m{c}_{c}")
    for c in (() if a.ch else (0, 1) if a.pair else (0,)):
        for j in range(D):
            k = (j + c) % D; kind = 'FS'[j & 1] if a.pair else 'U'
            lab = kind if a.pair else 'F'
            a(f"L_m{lab}{k}:\ns_sub_u32 s24, s24, 1\ns_cbranch_scc1 L_b{lab}{k}")
            unit(a, k, kind, False)
            tblock(a, k+1)
        a(f"s_branch L_mF{c}")
    for k0 in range(D):
      for kd in (CS if a.ch else 'FS' if a.pair else 'F'):
        k = (k0 + 1) % D
        OT = T3 if a.ch else 12
        if a.ch:
            a(f"L_b{kd}_{k0}:")
            unit(a, k0, f"p{(k0-kd) & 3}", True)
            tblock(a, k0+1)
            unit(a, k, f"l{(k0+1-kd) & 3}", False)
            if kd != CS[-1]:
                a(f"s_branch L_ep{k}"); continue
        else:
          a(f"L_b{kd}{k0}:")
          unit(a, k0, kd if a.pair else 'U', True)
          tblock(a, k0+1)
          unit(a, k, 'S' if a.pair and kd == 'F' else 'U', False)
          if a.pair and kd == 'F':
            a(f"s_branch L_ep{k}"); continue
        a(f"""
L_ep{k}:
        v_rcp_f32 v{DEN}, v{DEN}
        v_rcp_f32 v{DEN+1}, v{DEN+1}
        v_rcp_f32 v{DEN+2}, v{DEN+2}
        v_rcp_f32 v{DEN+3}, v{DEN+3}
        s_cmp_ge_u32 s{22 if 'xlate' in a.opt else 30}, {NL-2}
        s_cbranch_scc1 L_bx{k}
        s_waitcnt vmcnt(1)
L_bx{k}:
        v_pk_fma_f32 {v2(NUM)}, {v2(NUM)}, {v2(DEN)}, {v2(UR)}
        v_pk_fma_f32 {v2(NUM+2)}, {v2(NUM+2)}, {v2(DEN+2)}, {v2(UR+2)}
        ds_read_b128 {v4(UR)}, v{VAU}
        v_max_f32 v{NUM}, 0, v{NUM}
        v_max_f32 v{NUM+1}, 0, v{NUM+1}
        v_max_f32 v{NUM+2}, 0, v{NUM+2}
        v_max_f32 v{NUM+3}, 0, v{NUM+3}
        v_lshrrev_b64 {v2(IDS)}, 16, {v2(IDS)}
        v_mov_b64 {v2(DEN)}, s[28:29]
        v_mfma_f32_4x4x4_16b_bf16 {v4(OT)}, {v2(IDM)}, {v2(XR)}, {v4(NUM)}
        v_mov_b64 {v2(DEN+2)}, s[28:29]
        v_mad_u32_u16 v{VAU}, v{IDS}, 16, v{CAU} op_sel:[1,0,0,0]
        v_mov_b64 {v2(NUM)}, 0
        v_mov_b64 {v2(NUM+2)}, 0
        ds_read_b128 {v4(AUN)}, v{VAU}
        v_cvt_pk_bf16_f32 v{OT}, v{OT}, v{OT+1}
        v_cvt_pk_bf16_f32 v{OT+1}, v{OT+2}, v{OT+3}
        s_mov_b32 s30, s31
        {'s_mov_b32 s22, s31' if 'xlate' in a.opt else ''}
        s_mov_b32 s31, s32
        s_mov_b32 s32, s33
        s_mov_b32 s33, 0
        {f"s_cmp_lg_u32 s30, 0{chr(10)}s_cbranch_scc1 L_ns{k}" if 'nost' in a.opt else ''}
        buffer_store_dwordx2 {v2(OT)}, v{VOUT}, {R(SOUT)}, 0 offen{' sc1' if 'osc1' in a.opt and 'nosc' not in a.opt else ''}{' nt' if 'ont' in a.opt else ''}
L_ns{k}:
        """)
        if a.prof: a("s_memrealtime s[100:101]\ns_waitcnt lgkmcnt(0)\ns_add_u32 s90, s90, 1\ns_mov_b32 m0, s90\nv_writelane_b32 v126, s100, m0")
        a(f"""
        v_mad_u32_u16 v{VOUT}, v{IDS}, s35, v{COUT}
        s_sub_u32 s24, s30, 2
        s_cbranch_scc1 L_fin
        {xrl(a)}
        """)
        if 'p4' in a.opt: a(f"""
        s_cmp_lg_u32 s32, 0
        s_cbranch_scc1 L_pt{k}
        s_setprio 2
        s_cmp_lg_u32 s31, 0
        s_cbranch_scc1 L_pt{k}
        s_setprio 1
L_pt{k}:
        """)
        elif 'prio' in a.opt: a(f"""
        s_sub_u32 s23, s23, 1
        s_cmp_eq_u32 s23, 2
        s_cbranch_scc0 L_pr{k}
        s_setprio 2
L_pr{k}:
        s_cmp_eq_u32 s23, 1
        s_cbranch_scc0 L_ps{k}
        s_setprio 1
L_ps{k}:
        s_cmp_eq_u32 s23, 0
        s_cbranch_scc0 L_pt{k}
        s_setprio 0
L_pt{k}:
        """)
        if a.ch:
            p = ((k+1) & 3) % (4 // a.ch); c = ((k+1) & 3) - p
            if p == 1:
                a(f"v_mov_b32 v{PP}, {f2u(2.0**35):#x}\nv_mov_b32 v{PP+1}, v{PP}\nv_mov_b64 {v2(PP+2)}, {v2(PP)}\nv_mov_b64 {v2(GR+4*k)}, 0\nv_mov_b64 {v2(GR+4*k+2)}, 0")
            elif p > 1:
                a(f"v_mov_b32 v{PP}, 1.0\nv_mov_b32 v{PP+1}, 1.0\nv_mov_b64 {v2(PP+2)}, {v2(PP)}")
                for r in (NN, NN+2, A1, A1+2): a(f"v_mov_b64 {v2(r)}, 0")
            tblock(a, k+1)
            a(f"s_branch L_m{c}_{(k+1) % D}")
            continue
        tblock(a, k+1)
        a(f"s_branch L_mF{(k+1) % D}")

def slow(a):
    a(f"""
L_slow:
    s_waitcnt vmcnt(0) lgkmcnt(0)
    s_barrier
    v_mov_b64 v[4:5], 0
    v_mov_b64 v[6:7], 0
    v_lshlrev_b32 v2, 4, v0
    v_add_u32 v2, {ACC}, v2
    s_mov_b32 s18, 0
L_sz:
    v_cmp_gt_u32 vcc, {ACC+100352}, v2
    s_mov_b64 exec, vcc
    ds_write_b128 v2, v[4:7]
    s_mov_b64 exec, -1
    v_add_u32 v2, 16384, v2
    s_add_u32 s18, s18, 1
    s_cmp_lt_u32 s18, 7
    s_cbranch_scc1 L_sz
    s_cmp_gt_u32 s3, 1
    s_cbranch_scc1 L_swc
    v_lshrrev_b32 v3, 4, v0
    v_bfe_u32 v4, v0, 2, 2
    v_and_b32 v5, 3, v0
    v_lshl_add_u32 v3, v3, 2, v5
    v_lshlrev_b32 v3, 1, v3
    v_lshl_add_u32 v3, v4, 8, v3
    s_lshl_b32 s20, s4, 6
    buffer_load_ushort v3, v3, {R(SWC)}, s20 offen
    v_lshlrev_b32 v4, 2, v0
    v_add_u32 v4, {WCF}, v4
    s_waitcnt vmcnt(0)
    v_lshlrev_b32 v3, 16, v3
    v_mul_f32 v3, {NLOG2E:#x}, v3
    ds_write_b32 v4, v3
L_swc:
    """)
    poll2(a, "b")
    a(f"""
    s_waitcnt vmcnt(0) lgkmcnt(0)
    s_barrier
    s_mul_i32 s20, s5, {BN}
    s_mov_b32 s21, {E}
    s_movk_i32 s22, {BN}
    v_mov_b32 v2, v0
    s_mov_b32 s18, 0
L_se:
    v_lshlrev_b32 v3, 2, v2
    v_lshlrev_b32 v4, 3, v2
    buffer_load_dword v5, v3, {R(SDST)}, 0 offen
    v_cmp_gt_u32 s[24:25], s21, v2
    s_waitcnt vmcnt(0)
    v_subrev_u32 v5, s20, v5
    v_cmp_gt_u32 vcc, s22, v5
    s_and_b64 exec, vcc, s[24:25]
    s_cbranch_execz L_sn
    buffer_load_dword v6, v3, {R(SSRC)}, 0 offen
    buffer_load_dwordx2 v[8:9], v4, {R(SEA)}, 0 offen
    v_lshlrev_b32 v7, 4, v5
    v_add_u32 v7, {AU}, v7
    v_lshlrev_b32 v14, 8, v5
    v_add_u32 v14, {ACC}, v14
    v_mov_b32 v15, {WCF}
    s_mov_b32 s19, 0
    s_waitcnt vmcnt(0)
    v_lshlrev_b32 v6, 7, v6
    v_lshlrev_b32 v10, 16, v8
    v_and_b32 v11, 0xffff0000, v8
    v_lshlrev_b32 v12, 16, v9
    v_and_b32 v13, 0xffff0000, v9
L_sc:
    buffer_load_dwordx4 v[16:19], v6, {R(STABW)}, s19 offen sc1
    ds_read_b128 v[20:23], v7
    ds_read_b128 v[24:27], v15
    ds_read_b128 v[28:31], v15 offset:16
    ds_read_b128 v[32:35], v15 offset:32
    ds_read_b128 v[36:39], v15 offset:48
    s_waitcnt vmcnt(0) lgkmcnt(0)
    """)
    for r in range(4):
        a(f"""
        v_lshlrev_b32 v40, 16, v{16+r}
        v_lshlrev_b32 v41, 16, v{20+r}
        v_add_f32 v40, v40, v41
        v_fmac_f32 v40, v10, v{24+r}
        v_fmac_f32 v40, v11, v{28+r}
        v_fmac_f32 v40, v12, v{32+r}
        v_fmac_f32 v40, v13, v{36+r}
        v_exp_f32 v40, v40
        s_nop 0
        v_add_f32 v40, 1.0, v40
        v_rcp_f32 v40, v40
        s_nop 0
        v_mul_f32 v41, v40, v{16+r}
        ds_add_f32 v14, v40 offset:{4*r}
        ds_add_f32 v14, v41 offset:{128+4*r}
        """)
    a(f"""
    v_add_u32 v7, {AUS}, v7
    v_add_u32 v14, 16, v14
    v_add_u32 v15, 64, v15
    s_add_u32 s19, s19, 16
    s_cmp_lt_u32 s19, 128
    s_cbranch_scc1 L_sc
L_sn:
    s_mov_b64 exec, -1
    v_add_u32 v2, 1024, v2
    s_add_u32 s18, s18, 1
    s_cmp_lt_u32 s18, {(E+1023)//1024}
    s_cbranch_scc1 L_se
    s_waitcnt lgkmcnt(0)
    s_barrier
    s_mul_i32 s20, s5, {BN*256}
    s_lshl_b32 s19, s4, 6
    s_add_u32 s20, s20, s19
    v_mov_b32 v2, v0
    s_mov_b32 s18, 0
L_so:
    v_cmp_gt_u32 vcc, {BN*8}, v2
    s_mov_b64 exec, vcc
    s_cbranch_execz L_fin
    v_lshrrev_b32 v3, 3, v2
    v_and_b32 v4, 7, v2
    v_lshlrev_b32 v5, 8, v3
    v_lshl_add_u32 v6, v4, 3, v5
    buffer_load_dwordx2 v[8:9], v6, {R(SX)}, s20 offen
    v_lshl_add_u32 v5, v4, 4, v5
    v_add_u32 v5, {ACC}, v5
    ds_read_b128 v[16:19], v5
    ds_read_b128 v[20:23], v5 offset:128
    v_mul_u32_u24 v7, {AUS}, v4
    v_lshl_add_u32 v7, v3, 4, v7
    v_add_u32 v7, {AU}, v7
    ds_read_b128 v[24:27], v7
    s_waitcnt vmcnt(0) lgkmcnt(0)
    v_lshlrev_b32 v10, 16, v8
    v_and_b32 v11, 0xffff0000, v8
    v_lshlrev_b32 v12, 16, v9
    v_and_b32 v13, 0xffff0000, v9
    """)
    for r in range(4):
        a(f"""
        v_add_f32 v{16+r}, {EPS:#x}, v{16+r}
        v_rcp_f32 v{16+r}, v{16+r}
        s_nop 0
        v_fmac_f32 v{24+r}, v{16+r}, v{20+r}
        v_max_f32 v{24+r}, 0, v{24+r}
        v_add_f32 v{24+r}, v{24+r}, v{10+r}
        """)
    a(f"""
    v_cvt_pk_bf16_f32 v8, v24, v25
    v_cvt_pk_bf16_f32 v9, v26, v27
    buffer_store_dwordx2 v[8:9], v6, {R(SOUT)}, s20 offen
    v_add_u32 v2, 1024, v2
    s_add_u32 s18, s18, 1
    s_cmp_lt_u32 s18, 4
    s_cbranch_scc1 L_so
    """)

def fin(a):
    a("L_fin:")
    if a.prof:
        a("s_mov_b64 exec, -1\ns_waitcnt vmcnt(0)")
        a.stamp(11)
        a(f"""
        v_writelane_b32 v126, s84, 0
        s_memtime s[88:89]
        s_waitcnt lgkmcnt(0)
        s_sub_u32 s88, s88, s86
        v_writelane_b32 v126, s88, 31
        s_lshl_b32 s18, s2, 11
        s_lshl_b32 s19, s3, 7
        s_add_u32 s18, s18, s19
        s_add_u32 s18, s18, {PROFOFF}
        v_lshlrev_b32 v3, 2, v1
        s_mov_b32 exec_lo, -1
        s_mov_b32 exec_hi, 0
        buffer_store_dword v126, v3, {R(SSEG)}, s18 offen
        """)
        a("; STAMPS " + ",".join(["start"] + [str(x) for x in a.names]))
    a("L_end:\ns_endpgm")

def build(D=8, prof=False, force_slow=False, opt=()):
    a = G(D, prof, force_slow, opt)
    prologue(a); phase_p(a); phase_g(a); phase_s(a); phase_m(a); slow(a); fin(a)
    errs = hz.check(a.L)
    for e in errs: print("WARN", e, file=sys.stderr)
    ref = open(f"cdna_kernels/{NAME}.s.ref").read().split('\n')
    head = [l for l in ref if l.startswith(';') and '@launch' not in l]
    out = head + [f"; @launch grid=(256,1,1) block=(1024,1,1) lds={LDS_SIZE}",
        '.amdgcn_target "amdgcn-amd-amdhsa--gfx950"', '.text', f'.globl {NAME}_kernel', '.p2align 8',
        f'.type {NAME}_kernel,@function', f'{NAME}_kernel:'] + a.L + [
        '.section .rodata,"a"', '.p2align 6', f'.amdhsa_kernel {NAME}_kernel',
        '  .amdhsa_next_free_vgpr 128', '  .amdhsa_next_free_sgpr 102', '  .amdhsa_accum_offset 128',
        '  .amdhsa_group_segment_fixed_size 0', '  .amdhsa_kernarg_size 96', '  .amdhsa_user_sgpr_count 2',
        '  .amdhsa_user_sgpr_kernarg_segment_ptr 1', '  .amdhsa_system_sgpr_workgroup_id_x 1', '.end_amdhsa_kernel', '']
    return '\n'.join(out)

if __name__ == '__main__':
    ap = argparse.ArgumentParser()
    ap.add_argument('-o', default=f"cdna_kernels/{NAME}.s")
    ap.add_argument('-D', type=int, default=8)
    ap.add_argument('--prof', action='store_true')
    ap.add_argument('--slow', action='store_true')
    ap.add_argument('--opt', default='')
    x = ap.parse_args()
    open(x.o, 'w').write(build(x.D, x.prof, x.slow, x.opt.split(',')))
```

```python
import sys, struct, argparse
import hz

NAME = "standalone__edge_featured_mpnn_gatedgcn__graph"
N, E = 25000, 400000
BN = 392
CH = 1564
MARK = 0x800007FC
DUMMY = 25100
OVF = 8 << 20
FL2 = 7 << 20
TABOFF = 16 << 20
TABSL = 25600 * 128
PROFOFF = 64 << 20
PCNT, HIST, LEN, FLAG, PC1, OVC, PC3, XGO, PC2, F1, WCNT, XL, NONCE, TRASH, PERM, CNT, WCL = 0, 256, 512, 768, 772, 776, 780, 784, 788, 792, 796, 800, 808, 816, 1024, 2048, 3712
XD0, XD1 = F1, 820
TAGM = 0xF803
RETRY = 2048
XT = 4096
WL = XT + BN * 256
IMG = WL + 32768
OVL = IMG + 24576
LDS_SIZE = 163840
AUS = 6288
AU = LDS_SIZE - 8 * AUS
STG = WL
EALO = 4096
EASZ = 34816
EAHI = EALO + EASZ
ELL = EAHI + EASZ
ROWCAP = 1008
ZSLOT = 32768 + 63 * 4
ACC = 4096
WCF = WL
assert ELL + 32768 <= AU and STG + 8192 <= AU and OVL + 1024 <= LDS_SIZE
NLOG2E = struct.unpack('<I', struct.pack('<f', -1.4426950408889634))[0]
KC, SC = 40, 15
KS = 48
def f2u(x): return struct.unpack('<I', struct.pack('<f', x))[0]
EPS = struct.unpack('<I', struct.pack('<f', 1e-6))[0]

class G:
    def __init__(s, D=8, prof=False, force_slow=False, opt=()):
        s.opt = set(opt); s.pair = 'pair' in opt; s.XE = ([int(o[1:]) for o in opt if o[:1] == 'X'] + [0])[0]; s.EE = ([int(o[1:]) for o in opt if o[:1] == 'E'] + [0])[0]; s.YE = ([int(o[1:]) for o in opt if o[:1] == 'Y'] + [0])[0]; s.HD = ([int(o[1:]) for o in opt if o[:1] == 'H'] + [0])[0]; s.T = ([int(o[1:]) for o in opt if o[:1] == 'T'] + [0])[0]
        s.dup = ([o[3] for o in opt if o[:3] == 'dup'] + [''])[0]; s.dupw = ([int(o[4:]) for o in opt if o[:3] == 'dup'] + [0])[0]; s.ch = ([int(o[2:]) for o in opt if o[:2] == 'ch'] + [0])[0]; s.L = []; s.D = D; s.prof = prof; s.force_slow = force_slow; s.nst = 0; s.names = []; s.sreg = 15
    def __call__(s, txt):
        for l in txt.strip('\n').split('\n'):
            l = l.strip()
            if l: s.L.append(('' if l.endswith(':') else '    ') + l)
    def srd(s, d, p, n, extra1=None):
        s(f"s_mov_b32 s{d}, s{p}")
        if extra1 is None: s(f"s_mov_b32 s{d+1}, s{p+1}")
        else: s(f"s_or_b32 s{d+1}, s{p+1}, {extra1:#x}")
        s(f"s_mov_b32 s{d+2}, {n:#x}\ns_mov_b32 s{d+3}, 0x20000")
    def stamp(s, k):
        if s.prof:
            s.names.append(k)
            s(f"s_memrealtime s[100:101]\ns_waitcnt lgkmcnt(0)\nv_writelane_b32 v{s.sreg}, s100, {len(s.names)}")
    def scan(s, v):
        for m in ("row_shr:1 row_mask:0xf bank_mask:0xf bound_ctrl:0", "row_shr:2 row_mask:0xf bank_mask:0xf bound_ctrl:0",
                  "row_shr:4 row_mask:0xf bank_mask:0xf bound_ctrl:0", "row_shr:8 row_mask:0xf bank_mask:0xf bound_ctrl:0",
                  "row_bcast:15 row_mask:0xa bank_mask:0xf", "row_bcast:31 row_mask:0xc bank_mask:0xf"):
            s(f"s_nop 1\nv_add_u32_dpp v{v}, v{v}, v{v} {m}")

SX, SEA, SSRC, SDST, SW, SOUT, SDBG, SSEG, STABW, STAB, SWC = 40, 44, 48, 52, 56, 60, 64, 68, 72, 76, 80
def R(d): return f"s[{d}:{d+3}]"

def w2(a, lab, k, extra):
    a(f"s_cbranch_scc1 {lab}\ns_waitcnt vmcnt({k})\n{lab}:\ns_waitcnt vmcnt({k+extra})")

def srds(a):
    a.srd(SOUT, 34, N*256); a.srd(SDBG, 36, 256)
    a.srd(SSEG, 38, (PROFOFF + (1 << 20)) if a.prof else TABOFF)
    a(f"""
    s_mul_i32 s9, s4, {TABSL}
    s_add_u32 s9, s9, {TABOFF}
    s_add_u32 s12, s38, s9
    s_addc_u32 s13, s39, 0
    """)
    a.srd(STABW, 12, TABSL); a.srd(STAB, 12, 25600, extra1=128 << 16)

def xdma(a, lab):
    nt = ' nt' if 'dnt' in a.opt else ''
    a(f"""
    s_mul_i32 s14, s5, {BN*256}
    s_lshl_b32 s15, s3, 13
    s_add_u32 s14, s14, s15
    s_add_u32 m0, s15, {XT}
    v_xor_b32 v17, 64, v16
    v_xor_b32 v18, 0x80, v16
    v_xor_b32 v19, 0xc0, v16
    s_cmp_eq_u32 s3, 12
    buffer_load_dwordx4 v16, {R(SX)}, s14 offen{nt} lds
    buffer_load_dwordx4 v17, {R(SX)}, s14 offen offset:1024{nt} lds
    s_cbranch_scc1 {lab}
    buffer_load_dwordx4 v18, {R(SX)}, s14 offen offset:2048{nt} lds
    buffer_load_dwordx4 v19, {R(SX)}, s14 offen offset:3072{nt} lds
    s_add_u32 m0, s15, {XT+4096}
    s_add_u32 s14, s14, 4096
    buffer_load_dwordx4 v16, {R(SX)}, s14 offen{nt} lds
    buffer_load_dwordx4 v17, {R(SX)}, s14 offen offset:1024{nt} lds
    buffer_load_dwordx4 v18, {R(SX)}, s14 offen offset:2048{nt} lds
    buffer_load_dwordx4 v19, {R(SX)}, s14 offen offset:3072{nt} lds
{lab}:
    """)

def spin(a, lab, vaddr, off, cmp, val, vt=32):
    a(f"""
{lab}:
    ds_read_b32 v{vt}, v{vaddr} offset:{off}
    s_waitcnt lgkmcnt(0)
    v_readfirstlane_b32 s18, v{vt}
    s_cmp_{cmp}_u32 s18, {val}
    s_cbranch_scc1 {lab}d
    s_sleep 1
    s_branch {lab}
{lab}d:
    """)

def allsrds(a):
    a.srd(SDST, 22, E*4); a.srd(SSRC, 20, E*4); a.srd(SEA, 18, E*8)
    a.srd(SWC, 28, 1024)
    srds(a)

MAP = ["""s_and_b32 s4, s2, 3
    s_lshr_b32 s5, s2, 3
    s_bfe_u32 s6, s2, 0x10002
    s_lshl_b32 s6, s6, 5
    s_add_u32 s5, s5, s6""",
    """s_and_b32 s4, s2, 1
    s_lshl_b32 s4, s4, 1
    s_bfe_u32 s6, s2, 0x10003
    s_add_u32 s4, s4, s6
    s_lshr_b32 s5, s2, 4
    s_bfe_u32 s6, s2, 0x20001
    s_lshl_b32 s6, s6, 4
    s_add_u32 s5, s5, s6""",
    """s_bfe_u32 s4, s2, 0x20003
    s_lshr_b32 s5, s2, 5
    s_and_b32 s6, s2, 7
    s_lshl_b32 s6, s6, 3
    s_add_u32 s5, s5, s6"""]

def icw(a):
    if 'icw' not in a.opt: return ''
    return """s_cmp_lg_u32 s3, 15
    s_cbranch_scc1 L_icd
    s_getpc_b64 s[12:13]
L_icp:
    v_lshlrev_b32 v6, 7, v1
    v_mov_b32 v7, 0
    v_lshl_add_u64 v[6:7], v[6:7], 0, s[12:13]
    s_mov_b32 s12, 8192
    s_mov_b32 s13, 0
    global_load_dword v127, v[6:7], off offset:1024
    v_lshl_add_u64 v[6:7], v[6:7], 0, s[12:13]
    global_load_dword v127, v[6:7], off offset:1024
L_icd:"""

def prologue(a):
    a(f"""
    s_cmp_ge_u32 s2, 256
    s_cbranch_scc1 L_end
    s_load_dwordx16 s[16:31], s[0:1], 0
    s_load_dwordx8 s[32:39], s[0:1], 64
    """)
    if 'icx' in a.opt: a("""
    s_getpc_b64 s[12:13]
L_icp:
    v_lshlrev_b32 v6, 7, v0
    v_mov_b32 v7, 0
    v_cmp_gt_u32 vcc, L_slow-L_icp-128, v6
    v_lshl_add_u64 v[6:7], v[6:7], 0, s[12:13]
    s_and_b64 exec, vcc, vcc
    s_cbranch_scc0 L_icd
    global_load_dword v127, v[6:7], off offset:128
L_icd:
    s_mov_b64 exec, -1
    """)
    if a.prof: a("s_memrealtime s[84:85]\ns_memtime s[92:93]\nv_mov_b32 v15, 0")
    a(f"""
    v_lshrrev_b32 v2, 6, v0
    v_and_b32 v1, 63, v0
    v_lshlrev_b32 v4, 4, v0
    v_readfirstlane_b32 s3, v2
    v_mov_b32 v3, 0
    s_lshl_b32 s9, s2, 4
    s_add_u32 s9, s9, s3
    s_cmp_lg_u32 s9, 14
    s_cbranch_scc1 L_i0
    ; launch tag: a mix of the clock, published through d_debug
    s_memrealtime s[12:13]
    s_waitcnt lgkmcnt(0)
    s_mul_i32 s14, s12, 0x9E3779B1
    s_mul_i32 s12, s12, 0x85EBCA6B
    s_xor_b32 s13, s13, s12
    s_bitset1_b32 s13, 31
    v_mov_b32 v8, s14
    v_mov_b32 v9, s13
    s_mov_b64 exec, 1
    global_store_dwordx2 v3, v[8:9], s[36:37] offset:136 sc1
    s_mov_b64 exec, -1
L_i0:
    {icw(a)}
    v_lshrrev_b32 v6, 3, v0
    v_mul_u32_u24 v6, 384, v6
    v_and_b32 v7, 7, v0
    v_lshl_add_u32 v6, v7, 4, v6
    v_add_u32 v6, {IMG+256}, v6
    v_subrev_u32 v7, {512*16}, v4
    s_cmp_lt_u32 s3, 8
    s_cselect_b32 s9, {MARK:#x}, 0
    v_mov_b32 v20, s9
    v_mov_b32 v21, s9
    v_mov_b32 v22, s9
    v_mov_b32 v23, s9
    s_cbranch_scc1 L_i1
    v_mov_b32 v6, v7
L_i1:
    s_cmp_ge_u32 s3, 12
    s_cbranch_scc1 L_i2
    ds_write_b128 v6, v[20:23]
L_i2:
    {MAP[2 if 'map4' in a.opt else 1 if 'map2' in a.opt else 0]}
    v_subrev_u32 v3, {320*16}, v4
    v_lshlrev_b32 v4, 1, v3
    s_mul_i32 s6, s2, {CH*4}
    s_lshl_b32 s7, s6, 1
    s_movk_i32 s8, {CH*4}
    s_cmp_eq_u32 s2, 255
    s_cselect_b32 s8, {(E-255*CH)*4}, s8
    v_cmp_gt_u32 s[10:11], s8, v3
    v_lshrrev_b32 v5, 2, v1
    v_and_b32 v6, 3, v1
    v_lshlrev_b32 v6, 4, v6
    v_lshl_or_b32 v5, v5, 8, v6
    v_lshrrev_b32 v6, 4, v1
    v_and_b32 v7, 15, v1
    v_xor_b32 v16, v7, v6
    v_lshlrev_b32 v6, 8, v6
    v_lshl_or_b32 v16, v16, 4, v6
    v_mov_b32 v2, 1
    v_mov_b32 v30, {FLAG}
    s_cmp_lt_u32 s3, 5
    s_cbranch_scc1 L_i3
    s_setprio 2
L_i3:
    s_waitcnt lgkmcnt(0)
    s_barrier
    """)
    a.srd(SX, 16, N*256)
    a(f"""
    s_cmp_ge_u32 s3, 5
    s_cbranch_scc1 L_l0
    s_cmp_eq_u32 s3, 4
    s_cbranch_scc1 L_e1
    s_cmp_eq_u32 s3, 0
    s_cselect_b64 s[12:13], s[26:27], s[32:33]
    s_cmp_eq_u32 s3, 2
    s_cselect_b64 s[12:13], s[24:25], s[12:13]
    s_cmp_eq_u32 s3, 3
    s_cselect_b64 s[12:13], s[30:31], s[12:13]
    """)
    a.srd(SW, 12, 32768)
    a(f"""
    s_lshl_b32 s15, s3, 13
    s_lshl_b32 s14, s4, 6
    """)
    for q in range(8):
        if q % 4 == 0: a(f"s_add_u32 m0, s15, {WL + q*1024}")
        a(f"s_add_u32 s12, s14, {q*4096 - (q%4)*1024}\nbuffer_load_dwordx4 v5, {R(SW)}, s12 offen offset:{(q%4)*1024} lds")
    a("L_e1:")
    if a.T:
        allsrds(a)
        a(f"""
        s_cmp_lt_u32 s3, {a.T}
        s_cbranch_scc1 L_e2
        s_mov_b64 exec, 1
        s_waitcnt vmcnt(0)
        ds_add_u32 v30, v2 offset:{WCNT-FLAG}
        s_mov_b64 exec, -1
        s_branch L_xw
L_e2:
        """)
    if a.EE:
        allsrds(a)
        a(f"""
        s_cmp_lt_u32 s3, {a.EE}
        s_cbranch_scc1 L_e3
        s_mov_b64 exec, 1
        s_waitcnt vmcnt(0)
        ds_add_u32 v30, v2 offset:{WCNT-FLAG}
        s_mov_b64 exec, -1
        s_mov_b32 s19, 2
        s_branch L_xg
L_e3:
        """)
    xdma(a, "L_nx1")
    if not a.T and not a.EE: allsrds(a)
    a(f"""
    s_mov_b64 exec, 1
    s_waitcnt vmcnt(8)
    ds_add_u32 v30, v2 offset:{WCNT-FLAG}
    s_mov_b64 exec, -1
    s_branch L_g
L_l0:
    s_cmp_ge_u32 s3, 13
    s_cbranch_scc1 L_h0
    """)
    a.srd(SDST, 22, E*4); a.srd(SSRC, 20, E*4); a.srd(SEA, 18, E*8)
    a(f"""
    s_cmp_eq_u64 s[10:11], 0
    s_cbranch_scc1 L_noedge
    s_mov_b64 exec, s[10:11]
    buffer_load_dwordx4 v[8:11], v3, {R(SDST)}, s6 offen{' nt' if 'int' in a.opt else ''}
    buffer_load_dwordx4 v[40:43], v3, {R(SSRC)}, s6 offen{' nt' if 'int' in a.opt else ''}
    buffer_load_dwordx4 v[32:35], v4, {R(SEA)}, s7 offen{' nt' if 'int' in a.opt else ''}
    buffer_load_dwordx4 v[36:39], v4, {R(SEA)}, s7 offen offset:16{' nt' if 'int' in a.opt else ''}
    s_mov_b64 exec, -1
L_noedge:
    """)
    a.srd(SWC, 28, 1024)
    srds(a)

def tags(a):
    a(f"""
    v_and_b32 v45, 7, v1
    v_cmp_eq_u32 vcc, 0, v45
    v_lshlrev_b32 v45, 2, v45
    v_lshrrev_b64 v[46:47], v45, v[46:47]
    v_mov_b32 v44, {TAGM:#x}
    v_cndmask_b32 v44, v44, 2, vcc
    v_and_b32 v40, v44, v46
    v_lshrrev_b32 v41, 5, v46
    v_lshrrev_b32 v42, 10, v46
    v_lshrrev_b32 v43, 15, v46
    v_and_b32 v41, {TAGM:#x}, v41
    v_and_b32 v42, {TAGM:#x}, v42
    v_and_b32 v43, {TAGM:#x}, v43
    """)

def phase_p(a):
    M = ("s[12:13]", "s[14:15]", "s[20:21]", "s[22:23]")
    a(f"""
    s_cmp_eq_u64 s[10:11], 0
    s_cbranch_scc1 L_p_done
    s_mov_b64 exec, s[10:11]
    s_mov_b32 s16, 42800
    s_mov_b32 s17, {(-MARK) & 0xffffffff:#x}
    s_movk_i32 s18, 384
    v_mov_b32 v3, {IMG}
    s_waitcnt vmcnt(3)
    """)
    for j in range(4): a(f"v_mul_u32_u24 v{44+j}, s16, v{8+j}")
    for j in range(4): a(f"v_lshrrev_b32 v{44+j}, 24, v{44+j}")
    for j in range(4): a(f"v_lshlrev_b32 v{48+j}, 2, v{44+j}\nds_add_rtn_u32 v{20+j}, v{48+j}, v2 offset:{PCNT}")
    for j in range(4):
        a(f"""
        v_mul_u32_u24 v{48+j}, {BN*4}, v{44+j}
        v_lshl_add_u32 v{8+j}, v{8+j}, 2, s17
        v_sub_u32 v{8+j}, v{8+j}, v{48+j}
        v_mad_u32_u24 v{48+j}, v{44+j}, s18, v3
        """)
    a("s_waitcnt vmcnt(2)")
    for j in range(4): a(f"v_lshl_add_u32 v{8+j}, v{40+j}, 16, v{8+j}")
    for j in range(4):
        a(f"""
        s_waitcnt lgkmcnt({3-j})
        v_add_u32 v{52+j}, v{20+j}, v{44+j}
        v_cmp_gt_u32 {M[j]}, 32, v{20+j}
        v_and_b32 v{52+j}, 31, v{52+j}
        v_lshl_add_u32 v{52+j}, v{52+j}, 2, v{48+j}
        """)
    for j in range(4): a(f"s_mov_b64 exec, {M[j]}\nds_add_u32 v{52+j}, v{8+j} offset:256")
    for j in range(4):
        if j % 2 == 0: a(f"s_waitcnt vmcnt({1 - j//2})")
        a(f"s_mov_b64 exec, {M[j]}\nds_write2_b32 v{52+j}, v{32+2*j}, v{33+2*j} offset0:0 offset1:32")
    for j in range(4):
        rk, bk, base, sd, lo, hi = 20+j, 44+j, 48+j, 8+j, 32+2*j, 33+2*j
        a(f"""
        s_andn2_b64 exec, s[10:11], {M[j]}
        s_cbranch_execz L_po{j}
        ds_add_rtn_u32 v28, v30, v2 offset:{OVC-FLAG}
        v_mov_b32 v24, v{lo}
        v_mov_b32 v25, v{hi}
        v_add_u32 v26, {MARK:#x}, v{sd}
        v_lshlrev_b32 v27, 9, v{bk}
        v_lshl_add_u32 v27, v{rk}, 4, v27
        v_mov_b32 v29, 0x800
        s_waitcnt lgkmcnt(0)
        v_max_u32 v31, v28, v{rk}
        v_cmp_lt_u32 vcc, 62, v31
        v_lshlrev_b32 v28, 4, v28
        v_add_u32 v28, {OVL}, v28
        s_andn2_b64 s[24:25], exec, vcc
        s_mov_b64 exec, vcc
        ds_or_b32 v30, v2
        s_mov_b64 exec, s[24:25]
        ds_add_u32 v{base}, v29 offset:256
        ds_write_b128 v28, v[24:27]
L_po{j}:
        """)
    a(f"""
L_p_done:
    s_mov_b64 exec, 1
    ds_add_u32 v30, v2 offset:{PC1-FLAG}
    s_mov_b64 exec, -1
    s_setprio 0
    """)
    a.stamp('p_w')
    if 'xpf' in a.opt: a(f"""
    s_cmp_lg_u32 s3, 12
    s_cbranch_scc1 L_xpf
    s_mul_i32 s14, s5, {BN*256}
    s_mul_i32 s15, s4, {232*64}
    s_add_u32 s14, s14, s15
    s_add_u32 s14, s14, {160*256}
    s_add_u32 s15, s14, {116*64}
    v_lshlrev_b32 v8, 6, v1
    s_mov_b32 exec_hi, {(1 << 26) - 1:#x}
    buffer_load_dword v9, v8, {R(SX)}, s14 offen
    buffer_load_dword v9, v8, {R(SX)}, s14 offen offset:{58*64}
    buffer_load_dword v9, v8, {R(SX)}, s15 offen
    buffer_load_dword v9, v8, {R(SX)}, s15 offen offset:{58*64}
    s_mov_b32 exec_hi, -1
    s_waitcnt vmcnt(0)
L_xpf:
    """)
    if a.XE: a(f"s_cmp_lt_u32 s3, {a.XE}\ns_cbranch_scc1 L_xgd")
    if a.YE: a(f"s_cmp_lt_u32 s3, {a.YE}\ns_cselect_b32 s19, 2, 3")
    if 'noxgo' not in a.opt: spin(a, "L_xg", 30, XGO-FLAG, "ge", "s19" if a.YE else 3)
    if a.T:
        a(f"L_xw:\ns_sub_u32 s19, s3, {a.T-1}\ns_cselect_b32 s19, 0, s19")
        spin(a, "L_xt", 30, XL-FLAG, "ge", "s19")
    a.stamp('xgo')
    xdma(a, "L_nx2")
    a(f"""
    s_branch L_g
L_h0:
    """)
    allsrds(a)
    a(f"""
    v_lshlrev_b32 v4, 4, v1
    s_mul_i32 s16, s2, 24576
    v_mov_b32 v3, 0
    s_movk_i32 s17, 384
    s_cmp_eq_u32 s3, 13
    s_cbranch_scc1 L_h13
    v_lshrrev_b32 v8, 4, v1
    v_lshlrev_b32 v9, 4, v7
    v_mad_u32_u24 v8, v8, s17, v9
    s_cmp_lg_u32 s3, 15
    s_cbranch_scc1 L_h2
    v_add_u32 v8, {32*384}, v8
    v_lshl_or_b32 v6, v7, 2, v6
    s_movk_i32 m0, {WCL}
    s_lshl_b32 s9, s4, 6
    buffer_load_dword v6, {R(SWC)}, s9 offen lds
L_h2:
    v_add_u32 v9, {IMG}, v8
    s_add_u32 s17, s16, {3*1536}
    s_add_u32 s19, s16, {6*1536}
    s_setprio 0
    """)
    spin(a, "L_hp", 30, PC1-FLAG, "ge", 8)
    a("s_setprio 3")
    a.stamp('b1')
    for i in range(8): a(f"ds_read_b128 v[{64+4*i}:{67+4*i}], v9 offset:{i*1536}")
    for i in range(8):
        a(f"s_waitcnt lgkmcnt({7-i})\nbuffer_store_dwordx4 v[{64+4*i}:{67+4*i}], v8, {R(SSEG)}, s{(16,17,19)[i//3]} offen offset:{(i%3)*1536} sc1{' nt' if 'int' in a.opt else ''}")
    a(f"""
    s_mov_b64 exec, 1
    ds_add_u32 v30, v2 offset:{XGO-FLAG}
    """)
    a.stamp('imi')
    a(f"""
    s_waitcnt vmcnt(0)
    ds_add_u32 v30, v2 offset:{PC2-FLAG}
    s_branch L_pso
L_h13:
    v_lshrrev_b32 v8, 3, v1
    v_and_b32 v9, 0x70, v4
    v_mad_u32_u24 v8, v8, s17, v9
    v_add_u32 v9, {IMG+256}, v8
    v_add_u32 v5, {OVL}, v4
    s_mov_b32 s18, 0x40000
L_tag:
    buffer_load_dwordx2 v[46:47], v3, {R(SDBG)}, 0 offen offset:136 sc1
    s_waitcnt vmcnt(0)
    v_cmp_eq_u32 vcc, 0, v47
    s_sub_u32 s18, s18, 1
    s_cbranch_scc1 L_tagd
    s_cbranch_vccz L_tagd
    s_sleep 1
    s_branch L_tag
L_tagd:
    v_or_b32 v47, 0x80000000, v47
    ds_write_b64 v30, v[46:47] offset:{NONCE-FLAG}
    """)
    a.stamp('tag')
    tags(a)
    a("s_setprio 0")
    spin(a, "L_hq", 30, PC1-FLAG, "ge", 8)
    a(f"""
    s_setprio 3
    ds_read_b96 v[36:38], v30
    ds_read_b128 v[24:27], v5
    """)
    for i in range(8): a(f"ds_read_b128 v[{64+4*i}:{67+4*i}], v9 offset:{i*3072}")
    a(f"""
    s_lshl_b32 s19, s2, 15
    s_add_u32 s19, s19, {OVF-512}
    s_waitcnt lgkmcnt(8)
    v_cmp_gt_u32 s[20:21], v38, v1
    v_cmp_eq_u32 vcc, 0, v36
    v_and_b32 v36, 1, v36
    v_bfi_b32 v36, v44, 0, v36
    v_or_b32 v40, v40, v36
    s_and_b64 exec, s[20:21], vcc
    s_cbranch_scc0 L_psn
    buffer_store_dwordx4 v[24:27], v27, {R(SSEG)}, s19 offen sc1
L_psn:
    s_mov_b64 exec, 1
    ds_add_u32 v30, v2 offset:{(TRASH if 'xsd' in a.opt else XGO)-FLAG}
    s_mov_b64 exec, -1
    """)
    for i in range(8):
        a(f"s_waitcnt lgkmcnt({8-i})")
        for j in range(4): a(f"v_xor_b32 v{64+4*i+j}, v{64+4*i+j}, v{40+j}")
    a("s_waitcnt vmcnt(0)")
    spin(a, "L_hr", 30, PC2-FLAG, "ge", 2)
    for i in range(8):
        a(f"buffer_store_dwordx4 v[{64+4*i}:{67+4*i}], v8, {R(SSEG)}, s16 offen offset:256 sc1{' nt' if 'int' in a.opt else ''}")
        if i < 7: a("s_add_u32 s16, s16, 3072")
    if 'xsd' in a.opt: a(f"s_mov_b64 exec, 1\nds_add_u32 v30, v2 offset:{XGO-FLAG}")
    a(f"""
L_pso:
    s_sub_u32 s17, s3, 8
    """)
    a.stamp('sig1')
    if a.HD and 'eh' not in a.opt: spin(a, "L_hd", 30, XD0-FLAG, "ge", a.HD)
    a(f"""
    s_branch L_sw
L_g:
    """)

SD = 48
ACCS = (48, 64, 80, 96)
def phase_g(a):
    a(f"""
    v_and_b32 v20, 31, v1
    v_lshrrev_b32 v21, 5, v1
    s_lshl_b32 s18, s3, 13
    s_add_u32 s18, s18, {XT}
    v_and_b32 v22, 15, v1
    v_xor_b32 v22, v22, v21
    v_lshlrev_b32 v22, 4, v22
    v_lshl_or_b32 v22, v20, 8, v22
    v_add_u32 v4, s18, v22
    v_bfe_u32 v22, v1, 2, 2
    v_lshl_add_u32 v22, v21, 3, v22
    v_lshlrev_b32 v22, 6, v22
    v_and_b32 v23, 16, v1
    v_lshl_add_u32 v22, v23, 1, v22
    v_and_b32 v23, 3, v1
    v_lshl_add_u32 v22, v23, 3, v22
    v_add_u32 v5, {WL}, v22
    v_bfe_u32 v22, v1, 1, 3
    v_xor_b32 v22, v22, v21
    v_lshlrev_b32 v22, 4, v22
    v_lshl_or_b32 v22, v20, 7, v22
    v_add_u32 v6, s18, v22
    v_lshl_add_u32 v7, v1, 4, s18
    v_and_b32 v22, 7, v1
    v_lshrrev_b32 v23, 4, v1
    v_xor_b32 v22, v22, v23
    v_lshlrev_b32 v22, 4, v22
    v_lshrrev_b32 v23, 3, v1
    v_lshl_or_b32 v8, v23, 7, v22
    v_xor_b32 v9, 64, v8
    v_mul_u32_u24 v22, {AUS}, v21
    v_lshl_add_u32 v22, v20, 4, v22
    s_lshl_b32 s18, s3, 9
    s_add_u32 s18, s18, {AU}
    v_add_u32 v10, s18, v22
    v_xor_b32 v11, 32, v6
    v_xor_b32 v12, 64, v6
    v_xor_b32 v13, 0x60, v6
    s_mul_i32 s19, s5, {BN*128}
    s_lshl_b32 s18, s3, 12
    s_add_u32 s19, s19, s18
    s_mov_b32 s20, {NLOG2E:#x}
    s_mov_b32 s21, {NLOG2E:#x}
    s_mov_b32 s22, 0x07060100
    s_mov_b32 s23, 0x07060302
    s_cmp_eq_u32 s3, 12
    s_cselect_b32 s26, 0xff, -1
    s_cselect_b32 s27, 0xff, -1
    """)
    for ks in range(1, 8): a(f"v_xor_b32 v{48+ks}, {ks*32:#x}, v4")
    if a.dup: a(f"s_mov_b64 s[96:97], s[{STABW}:{STABW+1}]\ns_mov_b32 s99, s{STABW+3}\ns_cmp_ge_u32 s3, {a.dupw}\ns_cselect_b32 s98, s{STABW+2}, 0")
    Q = []
    def ds(txt, tag=None):
        a(txt); Q.append(tag)
    def wait(tag):
        if tag in Q:
            i = max(k for k, t in enumerate(Q) if t == tag)
            n = len(Q) - 1 - i
            assert n <= 15
            a(f"s_waitcnt lgkmcnt({n})")
            del Q[:i+1]
    def frag(t):
        p, ks, mm = t >> 4, (t >> 1) & 7, t & 1
        r = 112 + 4*(t & 3); o = (2*p+mm)*8192 + ks*1024
        ds(f"ds_read_b64_tr_b16 v[{r}:{r+1}], v5 offset:{o}", ('f', t))
        ds(f"ds_read_b64_tr_b16 v[{r+2}:{r+3}], v5 offset:{o+256}", ('f', t))
    spin(a, "L_wc", 30, WCNT-FLAG, "ge", 5)
    for t in range(4): frag(t)
    a("s_waitcnt vmcnt(0) lgkmcnt(0)"); Q.clear()
    if a.T:
        a("s_mov_b64 exec, 1"); ds(f"ds_add_u32 v30, v2 offset:{XL-FLAG}"); a("s_mov_b64 exec, -1")
    a.stamp('xl')
    for ks in range(8): ds(f"ds_read_b128 v[{16+4*ks}:{19+4*ks}], v{4 if ks == 0 else 48+ks}", ('x', ks))
    def pack(B, V, i):
        b = B + 4*i; v = V + 4*i
        return [f"v_pk_mul_f32 v[{b}:{b+1}], v[{b}:{b+1}], s[20:21]", f"v_pk_mul_f32 v[{b+2}:{b+3}], v[{b+2}:{b+3}], s[20:21]",
                f"v_cvt_pk_bf16_f32 v{b}, v{b}, v{b+1}", f"v_cvt_pk_bf16_f32 v{b+1}, v{b+2}, v{b+3}",
                f"v_perm_b32 v{v}, v{v}, v{b}, s22", f"v_perm_b32 v{v+1}, v{v+1}, v{b}, s23",
                f"v_perm_b32 v{v+2}, v{v+2}, v{b+1}, s22", f"v_perm_b32 v{v+3}, v{v+3}, v{b+1}, s23"]
    ep = []
    for i in range(4):
        ep += [('v', x) for x in pack(48, 64, i)]
        ep += [('w', i)]
    ep += [('r', i) for i in range(4)] + [('s', i) for i in range(4)]
    def emit(e):
        k, x = e
        if k == 'v': a(x)
        elif k == 'w':
            a("s_mov_b64 exec, s[26:27]")
            ds(f"ds_write_b128 v{(6, 11, 12, 13)[x]}, v[{64+4*x}:{67+4*x}]")
            a("s_mov_b64 exec, -1")
        elif k == 'r': ds(f"ds_read_b128 v[{48+4*x}:{51+4*x}], v7 offset:{x*1024}", ('r', x))
        elif k == 's':
            wait(('r', x))
            if x: a(f"s_cbranch_scc1 L_gs{x}")
            dup = f"buffer_store_dwordx4 v[{48+4*x}:{51+4*x}], v{8+(x&1)}, s[96:99], s19 offen offset:{x*1024}"
            if a.dup == 'b': a(dup)
            a(f"buffer_store_dwordx4 v[{48+4*x}:{51+4*x}], v{8+(x&1)}, {R(STABW)}, s19 offen offset:{x*1024} sc1")
            if a.dup == 'a': a(dup)
            if x: a(f"L_gs{x}:")
    a("s_cmp_eq_u32 s3, 12")
    for t in range(32):
        p, ks, mm = t >> 4, (t >> 1) & 7, t & 1
        wait(('f', t)); wait(('x', ks))
        d = ACCS[2*p+mm]; r = 112 + 4*(t & 3)
        c = "0" if ks == 0 else f"v[{d}:{d+15}]"
        a(f"v_mfma_f32_32x32x16_bf16 v[{d}:{d+15}], v[{r}:{r+3}], v[{16+4*ks}:{19+4*ks}], {c}")
        if t + 4 < 32: frag(t + 4)
        if t >= 18:
            n = 5 if ep and ep[0][0] in 'vw' else (4 if ep and ep[0][0] == 'r' else 1)
            for _ in range(n):
                if ep: emit(ep.pop(0))
    while ep: emit(ep.pop(0))
    a(f"""
    s_cselect_b32 s18, s5, 0
    v_mov_b32 v32, 0x7180
    v_mov_b32 v33, 0x7180
    v_mov_b32 v34, 0x7180
    v_mov_b32 v35, 0x7180
    v_lshlrev_b32 v12, 4, v1
    s_cmp_lg_u32 s18, 63
    s_cbranch_scc1 L_nodum
    s_mov_b32 s18, {DUMMY*128}
    buffer_store_dwordx4 v[32:35], v12, {R(STABW)}, s18 offen sc1
    buffer_store_dwordx4 v[32:35], v12, {R(STABW)}, s18 offen offset:1024 sc1
    buffer_store_dwordx4 v[32:35], v12, {R(STABW)}, s18 offen offset:2048 sc1
    buffer_store_dwordx4 v[32:35], v12, {R(STABW)}, s18 offen offset:3072 sc1
L_nodum:
    s_movk_i32 s18, {XD1}
    s_cmp_lt_u32 s3, 5
    s_cselect_b32 s18, {XD0}, s18
    s_cmp_lt_u32 s3, 9
    s_cselect_b32 s18, s18, {TRASH}
    v_mov_b32 v31, 1
    v_mov_b32 v30, s18
    s_mov_b64 exec, 1
    ds_add_u32 v30, v31
    s_mov_b64 exec, -1
    v_mov_b32 v30, {FLAG}
    """)
    for i in range(4):
        for x in pack(80, 96, i): a(x)
    a.stamp('gd')
    a(f"""
    s_mov_b32 s17, s3
    s_cmp_lt_u32 s3, 5
    s_cbranch_scc1 L_sw
    s_mov_b32 s16, 0
    s_sub_u32 s17, s3, 5
    """)
    consts(a, "L_c1", 30, PC2-FLAG)
    a("s_waitcnt vmcnt(0)")
    sig2(a, "L_sig2a", 30, PC3-FLAG)
    a.stamp('gdr')

def sig2(a, lab, flag, cntoff):
    a(f"""
    s_mov_b64 exec, 1
    ds_add_rtn_u32 v4, v{flag}, v31 offset:{cntoff}
    ds_read_b64 v[6:7], v{flag} offset:{cntoff+NONCE-PC3}
    s_lshl_b32 s18, s4, 9
    s_lshl_b32 s19, s5, 3
    s_add_u32 s18, s18, s19
    s_add_u32 s18, s18, {FL2}
    v_mov_b32 v3, 0
    s_waitcnt lgkmcnt(0)
    v_readfirstlane_b32 s19, v4
    s_cmp_lg_u32 s19, 12
    s_cbranch_scc1 {lab}
    buffer_store_dwordx2 v[6:7], v3, {R(SSEG)}, s18 offen sc1
{lab}:
    s_mov_b64 exec, -1
    """)

RK = 64
def segaddr(a):
    a(f"""
    v_lshrrev_b32 v2, 3, v1
    v_mul_u32_u24 v2, 24576, v2
    v_and_b32 v3, 7, v1
    v_lshl_add_u32 v2, v3, 4, v2
    s_mul_i32 s25, s17, {32*24576}
    s_mul_i32 s19, s5, 384
    s_add_u32 s25, s25, s19
    s_lshl_b32 s28, s17, 12
    v_mov_b32 v34, 1
    """)

def phase_s(a):
    segaddr(a)
    a(f"""
    v_and_b32 v78, {31 if 'dsp' in a.opt else 0}, v1
    v_lshlrev_b32 v78, 16, v78
    v_add_u32 v78, {(DUMMY << 16) | ZSLOT:#x}, v78
    v_lshl_add_u32 v80, s17, 6, v1
    s_movk_i32 s18, {BN}
    v_cmp_gt_u32 s[10:11], s18, v80
    v_lshlrev_b32 v64, 2, v80
    s_branch L_s1
L_sw:
    s_mov_b64 exec, -1
    s_mov_b32 s16, 1
    s_setprio 0
    """)
    segaddr(a)
    a(f"""
    v_mov_b32 v14, {PC3}
    s_add_u32 s31, s25, {1*8*24576}
    s_add_u32 s32, s25, {2*8*24576}
    s_add_u32 s33, s25, {3*8*24576}
    """)
    if a.HD and 'eh' in a.opt: spin(a, "L_hd", 14, XD0-PC3, "ge", a.HD)
    JD = ([int(o[1:]) for o in a.opt if o[:1] == 'J'] + [0])[0]
    if JD: spin(a, "L_jd", 14, XD1-PC3, "ge", JD)
    SQ = (25, 31, 32, 33)
    def sdl(q): a(f"buffer_load_dwordx4 v[{SD+4*q}:{SD+4*q+3}], v2, {R(SSEG)}, s{SQ[q]} offen offset:256 sc1{' nt' if 'snt' in a.opt else ''}")
    for q in range(4): sdl(q)
    a.stamp('sdi')
    consts(a, "L_c2", 14, PC2-PC3)
    a(f"""
L_nw:
    ds_read_b64 v[46:47], v14 offset:{NONCE-PC3}
    s_waitcnt lgkmcnt(0)
    v_readfirstlane_b32 s18, v47
    s_cmp_lg_u32 s18, 0
    s_cbranch_scc1 L_nwd
    s_sleep 1
    s_branch L_nw
L_nwd:
    """)
    tags(a)
    a(f"""
    v_mov_b32 v26, 0
    v_mov_b32 v3, 0
    v_lshlrev_b32 v38, 4, v1
    s_lshl_b32 s22, s17, 20
    s_lshl_b32 s27, s5, 9
    s_add_u32 s22, s22, s27
    s_add_u32 s22, s22, {OVF}
    s_mov_b64 s[6:7], -1
    s_mov_b64 s[8:9], -1
    s_mov_b64 s[10:11], -1
    s_mov_b64 s[12:13], -1
    s_mov_b32 s26, 0x0f0f0f0f
    s_mov_b32 s27, s26
    s_movk_i32 s21, {RETRY}
    s_mov_b32 s23, {TAGM:#x}
    s_cmp_ge_u32 s3, 5
    s_cbranch_scc1 L_sig2b
    s_waitcnt vmcnt(4)
    """)
    sig2(a, "L_sig2b", 14, 0)
    for j in range(0, 16, 2): a(f"v_mov_b64 v[{RK+j}:{RK+j+1}], 0")
    a(f"""
L_sv1:
    s_mov_b32 s20, 0
    s_waitcnt vmcnt(0)
    """)
    for q in range(4):
        d = SD + 4*q
        a(f"""
        s_and_b64 exec, s[{6+2*q}:{7+2*q}], s[{6+2*q}:{7+2*q}]
        s_cbranch_scc0 L_sq{q}
        v_xor_b32 v{d}, v{d}, v40
        v_xor_b32 v{d+1}, v{d+1}, v41
        v_xor_b32 v{d+2}, v{d+2}, v42
        v_xor_b32 v{d+3}, v{d+3}, v43
        v_and_b32 v45, v{d}, v44
        v_or3_b32 v46, v{d+1}, v{d+2}, v{d+3}
        v_and_or_b32 v45, v46, s23, v45
        v_cmp_ne_u32 vcc, 0, v45
        s_wqm_b64 s[{6+2*q}:{7+2*q}], vcc
        s_cbranch_scc0 L_sq{q}
        s_lshr_b64 s[14:15], s[{6+2*q}:{7+2*q}], 4
        s_or_b64 s[{6+2*q}:{7+2*q}], s[{6+2*q}:{7+2*q}], s[14:15]
        s_and_b64 s[{6+2*q}:{7+2*q}], s[{6+2*q}:{7+2*q}], s[26:27]
        s_lshl_b64 s[14:15], s[{6+2*q}:{7+2*q}], 4
        s_or_b64 s[{6+2*q}:{7+2*q}], s[{6+2*q}:{7+2*q}], s[14:15]
        s_mov_b64 exec, s[{6+2*q}:{7+2*q}]
        s_mov_b32 s20, 1
        """)
        sdl(q)
        a(f"L_sq{q}:")
    a(f"""
    s_mov_b64 exec, -1
    s_cmp_eq_u32 s20, 0
    s_cbranch_scc1 L_svd
    s_sub_u32 s21, s21, 1
    s_cbranch_scc0 L_sv1
    s_waitcnt vmcnt(0)
    v_mov_b32 v39, {FLAG}
    ds_or_b32 v39, v34
    """)
    for j in range(16): a(f"v_mov_b32 v{SD+j}, {MARK:#x}")
    a(f"""
L_svd:
    """)
    a.stamp('s_sd')
    a("v_bfe_u32 v45, v52, 11, 5\nv_bfe_u32 v46, v56, 11, 5\nv_bfe_u32 v47, v60, 11, 5\nv_bfe_u32 v36, v48, 11, 5")
    for q in range(1, 4):
        a(f"v_mov_b32_dpp v{44+q}, v{44+q} row_shr:{q} row_mask:0xf bank_mask:0xf bound_ctrl:0")
    a("v_or_b32 v36, v36, v45\nv_or3_b32 v36, v36, v46, v47")
    a(f"""
    v_or3_b32 v45, v48, v52, v56
    v_or_b32 v45, v45, v60
    v_cmp_ne_u32 s[14:15], 0, v36
    v_and_b32 v45, 1, v45
    v_mov_b32 v39, {FLAG}
    v_mov_b32 v28, 0
    v_mov_b32 v29, 0
    v_mov_b32 v30, {MARK:#x}
    s_mov_b32 s24, 0
    v_cmpx_ne_u32 vcc, 0, v45
    ds_or_b32 v39, v34
    """)
    def ranks(q):
        for j in range(4*q, 4*q+4):
            a(f"""
            v_and_b32 v{80+j}, 0x7fc, v{SD+j}
            v_cmpx_le_i32 vcc, 0, v{SD+j}
            ds_add_rtn_u32 v{RK+j}, v{80+j}, v34 offset:{CNT}
            s_mov_b64 exec, -1
            """)
    a(f"""
    s_cbranch_vccnz L_ovd
L_ov:
    s_cmp_eq_u64 s[14:15], 0
    s_cbranch_scc1 L_ovd
    s_ff1_i32_b64 s23, s[14:15]
    s_bitset0_b64 s[14:15], s23
    v_readlane_b32 s26, v36, s23
    s_and_b32 s27, s23, 7
    s_lshl_b32 s27, s27, 18
    s_lshr_b32 s23, s23, 3
    s_lshl_b32 s23, s23, 15
    s_add_u32 s23, s23, s27
    s_add_u32 s23, s23, s22
    s_lshl_b32 s27, s24, 4
    s_sub_u32 s23, s23, s27
    s_bfm_b64 exec, s26, s24
    s_add_u32 s24, s24, s26
    s_cmp_gt_u32 s24, 63
    s_cbranch_scc1 L_ovbad
    buffer_load_dwordx4 v[28:31], v38, {R(SSEG)}, s23 offen sc1
    s_branch L_ov
L_ovbad:
    s_mov_b64 exec, 1
    ds_or_b32 v39, v34
L_ovd:
    s_mov_b64 exec, -1
    """)
    a.stamp('s_ov')
    def ead(base, go, i):
        if i % 2 == 0: a(f"s_add_u32 m0, s28, {base}")
        a(f"s_add_u32 s19, s25, {i*8*24576 - i*1024 + go}\nbuffer_load_dwordx4 v2, {R(SSEG)}, s19 offen offset:{i*1024} sc1 lds")
    if 'eafirst' not in a.opt:
        for q in range(4): ranks(q)
    EQ = [(EALO, 0, i) for i in range(4)] + [(EAHI, 128, i) for i in range(4)]
    AL = ([o[1:] for o in a.opt if o[:1] == 'A'] + ['4220'])[0]
    def eaq(n):
        for _ in range(n):
            b, g, i = EQ.pop(0)
            a(f"s_add_u32 m0, s28, {b}\ns_add_u32 s19, s25, {i*8*24576 - i*1024 + g}\nbuffer_load_dwordx4 v2, {R(SSEG)}, s19 offen offset:{i*1024} sc1{' nt' if 'ent' in a.opt else ''} lds")
    nea = int(AL[0])
    if nea: spin(a, "L_e5", 14, XD0-PC3, "ge", 5)
    eaq(nea)
    if 'eapre' in a.opt:
        spin(a, "L_e9", 14, XD1-PC3, "ge", 4)
        for i in range(4): ead(EAHI, 128, i)
        nea = 8
    a.stamp('s_ea')
    if 'eafirst' in a.opt:
        for q in range(4): ranks(q)
    a(f"""
    v_lshlrev_b32 v37, 2, v1
    s_lshl_b32 s18, s17, 8
    s_add_u32 s18, s18, 32768
    v_add_u32 v37, s18, v37
    s_mov_b32 s18, 0xffff0000
    v_lshl_add_u32 v36, v1, 4, s28
    """)
    for j in range(16):
        off = (j >> 2) * 1024 + (j & 3) * 4
        if off:
            a(f"v_add_u32 v38, {off}, v36\nv_and_or_b32 v{SD+j}, v{SD+j}, s18, v38")
        else:
            a(f"v_and_or_b32 v{SD+j}, v{SD+j}, s18, v36")
    a(f"""
    s_waitcnt vmcnt({nea})
    v_and_b32 v27, 0x7fc, v30
    v_cmpx_le_i32 vcc, 0, v30
    ds_add_rtn_u32 v26, v27, v34 offset:{CNT}
    s_mov_b64 exec, -1
    v_and_or_b32 v30, v30, s18, v37
    """)
    a(f"""
L_s1:
    v_lshlrev_b32 v35, 2, v1
    s_lshl_b32 s35, s16, 3
    s_or_b32 s35, s35, s17
    s_cmp_eq_u32 s3, 12
    s_cselect_b32 s26, 0xff, -1
    s_cselect_b32 s27, 0xff, -1
    s_waitcnt lgkmcnt(0)
    """)
    a.stamp('s_pb')
    a("s_barrier")
    a.stamp('s1')
    def auw():
        a("s_mov_b64 exec, s[26:27]")
        for i in range(4): a(f"ds_write_b128 v10, v[{96+4*i}:{99+4*i}] offset:{i*2*AUS}")
        a("s_mov_b64 exec, -1")
    a(f"""
    s_cmp_eq_u32 s16, 1
    s_cbranch_scc1 L_s2e
    ds_read_b32 v66, v64 offset:{CNT}
    """)
    if 'eapre' not in a.opt and 'eas' not in a.opt:
        for i in range(4): ead(EAHI, 128, i)
    a(f"""
    s_waitcnt lgkmcnt(0)
    v_min_u32 v67, 63, v66
    v_sub_u32 v67, 63, v67
    v_lshlrev_b32 v67, 2, v67
    s_mov_b64 exec, s[10:11]
    ds_add_rtn_u32 v68, v67, v34 offset:{HIST}
    """)
    auw()
    a(f"""
    s_waitcnt lgkmcnt(4)
    s_barrier
    s_branch L_s2d
L_s2e:
    """)
    eaq(int(AL[1]))
    a(f"""
    s_barrier
    """)
    eaq(int(AL[2]))
    def tpf(sb):
        a(f"""
        s_mul_i32 s18, s{sb}, {BN*128}
        s_mul_i32 s19, s17, {98*64}
        s_add_u32 s18, s18, s19
        s_add_u32 s19, s18, 4096
        v_lshlrev_b32 v5, 6, v1
        buffer_load_dword v127, v5, {R(STABW)}, s18 offen sc1
        s_mov_b32 exec_hi, 3
        buffer_load_dword v127, v5, {R(STABW)}, s19 offen sc1
        s_mov_b32 exec_hi, -1
        """)
    if 'pf4' in a.opt: a(f"""
    s_xor_b32 s29, s5, 32
    s_lshl_b32 s18, s4, 9
    s_lshl_b32 s19, s29, 3
    s_add_u32 s18, s18, s19
    s_add_u32 s18, s18, {FL2}
    v_mov_b32 v3, 0
    ds_read_b64 v[8:9], v14 offset:{NONCE-PC3}
    buffer_load_dwordx2 v[12:13], v3, {R(SSEG)}, s18 offen sc1
    """)
    if 'pf3' in a.opt: tpf(5)
    a(f"""
    ds_write2st64_b32 v37, v28, v29 offset0:{EALO//256} offset1:{EAHI//256}
    s_cmp_ge_u32 s3, 13
    s_cbranch_scc1 L_s2f
    """)
    auw()
    a(f"""
L_s2f:
L_s2d:
    """)
    a.stamp('s2')
    a(f"""
    s_cmp_gt_u32 s35, 6
    s_cbranch_scc1 L_s3d
    ds_read_b32 v69, v35 offset:{HIST}
    s_waitcnt lgkmcnt(0)
    v_mov_b32 v70, v69
    """)
    a.scan(70)
    a(f"""
    v_sub_u32 v70, v70, v69
    ds_bpermute_b32 v70, v67, v70
    v_max_u32 v65, 2, v66
    s_waitcnt lgkmcnt(0)
    v_add_u32 v70, v70, v68
    v_and_b32 v71, 7, v70
    v_lshrrev_b32 v72, 7, v70
    v_bfe_u32 v73, v70, 3, 4
    v_bfe_i32 v74, v70, 7, 1
    v_and_b32 v74, 15, v74
    v_xor_b32 v73, v73, v74
    v_lshl_add_u32 v74, v73, 2, v72
    v_lshlrev_b32 v74, 2, v74
    v_lshl_add_u32 v73, v73, 3, v71
    v_lshlrev_b32 v73, 3, v73
    v_lshl_add_u32 v73, v72, 1, v73
    s_mov_b64 exec, s[10:11]
    ds_max_u32 v74, v65 offset:{LEN}
    ds_write_b16 v73, v80 offset:{PERM}
    s_mov_b64 exec, -1
L_s3d:
    s_waitcnt lgkmcnt(0)
    s_barrier
    """)
    a(f"""
    ds_read_b32 v40, v35 offset:{LEN}
    v_mov_b32 v42, {FLAG}
    ds_read_b32 v42, v42
    s_lshl_b32 s18, s3, 2
    s_add_u32 s19, s18, 1
    s_add_u32 s20, s18, 2
    s_add_u32 s21, s18, 3
    s_waitcnt lgkmcnt(0)
    v_mov_b32 v41, v40
    v_readfirstlane_b32 s22, v42
    """)
    a.scan(41)
    a(f"""
    s_nop 0
    v_readlane_b32 s23, v41, 63
    v_sub_u32 v41, v41, v40
    v_readlane_b32 s30, v40, s18
    v_readlane_b32 s31, v40, s19
    v_readlane_b32 s32, v40, s20
    v_readlane_b32 s33, v40, s21
    v_readlane_b32 s34, v41, s18
    s_cmp_gt_u32 s23, {ROWCAP}
    s_cselect_b32 s22, 1, s22
    s_cmp_lg_u32 s22, 0
    s_cbranch_scc1 L_slow
    """)
    if a.force_slow: a("s_branch L_slow")
    a(f"""
    s_cmp_gt_u32 s35, 6
    s_cbranch_scc1 L_s4e
    ds_bpermute_b32 v70, v74, v41
    ds_bpermute_b32 v75, v74, v40
    v_lshlrev_b32 v71, 2, v71
    v_add_u32 v71, {ELL}, v71
    v_mov_b32 v72, {CNT+0x7fc}
    v_mov_b32 v73, {TRASH}
    ds_write_b32 v72, v73
    s_waitcnt lgkmcnt(0)
    v_lshl_add_u32 v70, v70, 5, v71
    s_mov_b64 exec, s[10:11]
    ds_write_b32 v64, v70 offset:{CNT}
    s_mov_b64 exec, -1
    s_branch L_s4d
L_s4e:
    """)
    if int(AL[3]):
        a("s_cmp_lg_u32 s16, 1\ns_cbranch_scc1 L_s4d")
        eaq(int(AL[3]))
    a(f"""
L_s4d:
    s_waitcnt lgkmcnt(0)
    s_barrier
    """)
    a.stamp('s4')
    a(f"""
    s_cmp_eq_u32 s16, 1
    s_cbranch_scc1 L_s5
    """)
    if 'ep2' in a.opt: poll2i(a, "a")
    a(f"""
    v_lshl_add_u32 v76, v66, 5, v70
    v_lshl_add_u32 v77, v75, 5, v70
    s_mov_b64 exec, s[10:11]
L_pad:
    v_cmpx_lt_u32 vcc, v76, v77
    s_cbranch_execz L_padd
    ds_write_b32 v76, v78
    v_add_u32 v76, 32, v76
    s_branch L_pad
L_padd:
    s_mov_b64 exec, -1
    """)
    if 'pfo2' in a.opt: a(f"""
    s_mul_i32 s18, s5, {BN*128}
    s_mul_i32 s19, s17, {98*64}
    s_add_u32 s18, s18, s19
    s_add_u32 s19, s18, 4096
    v_lshlrev_b32 v5, 6, v1
    buffer_load_dword v127, v5, {R(STABW)}, s18 offen sc1
    s_mov_b32 exec_hi, 3
    buffer_load_dword v127, v5, {R(STABW)}, s19 offen sc1
    s_mov_b32 exec_hi, -1
    """)
    a(f"""
    s_branch L_s5d
L_s5:
    """)
    if 'pf4' in a.opt:
        a("s_waitcnt vmcnt(2)\nv_cmp_ne_u64 vcc, v[8:9], v[12:13]\ns_cbranch_vccnz L_s5n")
        tpf(29)
        a("L_s5n:")
    for h in range(2):
        for j in range(8*h, 8*h+8): a(f"ds_read_b32 v{80+j}, v{80+j} offset:{CNT}")
        eaq(len(EQ))
        if h == 1: a(f"ds_read_b32 v27, v27 offset:{CNT}")
        for j in range(8*h, 8*h+8):
            a(f"s_waitcnt lgkmcnt({7+h})\nv_lshl_add_u32 v{80+j}, v{RK+j}, 5, v{80+j}\nds_write_b32 v{80+j}, v{SD+j}")
    a(f"""
    s_waitcnt lgkmcnt(8)
    v_lshl_add_u32 v27, v26, 5, v27
    ds_write_b32 v27, v30
L_s5d:
    """)
    msetup(a)
    xy = 0 if 'xlate' in a.opt else 1
    poll2(a, "a", xy if 'ep2' in a.opt else None)
    if 'pf4' in a.opt: a("s_waitcnt lgkmcnt(0)")
    else: a(f"s_cmp_lg_u32 s16, 1\ns_cbranch_scc1 L_s5w\ns_waitcnt vmcnt({xy + (2 if 'pf3' in a.opt else 0)})\nL_s5w:\ns_waitcnt lgkmcnt(0)")
    sel(a, AP, UR, CK if a.pair else 0)
    a.stamp('s5p')
    a("s_barrier")

def consts(a, lab, va, off):
    spin(a, lab, va, off, 'ge', 2, 84)
    a(f"""
    v_and_b32 v92, 7, v1
    v_lshrrev_b32 v93, 4, v1
    v_lshl_add_u32 v88, v92, 2, v93
    v_lshlrev_b32 v88, 1, v88
    ds_read_u16 v84, v88 offset:{WCL}
    ds_read_u16 v85, v88 offset:{WCL+64}
    ds_read_u16 v86, v88 offset:{WCL+128}
    ds_read_u16 v87, v88 offset:{WCL+192}
    v_bfe_u32 v94, v1, 2, 2
    v_and_b32 v95, 3, v1
    v_cmp_eq_u32 s[36:37], v93, v95
    v_mul_u32_u24 v{CAU}, {AUS}, v92
    v_add_u32 v{CAU}, {AU}, v{CAU}
    s_mul_i32 s18, s5, {BN*256}
    s_lshl_b32 s19, s4, 6
    s_add_u32 s18, s18, s19
    v_lshl_add_u32 v{COUT}, v92, 3, s18
    v_cmp_eq_u32 vcc, v94, v93
    v_mov_b32 v89, 0x3f80
    v_mov_b32 v90, 4
    {'v_mov_b32 v90, v95' if 'f4' in a.opt else 'v_cndmask_b32 v90, v90, v95, vcc'}
    v_cmp_eq_u32 s[18:19], 0, v90
    v_cmp_eq_u32 s[20:21], 1, v90
    v_cmp_eq_u32 vcc, 2, v90
    v_cndmask_b32 v{SEL}, 0, v89, s[18:19]
    v_cmp_eq_u32 s[18:19], 3, v90
    v_cndmask_b32 v{SEL+1}, 0, v89, s[20:21]
    v_cndmask_b32 v{SEL+2}, 0, v89, vcc
    v_cndmask_b32 v{SEL+3}, 0, v89, s[18:19]
    ; identity for 4x4x4: lane i=l&3 holds row i
    v_cmp_gt_u32 vcc, 2, v95
    v_and_b32 v91, 1, v95
    v_lshlrev_b32 v91, 4, v91
    v_lshlrev_b32 v91, v91, v89
    v_cndmask_b32 v{IDM}, 0, v91, vcc
    v_xor_b32 v{IDM+1}, v{IDM}, v91
    s_mov_b32 s20, {NLOG2E:#x}
    s_mov_b32 s21, {NLOG2E:#x}
    v_and_b32 v88, 8, v1
    v_cmp_eq_u32 vcc, 0, v88
    s_waitcnt lgkmcnt(0)
    v_lshlrev_b32 v84, 16, v84
    v_lshlrev_b32 v85, 16, v85
    v_lshlrev_b32 v86, 16, v86
    v_lshlrev_b32 v87, 16, v87
    v_pk_mul_f32 v[84:85], v[84:85], s[20:21]
    v_pk_mul_f32 v[86:87], v[86:87], s[20:21]
    v_cvt_pk_bf16_f32 v84, v84, v85
    v_cvt_pk_bf16_f32 v85, v86, v87
    v_cndmask_b32 v{WC+0}, 0, v84, vcc
    v_cndmask_b32 v{WC+1}, 0, v85, vcc
    v_xor_b32 v{WC+2}, v{WC+0}, v84
    v_xor_b32 v{WC+3}, v{WC+1}, v85
    """)

def msetup(a):
    D = a.D
    eps = f2u(1e-6 * 2.0**KS) if a.pair else EPS
    if a.ch: eps = f2u(1e-6 * 2.0**(KC-SC))
    a(f"""
    v_lshrrev_b32 v2, 3, v1
    s_lshl_b32 s19, s3, 6
    v_lshl_add_u32 v7, v2, 3, s19
    ds_read_b64 {v2(IDS)}, v7 offset:{PERM}
    v_bfe_u32 v4, v1, 2, 2
    v_and_b32 v3, 7, v1
    v_lshlrev_b32 v{IDX+1}, 4, v3
    v_lshlrev_b32 v{IDX+3}, 4, v3
    s_lshl_b32 s18, s34, 5
    s_add_u32 s18, s18, {ELL}
    s_add_u32 s19, s18, 2
    v_lshl_add_u32 v{PTR}, v2, 2, s19
    v_lshl_add_u32 v{PTR+1}, v4, 3, s18
    s_movk_i32 s35, 256
    s_movk_i32 s38, {D*32}
    s_movk_i32 s39, {D*32}
    s_mov_b32 s28, {eps:#x}
    s_mov_b32 s29, {eps:#x}
    s_sub_u32 s24, s30, 2
    """)
    if a.ch:
        a(f"s_mov_b32 s26, {f2u(2.0**SC):#x}\ns_mov_b32 s27, {f2u(2.0**(SC-KC)):#x}\ns_mov_b32 s20, {f2u(-float(KC)):#x}\ns_mov_b32 s21, s20")
    elif a.pair:
        a(f"s_mov_b32 s26, {f2u(2.0**-KS):#x}\ns_mov_b32 s27, s26\ns_mov_b32 s20, {f2u(-float(KS)):#x}\ns_mov_b32 s21, s20")
    a(f"""
    s_waitcnt lgkmcnt(0)
    v_mad_u32_u16 v{VOUT}, v{IDS}, s35, v{COUT}
    v_mad_u32_u16 v{VAU}, v{IDS}, 16, v{CAU}
    {'s_mov_b32 s22, 0' if 'xlate' in a.opt else xrl(a)}
    ds_read_b128 {v4(UR)}, v{VAU}
    v_mad_u32_u16 v{VAU}, v{IDS}, 16, v{CAU} op_sel:[1,0,0,0]
    ds_read_b128 {v4(AUN)}, v{VAU}
    v_mov_b64 {v2(EA0)}, 0
    v_mov_b64 {v2(EA0+2)}, 0
    v_mov_b64 {v2(EA0+4)}, 0
    v_mov_b64 {v2(EA0+6)}, 0
    v_mov_b64 {v2(DEN)}, s[28:29]
    v_mov_b64 {v2(DEN+2)}, s[28:29]
    v_mov_b64 {v2(NUM)}, 0
    v_mov_b64 {v2(NUM+2)}, 0
    """)
    if a.pair: a(f"v_mov_b64 {v2(CK)}, s[20:21]\nv_mov_b64 {v2(CK+2)}, s[20:21]")

def poll2i(a, sfx):
    a(f"""
    s_cmp_lg_u32 s3, 12
    s_cbranch_scc1 L_ni2{sfx}
    v_lshlrev_b32 v20, 3, v1
    s_lshl_b32 s12, s4, 9
    s_add_u32 s12, s12, {FL2}
    buffer_load_dwordx2 v[22:23], v20, {R(SSEG)}, s12 offen sc1
    v_mov_b32 v18, {NONCE}
    ds_read_b64 v[18:19], v18
    s_mov_b32 s13, 0x40000
L_ni2{sfx}:
    """)

def poll2(a, sfx, younger=None):
    if younger is None: poll2i(a, sfx)
    a(f"""
    s_cmp_lg_u32 s3, 12
    s_cbranch_scc1 L_np2{sfx}
    v_lshlrev_b32 v20, 3, v1
    s_waitcnt vmcnt({younger or 0}) lgkmcnt(0)
L_poll2{sfx}:
    v_cmpx_ne_u64 vcc, v[18:19], v[22:23]
    s_sub_u32 s13, s13, 1
    s_cbranch_scc1 L_poll2d{sfx}
    s_cbranch_vccz L_poll2d{sfx}
    s_sleep 1
    buffer_load_dwordx2 v[22:23], v20, {R(SSEG)}, s12 offen sc1
    s_waitcnt vmcnt(0)
    s_branch L_poll2{sfx}
L_poll2d{sfx}:
    s_mov_b64 exec, -1
L_np2{sfx}:
    """)

DEN, NUM, AP, T0, EA0, UR, AUN, GR, WC, SEL, IDM, XR = 28, 32, 36, 40, 48, 56, 60, 64, 112, 116, 120, 96
A1, PP, NN, T3, CK = 8, 12, 16, 20, 24
IDX, EAD, PTR, IDS, VAU, VOUT, CAU, COUT, OT = 98, 102, 104, 106, 108, 109, 122, 123, 12
def v4(r): return f"v[{r}:{r+3}]"
def v2(r): return f"v[{r}:{r+1}]"
EAOFF = f"offset0:{EALO//256} offset1:{EAHI//256}"

def xrl(a): return ("; " if 'noxr' in a.opt else "") + f"buffer_load_dwordx2 {v2(XR)}, v{VOUT}, {R(SX)}, 0 offen" + (' nt' if 'xnt' in a.opt else '')

def TB(a, j):
    if a.ch: return T0 + 4*(j & 1)
    return (T0, T0+4, A1, T3)[j & 3] if a.pair else T0 + 4*(j & 1)

def mm(d, x, y, c): return f"v_mfma_f32_16x16x32_bf16 {v4(d)}, {v4(x)}, {v4(y)}, {v4(c) if c else 0}"

def m4(d, h, y, c): return f"v_mfma_f32_4x4x4_16b_bf16 {v4(d)}, {v2(SEL+2*h)}, {v2(y+2*h)}, {v4(c) if c else 0}"
def sel(a, d, y, c):
    if 'f4' in a.opt: a(m4(d, 0, y, c) + "\ns_nop 1\n" + m4(d, 1, y, d))
    else: a(mm(d, SEL, y, c))

def tblock(a, k):
    D = a.D; cl = " clamp" if a.pair else ""
    T = TB(a, k); Tn = TB(a, k+1)
    if 'f4' in a.opt:
        G1 = GR + 4*((k+1) % D)
        a(f"""
        {mm(Tn, EA0 + 4*((k+1) & 1), WC, AP)}
        v_exp_f32 v{T}, v{T}{cl}
        {m4(Tn, 0, G1, Tn)}
        v_exp_f32 v{T+1}, v{T+1}{cl}
        v_exp_f32 v{T+2}, v{T+2}{cl}
        {m4(Tn, 1, G1, Tn)}
        v_exp_f32 v{T+3}, v{T+3}{cl}
        """)
        return
    a(f"""
    {mm(Tn, EA0 + 4*((k+1) & 1), WC, AP)}
    v_exp_f32 v{T}, v{T}{cl}
    {mm(Tn, SEL, GR + 4*((k+1) % D), Tn)}
    v_exp_f32 v{T+1}, v{T+1}{cl}
    v_exp_f32 v{T+2}, v{T+2}{cl}
    v_exp_f32 v{T+3}, v{T+3}{cl}
    """)

def unit(a, k, kind, sw):
    D = a.D; lag = 2 if a.pair else 1; NL = D - lag
    T = TB(a, k); Tp = TB(a, k-1)
    EAw = EA0 + 4*((k+1) & 1)
    Gc = GR + 4*k; Gl = GR + 4*((k-lag) % D); Gp = GR + 4*((k-1) % D)
    Iu = IDX + 2*((k+1) & 1); Iw = IDX + 2*(k & 1)
    one = "s[26:27]" if a.pair else "1.0 op_sel_hi:[1,0]"
    def pk(op, d, x, y, z=None):
        for h in (0, 2):
            a(f"v_pk_{op}_f32 {v2(d+h)}, {v2(x+h)}, " + (v2(y+h) if isinstance(y, int) else y) + (f", {v2(z+h)}" if z is not None else ""))
    def rcp(r):
        for i in range(4): a(f"v_rcp_f32 v{r+i}, v{r+i}")
    a("s_waitcnt lgkmcnt(0)")
    if sw: sel(a, AP, AUN, CK if a.pair else 0)
    a(f"""
    {"; " if 'xl' in a.opt else ""}buffer_load_dwordx4 {v4(Gl)}, {v2(Iu)}, {R(STAB)}, 0 idxen offen sc1
    s_mov_b64 exec, s[36:37]
    ds_read2st64_b32 {v2(EAw)}, v{EAD} {EAOFF}
    ds_read2st64_b32 {v2(EAw+2)}, v{EAD+1} {EAOFF}
    ds_read_u16 v{EAD}, v{PTR+1} offset:{(k+4)*32}
    ds_read_u16 v{EAD+1}, v{PTR+1} offset:{(k+4)*32+4}
    s_mov_b64 exec, -1
    ds_read_u16 v{Iw}, v{PTR} offset:{(k+NL+1)*32}
    s_waitcnt vmcnt({NL-2})
    """)
    if sw and 'xlate' in a.opt: a(f"s_cmp_lg_u32 s22, 0\ns_cbranch_scc1 L_xl{kind}{k}\n{xrl(a)}\nL_xl{kind}{k}:")
    if k == D-1: a(f"v_lshl_add_u64 {v2(PTR)}, {v2(PTR)}, 0, s[38:39]")
    if a.ch:
        P, Nn, Dn, Q = PP, NN, A1, T3
        def av(d):
            for h in (0, 2): a(f"v_pk_fma_f32 {v2(d+h)}, {v2(T+h)}, s[26:27], s[26:27] op_sel:[0,0,1] op_sel_hi:[1,0,1]")
        def f1(d, x):
            for h in (0, 2): a(f"v_pk_fma_f32 {v2(d+h)}, {v2(d+h)}, {v2(x+h)}, 1.0 op_sel_hi:[1,1,0]")
        m, p = kind[0], int(kind[1])
        if m == 'l':
            av(T)
            if p == 0: f1(DEN, T); pk('fma', NUM, NUM, T, Gc)
            else: pk('mul', NUM, NUM, T); pk('fma', DEN, DEN, T, P); pk('fma', NUM, Gc, P, NUM)
            return
        if p == 0:
            av(P)
            if m == 'p': f1(DEN, P); pk('fma', NUM, NUM, P, Gc)
        elif p == 1:
            av(T); pk('mul', Nn, T, Gp); pk('add', Dn, P, T); pk('fma', Nn, P, Gc, Nn); pk('mul', P, P, T)
        elif p == 2:
            av(T); pk('mul', Nn, Nn, T); pk('fma', Dn, Dn, T, P); pk('fma', Nn, Gc, P, Nn); pk('mul', P, P, T)
        else:
            av(T); pk('mul', Q, P, T); rcp(Q)
            pk('mul', Nn, Nn, T); pk('fma', Dn, Dn, T, P); pk('fma', Nn, Gc, P, Nn)
            pk('fma', DEN, Dn, Q, DEN); pk('fma', NUM, Nn, Q, NUM)
        if m == 'p' and p in (1, 2):
            pk('fma', DEN, DEN, P, Dn); pk('fma', NUM, NUM, P, Nn)
        return
    if kind == 'U':
        pk('add', T, T, one); rcp(T); pk('add', DEN, DEN, T); pk('fma', NUM, T, Gc, NUM)
    elif kind == 'S':
        pk('add', Tp, Tp, one); pk('add', T, T, one); pk('mul', PP, Tp, T); rcp(PP)
        pk('mul', NN, T, Gp); pk('add', T, T, Tp); pk('fma', NN, Tp, Gc, NN)
        pk('fma', DEN, T, PP, DEN); pk('fma', NUM, NN, PP, NUM)

def phase_m(a):
    D = a.D; lag = 2 if a.pair else 1; NL = D - lag
    a.stamp(9)
    if a.prof:
        a("v_mov_b32 v126, v15\ns_memtime s[86:87]\ns_waitcnt lgkmcnt(0)\ns_sub_u32 s92, s86, s92\nv_writelane_b32 v126, s92, 30"); a.sreg = 126
    if 'prio' in a.opt: a("s_setprio 3\ns_mov_b32 s23, 3")
    for q in range(NL): a(f"ds_read_u16 v{8+q}, v{PTR} offset:{q*32}")
    a(f"""
    ds_read_u16 v16, v{PTR+1}
    ds_read_u16 v17, v{PTR+1} offset:4
    ds_read_u16 v18, v{PTR+1} offset:32
    ds_read_u16 v19, v{PTR+1} offset:36
    ds_read_u16 v{IDX+2}, v{PTR} offset:{NL*32}
    """)
    for q in range(NL):
        a(f"s_waitcnt lgkmcnt({NL-1-q+5})\nv_lshl_add_u32 v{8+q}, v{8+q}, 7, v{IDX+1}\nbuffer_load_dwordx4 {v4(GR+4*q)}, v{8+q}, {R(STABW)}, 0 offen sc1")
        if q == 0: a(f"""
        s_waitcnt lgkmcnt(1)
        s_mov_b64 exec, s[36:37]
        ds_read2st64_b32 {v2(EA0)}, v16 {EAOFF}
        ds_read2st64_b32 {v2(EA0+2)}, v17 {EAOFF}
        ds_read2st64_b32 {v2(EA0+4)}, v18 {EAOFF}
        ds_read2st64_b32 {v2(EA0+6)}, v19 {EAOFF}
        ds_read_u16 v{EAD}, v{PTR+1} offset:64
        ds_read_u16 v{EAD+1}, v{PTR+1} offset:68
        s_mov_b64 exec, -1
        """)
    a(f"""
    s_waitcnt lgkmcnt(0)
    {mm(TB(a, 0), EA0, WC, AP)}
    s_waitcnt vmcnt({NL-1})
    s_nop 4
    """)
    sel(a, TB(a, 0), GR, TB(a, 0))
    a(f"""
    s_mov_b64 exec, s[36:37]
    ds_read2st64_b32 {v2(EA0)}, v{EAD} {EAOFF}
    ds_read2st64_b32 {v2(EA0+2)}, v{EAD+1} {EAOFF}
    ds_read_u16 v{EAD}, v{PTR+1} offset:96
    ds_read_u16 v{EAD+1}, v{PTR+1} offset:100
    s_mov_b64 exec, -1
    s_waitcnt vmcnt({NL-2})
    s_nop 1
    """)
    a.stamp(10)
    tblock(a, 0)
    if a.prof:
        a(f"s_mov_b32 s90, {len(a.names)}"); a.names += ['g1', 'g2', 'g3', 'g4']
    CS = list(range(0, 4, 4 // a.ch)) if a.ch else []
    for c in CS:
        for j in range(D):
            k = (j + c) % D
            a(f"L_m{c}_{k}:\ns_sub_u32 s24, s24, 1\ns_cbranch_scc1 L_b{c}_{k}")
            unit(a, k, f"n{j & 3}", False)
            tblock(a, k+1)
        a(f"s_branch L_m{c}_{c}")
    for c in (() if a.ch else (0, 1) if a.pair else (0,)):
        for j in range(D):
            k = (j + c) % D; kind = 'FS'[j & 1] if a.pair else 'U'
            lab = kind if a.pair else 'F'
            a(f"L_m{lab}{k}:\ns_sub_u32 s24, s24, 1\ns_cbranch_scc1 L_b{lab}{k}")
            unit(a, k, kind, False)
            tblock(a, k+1)
        a(f"s_branch L_mF{c}")
    for k0 in range(D):
      for kd in (CS if a.ch else 'FS' if a.pair else 'F'):
        k = (k0 + 1) % D
        OT = T3 if a.ch else 12
        if a.ch:
            a(f"L_b{kd}_{k0}:")
            unit(a, k0, f"p{(k0-kd) & 3}", True)
            tblock(a, k0+1)
            unit(a, k, f"l{(k0+1-kd) & 3}", False)
            if kd != CS[-1]:
                a(f"s_branch L_ep{k}"); continue
        else:
          a(f"L_b{kd}{k0}:")
          unit(a, k0, kd if a.pair else 'U', True)
          tblock(a, k0+1)
          unit(a, k, 'S' if a.pair and kd == 'F' else 'U', False)
          if a.pair and kd == 'F':
            a(f"s_branch L_ep{k}"); continue
        a(f"""
L_ep{k}:
        v_rcp_f32 v{DEN}, v{DEN}
        v_rcp_f32 v{DEN+1}, v{DEN+1}
        v_rcp_f32 v{DEN+2}, v{DEN+2}
        v_rcp_f32 v{DEN+3}, v{DEN+3}
        s_cmp_ge_u32 s{22 if 'xlate' in a.opt else 30}, {NL-2}
        s_cbranch_scc1 L_bx{k}
        s_waitcnt vmcnt(1)
L_bx{k}:
        v_pk_fma_f32 {v2(NUM)}, {v2(NUM)}, {v2(DEN)}, {v2(UR)}
        v_pk_fma_f32 {v2(NUM+2)}, {v2(NUM+2)}, {v2(DEN+2)}, {v2(UR+2)}
        ds_read_b128 {v4(UR)}, v{VAU}
        v_max_f32 v{NUM}, 0, v{NUM}
        v_max_f32 v{NUM+1}, 0, v{NUM+1}
        v_max_f32 v{NUM+2}, 0, v{NUM+2}
        v_max_f32 v{NUM+3}, 0, v{NUM+3}
        v_lshrrev_b64 {v2(IDS)}, 16, {v2(IDS)}
        v_mov_b64 {v2(DEN)}, s[28:29]
        v_mfma_f32_4x4x4_16b_bf16 {v4(OT)}, {v2(IDM)}, {v2(XR)}, {v4(NUM)}
        v_mov_b64 {v2(DEN+2)}, s[28:29]
        v_mad_u32_u16 v{VAU}, v{IDS}, 16, v{CAU} op_sel:[1,0,0,0]
        v_mov_b64 {v2(NUM)}, 0
        v_mov_b64 {v2(NUM+2)}, 0
        ds_read_b128 {v4(AUN)}, v{VAU}
        v_cvt_pk_bf16_f32 v{OT}, v{OT}, v{OT+1}
        v_cvt_pk_bf16_f32 v{OT+1}, v{OT+2}, v{OT+3}
        s_mov_b32 s30, s31
        {'s_mov_b32 s22, s31' if 'xlate' in a.opt else ''}
        s_mov_b32 s31, s32
        s_mov_b32 s32, s33
        s_mov_b32 s33, 0
        {f"s_cmp_lg_u32 s30, 0{chr(10)}s_cbranch_scc1 L_ns{k}" if 'nost' in a.opt else ''}
        buffer_store_dwordx2 {v2(OT)}, v{VOUT}, {R(SOUT)}, 0 offen{' sc1' if 'osc1' in a.opt and 'nosc' not in a.opt else ''}{' nt' if 'ont' in a.opt else ''}
L_ns{k}:
        """)
        if a.prof: a("s_memrealtime s[100:101]\ns_waitcnt lgkmcnt(0)\ns_add_u32 s90, s90, 1\ns_mov_b32 m0, s90\nv_writelane_b32 v126, s100, m0")
        a(f"""
        v_mad_u32_u16 v{VOUT}, v{IDS}, s35, v{COUT}
        s_sub_u32 s24, s30, 2
        s_cbranch_scc1 L_fin
        {xrl(a)}
        """)
        if 'p4' in a.opt: a(f"""
        s_cmp_lg_u32 s32, 0
        s_cbranch_scc1 L_pt{k}
        s_setprio 2
        s_cmp_lg_u32 s31, 0
        s_cbranch_scc1 L_pt{k}
        s_setprio 1
L_pt{k}:
        """)
        elif 'prio' in a.opt: a(f"""
        s_sub_u32 s23, s23, 1
        s_cmp_eq_u32 s23, 2
        s_cbranch_scc0 L_pr{k}
        s_setprio 2
L_pr{k}:
        s_cmp_eq_u32 s23, 1
        s_cbranch_scc0 L_ps{k}
        s_setprio 1
L_ps{k}:
        s_cmp_eq_u32 s23, 0
        s_cbranch_scc0 L_pt{k}
        s_setprio 0
L_pt{k}:
        """)
        if a.ch:
            p = ((k+1) & 3) % (4 // a.ch); c = ((k+1) & 3) - p
            if p == 1:
                a(f"v_mov_b32 v{PP}, {f2u(2.0**35):#x}\nv_mov_b32 v{PP+1}, v{PP}\nv_mov_b64 {v2(PP+2)}, {v2(PP)}\nv_mov_b64 {v2(GR+4*k)}, 0\nv_mov_b64 {v2(GR+4*k+2)}, 0")
            elif p > 1:
                a(f"v_mov_b32 v{PP}, 1.0\nv_mov_b32 v{PP+1}, 1.0\nv_mov_b64 {v2(PP+2)}, {v2(PP)}")
                for r in (NN, NN+2, A1, A1+2): a(f"v_mov_b64 {v2(r)}, 0")
            tblock(a, k+1)
            a(f"s_branch L_m{c}_{(k+1) % D}")
            continue
        tblock(a, k+1)
        a(f"s_branch L_mF{(k+1) % D}")

def slow(a):
    a(f"""
L_slow:
    s_waitcnt vmcnt(0) lgkmcnt(0)
    s_barrier
    v_mov_b64 v[4:5], 0
    v_mov_b64 v[6:7], 0
    v_lshlrev_b32 v2, 4, v0
    v_add_u32 v2, {ACC}, v2
    s_mov_b32 s18, 0
L_sz:
    v_cmp_gt_u32 vcc, {ACC+100352}, v2
    s_mov_b64 exec, vcc
    ds_write_b128 v2, v[4:7]
    s_mov_b64 exec, -1
    v_add_u32 v2, 16384, v2
    s_add_u32 s18, s18, 1
    s_cmp_lt_u32 s18, 7
    s_cbranch_scc1 L_sz
    s_cmp_gt_u32 s3, 1
    s_cbranch_scc1 L_swc
    v_lshrrev_b32 v3, 4, v0
    v_bfe_u32 v4, v0, 2, 2
    v_and_b32 v5, 3, v0
    v_lshl_add_u32 v3, v3, 2, v5
    v_lshlrev_b32 v3, 1, v3
    v_lshl_add_u32 v3, v4, 8, v3
    s_lshl_b32 s20, s4, 6
    buffer_load_ushort v3, v3, {R(SWC)}, s20 offen
    v_lshlrev_b32 v4, 2, v0
    v_add_u32 v4, {WCF}, v4
    s_waitcnt vmcnt(0)
    v_lshlrev_b32 v3, 16, v3
    v_mul_f32 v3, {NLOG2E:#x}, v3
    ds_write_b32 v4, v3
L_swc:
    """)
    poll2(a, "b")
    a(f"""
    s_waitcnt vmcnt(0) lgkmcnt(0)
    s_barrier
    s_mul_i32 s20, s5, {BN}
    s_mov_b32 s21, {E}
    s_movk_i32 s22, {BN}
    v_mov_b32 v2, v0
    s_mov_b32 s18, 0
L_se:
    v_lshlrev_b32 v3, 2, v2
    v_lshlrev_b32 v4, 3, v2
    buffer_load_dword v5, v3, {R(SDST)}, 0 offen
    v_cmp_gt_u32 s[24:25], s21, v2
    s_waitcnt vmcnt(0)
    v_subrev_u32 v5, s20, v5
    v_cmp_gt_u32 vcc, s22, v5
    s_and_b64 exec, vcc, s[24:25]
    s_cbranch_execz L_sn
    buffer_load_dword v6, v3, {R(SSRC)}, 0 offen
    buffer_load_dwordx2 v[8:9], v4, {R(SEA)}, 0 offen
    v_lshlrev_b32 v7, 4, v5
    v_add_u32 v7, {AU}, v7
    v_lshlrev_b32 v14, 8, v5
    v_add_u32 v14, {ACC}, v14
    v_mov_b32 v15, {WCF}
    s_mov_b32 s19, 0
    s_waitcnt vmcnt(0)
    v_lshlrev_b32 v6, 7, v6
    v_lshlrev_b32 v10, 16, v8
    v_and_b32 v11, 0xffff0000, v8
    v_lshlrev_b32 v12, 16, v9
    v_and_b32 v13, 0xffff0000, v9
L_sc:
    buffer_load_dwordx4 v[16:19], v6, {R(STABW)}, s19 offen sc1
    ds_read_b128 v[20:23], v7
    ds_read_b128 v[24:27], v15
    ds_read_b128 v[28:31], v15 offset:16
    ds_read_b128 v[32:35], v15 offset:32
    ds_read_b128 v[36:39], v15 offset:48
    s_waitcnt vmcnt(0) lgkmcnt(0)
    """)
    for r in range(4):
        a(f"""
        v_lshlrev_b32 v40, 16, v{16+r}
        v_lshlrev_b32 v41, 16, v{20+r}
        v_add_f32 v40, v40, v41
        v_fmac_f32 v40, v10, v{24+r}
        v_fmac_f32 v40, v11, v{28+r}
        v_fmac_f32 v40, v12, v{32+r}
        v_fmac_f32 v40, v13, v{36+r}
        v_exp_f32 v40, v40
        s_nop 0
        v_add_f32 v40, 1.0, v40
        v_rcp_f32 v40, v40
        s_nop 0
        v_mul_f32 v41, v40, v{16+r}
        ds_add_f32 v14, v40 offset:{4*r}
        ds_add_f32 v14, v41 offset:{128+4*r}
        """)
    a(f"""
    v_add_u32 v7, {AUS}, v7
    v_add_u32 v14, 16, v14
    v_add_u32 v15, 64, v15
    s_add_u32 s19, s19, 16
    s_cmp_lt_u32 s19, 128
    s_cbranch_scc1 L_sc
L_sn:
    s_mov_b64 exec, -1
    v_add_u32 v2, 1024, v2
    s_add_u32 s18, s18, 1
    s_cmp_lt_u32 s18, {(E+1023)//1024}
    s_cbranch_scc1 L_se
    s_waitcnt lgkmcnt(0)
    s_barrier
    s_mul_i32 s20, s5, {BN*256}
    s_lshl_b32 s19, s4, 6
    s_add_u32 s20, s20, s19
    v_mov_b32 v2, v0
    s_mov_b32 s18, 0
L_so:
    v_cmp_gt_u32 vcc, {BN*8}, v2
    s_mov_b64 exec, vcc
    s_cbranch_execz L_fin
    v_lshrrev_b32 v3, 3, v2
    v_and_b32 v4, 7, v2
    v_lshlrev_b32 v5, 8, v3
    v_lshl_add_u32 v6, v4, 3, v5
    buffer_load_dwordx2 v[8:9], v6, {R(SX)}, s20 offen
    v_lshl_add_u32 v5, v4, 4, v5
    v_add_u32 v5, {ACC}, v5
    ds_read_b128 v[16:19], v5
    ds_read_b128 v[20:23], v5 offset:128
    v_mul_u32_u24 v7, {AUS}, v4
    v_lshl_add_u32 v7, v3, 4, v7
    v_add_u32 v7, {AU}, v7
    ds_read_b128 v[24:27], v7
    s_waitcnt vmcnt(0) lgkmcnt(0)
    v_lshlrev_b32 v10, 16, v8
    v_and_b32 v11, 0xffff0000, v8
    v_lshlrev_b32 v12, 16, v9
    v_and_b32 v13, 0xffff0000, v9
    """)
    for r in range(4):
        a(f"""
        v_add_f32 v{16+r}, {EPS:#x}, v{16+r}
        v_rcp_f32 v{16+r}, v{16+r}
        s_nop 0
        v_fmac_f32 v{24+r}, v{16+r}, v{20+r}
        v_max_f32 v{24+r}, 0, v{24+r}
        v_add_f32 v{24+r}, v{24+r}, v{10+r}
        """)
    a(f"""
    v_cvt_pk_bf16_f32 v8, v24, v25
    v_cvt_pk_bf16_f32 v9, v26, v27
    buffer_store_dwordx2 v[8:9], v6, {R(SOUT)}, s20 offen
    v_add_u32 v2, 1024, v2
    s_add_u32 s18, s18, 1
    s_cmp_lt_u32 s18, 4
    s_cbranch_scc1 L_so
    """)

def fin(a):
    a("L_fin:")
    if a.prof:
        a("s_mov_b64 exec, -1\ns_waitcnt vmcnt(0)")
        a.stamp(11)
        a(f"""
        v_writelane_b32 v126, s84, 0
        s_memtime s[88:89]
        s_waitcnt lgkmcnt(0)
        s_sub_u32 s88, s88, s86
        v_writelane_b32 v126, s88, 31
        s_lshl_b32 s18, s2, 11
        s_lshl_b32 s19, s3, 7
        s_add_u32 s18, s18, s19
        s_add_u32 s18, s18, {PROFOFF}
        v_lshlrev_b32 v3, 2, v1
        s_mov_b32 exec_lo, -1
        s_mov_b32 exec_hi, 0
        buffer_store_dword v126, v3, {R(SSEG)}, s18 offen
        """)
        a("; STAMPS " + ",".join(["start"] + [str(x) for x in a.names]))
    a("L_end:\ns_endpgm")

def build(D=8, prof=False, force_slow=False, opt=()):
    a = G(D, prof, force_slow, opt)
    prologue(a); phase_p(a); phase_g(a); phase_s(a); phase_m(a); slow(a); fin(a)
    errs = hz.check(a.L)
    for e in errs: print("WARN", e, file=sys.stderr)
    ref = open(f"cdna_kernels/{NAME}.s.ref").read().split('\n')
    head = [l for l in ref if l.startswith(';') and '@launch' not in l]
    out = head + [f"; @launch grid=(256,1,1) block=(1024,1,1) lds={LDS_SIZE}",
        '.amdgcn_target "amdgcn-amd-amdhsa--gfx950"', '.text', f'.globl {NAME}_kernel', '.p2align 8',
        f'.type {NAME}_kernel,@function', f'{NAME}_kernel:'] + a.L + [
        '.section .rodata,"a"', '.p2align 6', f'.amdhsa_kernel {NAME}_kernel',
        '  .amdhsa_next_free_vgpr 128', '  .amdhsa_next_free_sgpr 102', '  .amdhsa_accum_offset 128',
        '  .amdhsa_group_segment_fixed_size 0', '  .amdhsa_kernarg_size 96', '  .amdhsa_user_sgpr_count 2',
        '  .amdhsa_user_sgpr_kernarg_segment_ptr 1', '  .amdhsa_system_sgpr_workgroup_id_x 1', '.end_amdhsa_kernel', '']
    return '\n'.join(out)

if __name__ == '__main__':
    ap = argparse.ArgumentParser()
    ap.add_argument('-o', default=f"cdna_kernels/{NAME}.s")
    ap.add_argument('-D', type=int, default=8)
    ap.add_argument('--prof', action='store_true')
    ap.add_argument('--slow', action='store_true')
    ap.add_argument('--opt', default='')
    x = ap.parse_args()
    open(x.o, 'w').write(build(x.D, x.prof, x.slow, x.opt.split(',')))
```

```python
import sys, struct, argparse
import hz

NAME = "standalone__edge_featured_mpnn_gatedgcn__graph"
N, E = 25000, 400000
BN = 392
CH = 1564
MARK = 0x800007FC
DUMMY = 25100
OVF = 8 << 20
FL2 = 7 << 20
TABOFF = 16 << 20
TABSL = 25600 * 128
PROFOFF = 64 << 20
PCNT, HIST, LEN, FLAG, PC1, OVC, PC3, XGO, PC2, F1, WCNT, XL, NONCE, TRASH, PERM, CNT, WCL = 0, 256, 512, 768, 772, 776, 780, 784, 788, 792, 796, 800, 808, 816, 1024, 2048, 3712
XD0, XD1 = F1, 820
TAGM = 0xF803
RETRY = 2048
XT = 4096
WL = XT + BN * 256
IMG = WL + 32768
OVL = IMG + 24576
LDS_SIZE = 163840
AUS = 6288
AU = LDS_SIZE - 8 * AUS
STG = WL
EALO = 4096
EASZ = 34816
EAHI = EALO + EASZ
ELL = EAHI + EASZ
ROWCAP = 1008
ZSLOT = 32768 + 63 * 4
ACC = 4096
WCF = WL
assert ELL + 32768 <= AU and STG + 8192 <= AU and OVL + 1024 <= LDS_SIZE
NLOG2E = struct.unpack('<I', struct.pack('<f', -1.4426950408889634))[0]
KC, SC = 40, 15
KS = 48
def f2u(x): return struct.unpack('<I', struct.pack('<f', x))[0]
EPS = struct.unpack('<I', struct.pack('<f', 1e-6))[0]

TBL = {2: [0, 1, 6, 9, 2, 11, 10, 5, 15, 4, 8, 8, 13, 7, 9, 6, 12, 7, 5, 11, 13, 2, 4, 14, 1, 14, 12, 7, 4, 14, 3, 2, 10, 3, 10, 15, 12, 5, 15, 1, 3, 0, 0, 13, 11, 8, 3, 6, 9],
       4: [0, 6, 5, 4, 2, 2, 1, 11, 7, 15, 8, 1, 9, 10, 7, 10, 8, 14, 5, 14, 3, 4, 12, 1, 6, 13, 3, 12, 11, 9, 0, 13, 9, 7, 15, 3, 2, 13, 4, 11, 12, 0, 5, 10, 6, 8, 15, 14, 3],
       6: [4, 5, 2, 7, 2, 0, 6, 1, 10, 1, 0, 1, 0, 13, 9, 8, 11, 6, 15, 14, 3, 8, 3, 3, 7, 10, 9, 12, 11, 5, 7, 6, 14, 4, 2, 11, 5, 9, 12, 12, 8, 15, 15, 13, 13, 10, 14, 4, 3]}

class G:
    def __init__(s, D=8, prof=False, force_slow=False, opt=()):
        s.opt = set(opt); s.pair = 'pair' in opt; s.XE = ([int(o[1:]) for o in opt if o[:1] == 'X'] + [0])[0]; s.EE = ([int(o[1:]) for o in opt if o[:1] == 'E'] + [0])[0]; s.YE = ([int(o[1:]) for o in opt if o[:1] == 'Y'] + [0])[0]; s.HD = ([int(o[1:]) for o in opt if o[:1] == 'H'] + [0])[0]; s.T = ([int(o[1:]) for o in opt if o[:1] == 'T'] + [0])[0]
        s.dup = ([o[3] for o in opt if o[:3] == 'dup'] + [''])[0]; s.dupw = ([int(o[4:]) for o in opt if o[:3] == 'dup'] + [0])[0]; s.tb = ([int(o[2:]) for o in opt if o[:2] == 'tb'] + [0])[0]; s.ch = ([int(o[2:]) for o in opt if o[:2] == 'ch'] + [0])[0]; s.L = []; s.D = D; s.prof = prof; s.force_slow = force_slow; s.nst = 0; s.names = []; s.sreg = 15
    def __call__(s, txt):
        for l in txt.strip('\n').split('\n'):
            l = l.strip()
            if l: s.L.append(('' if l.endswith(':') else '    ') + l)
    def srd(s, d, p, n, extra1=None):
        s(f"s_mov_b32 s{d}, s{p}")
        if extra1 is None: s(f"s_mov_b32 s{d+1}, s{p+1}")
        else: s(f"s_or_b32 s{d+1}, s{p+1}, {extra1:#x}")
        s(f"s_mov_b32 s{d+2}, {n:#x}\ns_mov_b32 s{d+3}, 0x20000")
    def stamp(s, k):
        if s.prof:
            s.names.append(k)
            s(f"s_memrealtime s[100:101]\ns_waitcnt lgkmcnt(0)\nv_writelane_b32 v{s.sreg}, s100, {len(s.names)}")
    def scan(s, v):
        for m in ("row_shr:1 row_mask:0xf bank_mask:0xf bound_ctrl:0", "row_shr:2 row_mask:0xf bank_mask:0xf bound_ctrl:0",
                  "row_shr:4 row_mask:0xf bank_mask:0xf bound_ctrl:0", "row_shr:8 row_mask:0xf bank_mask:0xf bound_ctrl:0",
                  "row_bcast:15 row_mask:0xa bank_mask:0xf", "row_bcast:31 row_mask:0xc bank_mask:0xf"):
            s(f"s_nop 1\nv_add_u32_dpp v{v}, v{v}, v{v} {m}")

SX, SEA, SSRC, SDST, SW, SOUT, SDBG, SSEG, STABW, STAB, SWC = 40, 44, 48, 52, 56, 60, 64, 68, 72, 76, 80
def R(d): return f"s[{d}:{d+3}]"

def w2(a, lab, k, extra):
    a(f"s_cbranch_scc1 {lab}\ns_waitcnt vmcnt({k})\n{lab}:\ns_waitcnt vmcnt({k+extra})")

def srds(a):
    a.srd(SOUT, 34, N*256); a.srd(SDBG, 36, 256)
    a.srd(SSEG, 38, (PROFOFF + (1 << 20)) if a.prof else TABOFF)
    a(f"""
    s_mul_i32 s9, s4, {TABSL}
    s_add_u32 s9, s9, {TABOFF}
    s_add_u32 s12, s38, s9
    s_addc_u32 s13, s39, 0
    """)
    a.srd(STABW, 12, TABSL); a.srd(STAB, 12, 25600, extra1=128 << 16)

def xdma(a, lab):
    nt = ' nt' if 'dnt' in a.opt else ''
    a(f"""
    s_mul_i32 s14, s5, {BN*256}
    s_lshl_b32 s15, s3, 13
    s_add_u32 s14, s14, s15
    s_add_u32 m0, s15, {XT}
    v_xor_b32 v17, 64, v16
    v_xor_b32 v18, 0x80, v16
    v_xor_b32 v19, 0xc0, v16
    s_cmp_eq_u32 s3, 12
    buffer_load_dwordx4 v16, {R(SX)}, s14 offen{nt} lds
    buffer_load_dwordx4 v17, {R(SX)}, s14 offen offset:1024{nt} lds
    s_cbranch_scc1 {lab}
    buffer_load_dwordx4 v18, {R(SX)}, s14 offen offset:2048{nt} lds
    buffer_load_dwordx4 v19, {R(SX)}, s14 offen offset:3072{nt} lds
    s_add_u32 m0, s15, {XT+4096}
    s_add_u32 s14, s14, 4096
    buffer_load_dwordx4 v16, {R(SX)}, s14 offen{nt} lds
    buffer_load_dwordx4 v17, {R(SX)}, s14 offen offset:1024{nt} lds
    buffer_load_dwordx4 v18, {R(SX)}, s14 offen offset:2048{nt} lds
    buffer_load_dwordx4 v19, {R(SX)}, s14 offen offset:3072{nt} lds
{lab}:
    """)

def spin(a, lab, vaddr, off, cmp, val, vt=32):
    a(f"""
{lab}:
    ds_read_b32 v{vt}, v{vaddr} offset:{off}
    s_waitcnt lgkmcnt(0)
    v_readfirstlane_b32 s18, v{vt}
    s_cmp_{cmp}_u32 s18, {val}
    s_cbranch_scc1 {lab}d
    s_sleep 1
    s_branch {lab}
{lab}d:
    """)

def allsrds(a):
    a.srd(SDST, 22, E*4); a.srd(SSRC, 20, E*4); a.srd(SEA, 18, E*8)
    a.srd(SWC, 28, 1024)
    srds(a)

MAP = ["""s_and_b32 s4, s2, 3
    s_lshr_b32 s5, s2, 3
    s_bfe_u32 s6, s2, 0x10002
    s_lshl_b32 s6, s6, 5
    s_add_u32 s5, s5, s6""",
    """s_and_b32 s4, s2, 1
    s_lshl_b32 s4, s4, 1
    s_bfe_u32 s6, s2, 0x10003
    s_add_u32 s4, s4, s6
    s_lshr_b32 s5, s2, 4
    s_bfe_u32 s6, s2, 0x20001
    s_lshl_b32 s6, s6, 4
    s_add_u32 s5, s5, s6""",
    """s_bfe_u32 s4, s2, 0x20003
    s_lshr_b32 s5, s2, 5
    s_and_b32 s6, s2, 7
    s_lshl_b32 s6, s6, 3
    s_add_u32 s5, s5, s6"""]

def icw(a):
    if 'icw' not in a.opt: return ''
    return """s_cmp_lg_u32 s3, 15
    s_cbranch_scc1 L_icd
    s_getpc_b64 s[12:13]
L_icp:
    v_lshlrev_b32 v6, 7, v1
    v_mov_b32 v7, 0
    v_lshl_add_u64 v[6:7], v[6:7], 0, s[12:13]
    s_mov_b32 s12, 8192
    s_mov_b32 s13, 0
    global_load_dword v127, v[6:7], off offset:1024
    v_lshl_add_u64 v[6:7], v[6:7], 0, s[12:13]
    global_load_dword v127, v[6:7], off offset:1024
L_icd:"""

def prologue(a):
    a(f"""
    s_cmp_ge_u32 s2, 256
    s_cbranch_scc1 L_end
    s_load_dwordx16 s[16:31], s[0:1], 0
    s_load_dwordx8 s[32:39], s[0:1], 64
    """)
    if 'icx' in a.opt: a("""
    s_getpc_b64 s[12:13]
L_icp:
    v_lshlrev_b32 v6, 7, v0
    v_mov_b32 v7, 0
    v_cmp_gt_u32 vcc, L_slow-L_icp-128, v6
    v_lshl_add_u64 v[6:7], v[6:7], 0, s[12:13]
    s_and_b64 exec, vcc, vcc
    s_cbranch_scc0 L_icd
    global_load_dword v127, v[6:7], off offset:128
L_icd:
    s_mov_b64 exec, -1
    """)
    if a.prof: a("s_memrealtime s[84:85]\ns_memtime s[92:93]\nv_mov_b32 v15, 0")
    a(f"""
    v_lshrrev_b32 v2, 6, v0
    v_and_b32 v1, 63, v0
    v_lshlrev_b32 v4, 4, v0
    v_readfirstlane_b32 s3, v2
    v_mov_b32 v3, 0
    s_lshl_b32 s9, s2, 4
    s_add_u32 s9, s9, s3
    s_cmp_lg_u32 s9, 14
    s_cbranch_scc1 L_i0
    ; launch tag: a mix of the clock, published through d_debug
    s_memrealtime s[12:13]
    s_waitcnt lgkmcnt(0)
    s_mul_i32 s14, s12, 0x9E3779B1
    s_mul_i32 s12, s12, 0x85EBCA6B
    s_xor_b32 s13, s13, s12
    s_bitset1_b32 s13, 31
    v_mov_b32 v8, s14
    v_mov_b32 v9, s13
    s_mov_b64 exec, 1
    global_store_dwordx2 v3, v[8:9], s[36:37] offset:136 sc1
    s_mov_b64 exec, -1
L_i0:
    {icw(a)}
    v_lshrrev_b32 v6, 3, v0
    v_mul_u32_u24 v6, 384, v6
    v_and_b32 v7, 7, v0
    v_lshl_add_u32 v6, v7, 4, v6
    v_add_u32 v6, {IMG+256}, v6
    v_subrev_u32 v7, {512*16}, v4
    s_cmp_lt_u32 s3, 8
    s_cselect_b32 s9, {MARK:#x}, 0
    v_mov_b32 v20, s9
    v_mov_b32 v21, s9
    v_mov_b32 v22, s9
    v_mov_b32 v23, s9
    s_cbranch_scc1 L_i1
    v_mov_b32 v6, v7
L_i1:
    s_cmp_ge_u32 s3, 12
    s_cbranch_scc1 L_i2
    ds_write_b128 v6, v[20:23]
L_i2:
    {MAP[2 if 'map4' in a.opt else 1 if 'map2' in a.opt else 0]}
    v_subrev_u32 v3, {320*16}, v4
    v_lshlrev_b32 v4, 1, v3
    s_mul_i32 s6, s2, {CH*4}
    s_lshl_b32 s7, s6, 1
    s_movk_i32 s8, {CH*4}
    s_cmp_eq_u32 s2, 255
    s_cselect_b32 s8, {(E-255*CH)*4}, s8
    v_cmp_gt_u32 s[10:11], s8, v3
    v_lshrrev_b32 v5, 2, v1
    v_and_b32 v6, 3, v1
    v_lshlrev_b32 v6, 4, v6
    v_lshl_or_b32 v5, v5, 8, v6
    v_lshrrev_b32 v6, 4, v1
    v_and_b32 v7, 15, v1
    v_xor_b32 v16, v7, v6
    v_lshlrev_b32 v6, 8, v6
    v_lshl_or_b32 v16, v16, 4, v6
    v_mov_b32 v2, 1
    v_mov_b32 v30, {FLAG}
    s_cmp_lt_u32 s3, 5
    s_cbranch_scc1 L_i3
    s_setprio 2
L_i3:
    s_waitcnt lgkmcnt(0)
    s_barrier
    """)
    a.srd(SX, 16, N*256)
    a(f"""
    s_cmp_ge_u32 s3, 5
    s_cbranch_scc1 L_l0
    s_cmp_eq_u32 s3, 4
    s_cbranch_scc1 L_e1
    s_cmp_eq_u32 s3, 0
    s_cselect_b64 s[12:13], s[26:27], s[32:33]
    s_cmp_eq_u32 s3, 2
    s_cselect_b64 s[12:13], s[24:25], s[12:13]
    s_cmp_eq_u32 s3, 3
    s_cselect_b64 s[12:13], s[30:31], s[12:13]
    """)
    a.srd(SW, 12, 32768)
    a(f"""
    s_lshl_b32 s15, s3, 13
    s_lshl_b32 s14, s4, 6
    """)
    for q in range(8):
        if q % 4 == 0: a(f"s_add_u32 m0, s15, {WL + q*1024}")
        a(f"s_add_u32 s12, s14, {q*4096 - (q%4)*1024}\nbuffer_load_dwordx4 v5, {R(SW)}, s12 offen offset:{(q%4)*1024} lds")
    a("L_e1:")
    if a.T:
        allsrds(a)
        a(f"""
        s_cmp_lt_u32 s3, {a.T}
        s_cbranch_scc1 L_e2
        s_mov_b64 exec, 1
        s_waitcnt vmcnt(0)
        ds_add_u32 v30, v2 offset:{WCNT-FLAG}
        s_mov_b64 exec, -1
        s_branch L_xw
L_e2:
        """)
    if a.EE:
        allsrds(a)
        a(f"""
        {'s_bitcmp1_b32 s2, 2' if 'elo' in a.opt else 's_bitcmp0_b32 s2, 2' if 'ehi' in a.opt else ''}
        {'s_cbranch_scc1 L_e3' if 'elo' in a.opt or 'ehi' in a.opt else ''}
        s_cmp_lt_u32 s3, {a.EE}
        s_cbranch_scc1 L_e3
        s_mov_b64 exec, 1
        s_waitcnt vmcnt(0)
        ds_add_u32 v30, v2 offset:{WCNT-FLAG}
        s_mov_b64 exec, -1
        s_mov_b32 s19, 2
        s_branch L_xg
L_e3:
        """)
    xdma(a, "L_nx1")
    if not a.T and not a.EE: allsrds(a)
    a(f"""
    s_mov_b64 exec, 1
    s_waitcnt vmcnt(8)
    ds_add_u32 v30, v2 offset:{WCNT-FLAG}
    s_mov_b64 exec, -1
    s_branch L_g
L_l0:
    s_cmp_ge_u32 s3, 13
    s_cbranch_scc1 L_h0
    """)
    a.srd(SDST, 22, E*4); a.srd(SSRC, 20, E*4); a.srd(SEA, 18, E*8)
    a(f"""
    s_cmp_eq_u64 s[10:11], 0
    s_cbranch_scc1 L_noedge
    s_mov_b64 exec, s[10:11]
    buffer_load_dwordx4 v[8:11], v3, {R(SDST)}, s6 offen{' nt' if 'int' in a.opt else ''}
    buffer_load_dwordx4 v[40:43], v3, {R(SSRC)}, s6 offen{' nt' if 'int' in a.opt else ''}
    buffer_load_dwordx4 v[32:35], v4, {R(SEA)}, s7 offen{' nt' if 'int' in a.opt else ''}
    buffer_load_dwordx4 v[36:39], v4, {R(SEA)}, s7 offen offset:16{' nt' if 'int' in a.opt else ''}
    s_mov_b64 exec, -1
L_noedge:
    """)
    a.srd(SWC, 28, 1024)
    srds(a)

def tags(a):
    a(f"""
    v_and_b32 v45, 7, v1
    v_cmp_eq_u32 vcc, 0, v45
    v_lshlrev_b32 v45, 2, v45
    v_lshrrev_b64 v[46:47], v45, v[46:47]
    v_mov_b32 v44, {TAGM:#x}
    v_cndmask_b32 v44, v44, 2, vcc
    v_and_b32 v40, v44, v46
    v_lshrrev_b32 v41, 5, v46
    v_lshrrev_b32 v42, 10, v46
    v_lshrrev_b32 v43, 15, v46
    v_and_b32 v41, {TAGM:#x}, v41
    v_and_b32 v42, {TAGM:#x}, v42
    v_and_b32 v43, {TAGM:#x}, v43
    """)

def phase_p(a):
    M = ("s[12:13]", "s[14:15]", "s[20:21]", "s[22:23]")
    a(f"""
    s_cmp_eq_u64 s[10:11], 0
    s_cbranch_scc1 L_p_done
    s_mov_b64 exec, s[10:11]
    s_mov_b32 s16, 42800
    s_mov_b32 s17, {(-MARK) & 0xffffffff:#x}
    s_movk_i32 s18, 384
    v_mov_b32 v3, {IMG}
    s_waitcnt vmcnt(3)
    """)
    for j in range(4): a(f"v_mul_u32_u24 v{44+j}, s16, v{8+j}")
    for j in range(4): a(f"v_lshrrev_b32 v{44+j}, 24, v{44+j}")
    for j in range(4): a(f"v_lshlrev_b32 v{48+j}, 2, v{44+j}\nds_add_rtn_u32 v{20+j}, v{48+j}, v2 offset:{PCNT}")
    for j in range(4):
        a(f"""
        v_mul_u32_u24 v{48+j}, {BN*4}, v{44+j}
        v_lshl_add_u32 v{8+j}, v{8+j}, 2, s17
        v_sub_u32 v{8+j}, v{8+j}, v{48+j}
        v_mad_u32_u24 v{48+j}, v{44+j}, s18, v3
        """)
    a("s_waitcnt vmcnt(2)")
    for j in range(4): a(f"v_lshl_add_u32 v{8+j}, v{40+j}, 16, v{8+j}")
    for j in range(4):
        a(f"""
        s_waitcnt lgkmcnt({3-j})
        v_add_u32 v{52+j}, v{20+j}, v{44+j}
        v_cmp_gt_u32 {M[j]}, 32, v{20+j}
        v_and_b32 v{52+j}, 31, v{52+j}
        v_lshl_add_u32 v{52+j}, v{52+j}, 2, v{48+j}
        """)
    for j in range(4): a(f"s_mov_b64 exec, {M[j]}\nds_add_u32 v{52+j}, v{8+j} offset:256")
    for j in range(4):
        if j % 2 == 0: a(f"s_waitcnt vmcnt({1 - j//2})")
        a(f"s_mov_b64 exec, {M[j]}\nds_write2_b32 v{52+j}, v{32+2*j}, v{33+2*j} offset0:0 offset1:32")
    for j in range(4):
        rk, bk, base, sd, lo, hi = 20+j, 44+j, 48+j, 8+j, 32+2*j, 33+2*j
        a(f"""
        s_andn2_b64 exec, s[10:11], {M[j]}
        s_cbranch_execz L_po{j}
        ds_add_rtn_u32 v28, v30, v2 offset:{OVC-FLAG}
        v_mov_b32 v24, v{lo}
        v_mov_b32 v25, v{hi}
        v_add_u32 v26, {MARK:#x}, v{sd}
        v_lshlrev_b32 v27, 9, v{bk}
        v_lshl_add_u32 v27, v{rk}, 4, v27
        v_mov_b32 v29, 0x800
        s_waitcnt lgkmcnt(0)
        v_max_u32 v31, v28, v{rk}
        v_cmp_lt_u32 vcc, 62, v31
        v_lshlrev_b32 v28, 4, v28
        v_add_u32 v28, {OVL}, v28
        s_andn2_b64 s[24:25], exec, vcc
        s_mov_b64 exec, vcc
        ds_or_b32 v30, v2
        s_mov_b64 exec, s[24:25]
        ds_add_u32 v{base}, v29 offset:256
        ds_write_b128 v28, v[24:27]
L_po{j}:
        """)
    a(f"""
L_p_done:
    s_mov_b64 exec, 1
    ds_add_u32 v30, v2 offset:{PC1-FLAG}
    s_mov_b64 exec, -1
    s_setprio 0
    """)
    a.stamp('p_w')
    if a.tb:
        n = [0]*16
        for g, w in enumerate(TBL[a.tb]):
            a(f"v_writelane_b32 v14, {4*w + n[w]}, {g}"); n[w] += 1
    if 'xpf' in a.opt: a(f"""
    s_cmp_lg_u32 s3, 12
    s_cbranch_scc1 L_xpf
    s_mul_i32 s14, s5, {BN*256}
    s_mul_i32 s15, s4, {232*64}
    s_add_u32 s14, s14, s15
    s_add_u32 s14, s14, {160*256}
    s_add_u32 s15, s14, {116*64}
    v_lshlrev_b32 v8, 6, v1
    s_mov_b32 exec_hi, {(1 << 26) - 1:#x}
    buffer_load_dword v9, v8, {R(SX)}, s14 offen
    buffer_load_dword v9, v8, {R(SX)}, s14 offen offset:{58*64}
    buffer_load_dword v9, v8, {R(SX)}, s15 offen
    buffer_load_dword v9, v8, {R(SX)}, s15 offen offset:{58*64}
    s_mov_b32 exec_hi, -1
    s_waitcnt vmcnt(0)
L_xpf:
    """)
    if a.XE: a(f"s_cmp_lt_u32 s3, {a.XE}\ns_cbranch_scc1 L_xgd")
    Z = [o for o in a.opt if o[:1] == 'Z']
    if Z: a(f"s_bitcmp1_b32 s2, 2\ns_cselect_b32 s19, {int(Z[0][2], 16)}, {int(Z[0][1], 16)}\ns_cmp_lt_u32 s3, s19\ns_cselect_b32 s19, 2, 3")
    elif a.YE: a(f"s_cmp_lt_u32 s3, {a.YE}\ns_cselect_b32 s19, 2, 3")
    if 'noxgo' not in a.opt: spin(a, "L_xg", 30, XGO-FLAG, "ge", "s19" if a.YE else 3)
    if a.T:
        a(f"L_xw:\ns_sub_u32 s19, s3, {a.T-1}\ns_cselect_b32 s19, 0, s19")
        spin(a, "L_xt", 30, XL-FLAG, "ge", "s19")
    a.stamp('xgo')
    xdma(a, "L_nx2")
    a(f"""
    s_branch L_g
L_h0:
    """)
    allsrds(a)
    a(f"""
    v_lshlrev_b32 v4, 4, v1
    s_mul_i32 s16, s2, 24576
    v_mov_b32 v3, 0
    s_movk_i32 s17, 384
    s_cmp_eq_u32 s3, 13
    s_cbranch_scc1 L_h13
    v_lshrrev_b32 v8, 4, v1
    v_lshlrev_b32 v9, 4, v7
    v_mad_u32_u24 v8, v8, s17, v9
    s_cmp_lg_u32 s3, 15
    s_cbranch_scc1 L_h2
    v_add_u32 v8, {32*384}, v8
    v_lshl_or_b32 v6, v7, 2, v6
    s_movk_i32 m0, {WCL}
    s_lshl_b32 s9, s4, 6
    buffer_load_dword v6, {R(SWC)}, s9 offen lds
L_h2:
    v_add_u32 v9, {IMG}, v8
    s_add_u32 s17, s16, {3*1536}
    s_add_u32 s19, s16, {6*1536}
    s_setprio 0
    """)
    spin(a, "L_hp", 30, PC1-FLAG, "ge", 8)
    a("s_setprio 3")
    a.stamp('b1')
    for i in range(8): a(f"ds_read_b128 v[{64+4*i}:{67+4*i}], v9 offset:{i*1536}")
    for i in range(8):
        a(f"s_waitcnt lgkmcnt({7-i})\nbuffer_store_dwordx4 v[{64+4*i}:{67+4*i}], v8, {R(SSEG)}, s{(16,17,19)[i//3]} offen offset:{(i%3)*1536} sc1{' nt' if 'int' in a.opt else ''}")
    a(f"""
    s_mov_b64 exec, 1
    ds_add_u32 v30, v2 offset:{XGO-FLAG}
    """)
    a.stamp('imi')
    a(f"""
    s_waitcnt vmcnt(0)
    ds_add_u32 v30, v2 offset:{PC2-FLAG}
    s_branch L_pso
L_h13:
    v_lshrrev_b32 v8, 3, v1
    v_and_b32 v9, 0x70, v4
    v_mad_u32_u24 v8, v8, s17, v9
    v_add_u32 v9, {IMG+256}, v8
    v_add_u32 v5, {OVL}, v4
    s_mov_b32 s18, 0x40000
L_tag:
    buffer_load_dwordx2 v[46:47], v3, {R(SDBG)}, 0 offen offset:136 sc1
    s_waitcnt vmcnt(0)
    v_cmp_eq_u32 vcc, 0, v47
    s_sub_u32 s18, s18, 1
    s_cbranch_scc1 L_tagd
    s_cbranch_vccz L_tagd
    s_sleep 1
    s_branch L_tag
L_tagd:
    v_or_b32 v47, 0x80000000, v47
    ds_write_b64 v30, v[46:47] offset:{NONCE-FLAG}
    """)
    a.stamp('tag')
    tags(a)
    a("s_setprio 0")
    spin(a, "L_hq", 30, PC1-FLAG, "ge", 8)
    a(f"""
    s_setprio 3
    ds_read_b96 v[36:38], v30
    ds_read_b128 v[24:27], v5
    """)
    for i in range(8): a(f"ds_read_b128 v[{64+4*i}:{67+4*i}], v9 offset:{i*3072}")
    a(f"""
    s_lshl_b32 s19, s2, 15
    s_add_u32 s19, s19, {OVF-512}
    s_waitcnt lgkmcnt(8)
    v_cmp_gt_u32 s[20:21], v38, v1
    v_cmp_eq_u32 vcc, 0, v36
    v_and_b32 v36, 1, v36
    v_bfi_b32 v36, v44, 0, v36
    v_or_b32 v40, v40, v36
    s_and_b64 exec, s[20:21], vcc
    s_cbranch_scc0 L_psn
    buffer_store_dwordx4 v[24:27], v27, {R(SSEG)}, s19 offen sc1
L_psn:
    s_mov_b64 exec, 1
    ds_add_u32 v30, v2 offset:{(TRASH if 'xsd' in a.opt else XGO)-FLAG}
    s_mov_b64 exec, -1
    """)
    for i in range(8):
        a(f"s_waitcnt lgkmcnt({8-i})")
        for j in range(4): a(f"v_xor_b32 v{64+4*i+j}, v{64+4*i+j}, v{40+j}")
    a("s_waitcnt vmcnt(0)")
    spin(a, "L_hr", 30, PC2-FLAG, "ge", 2)
    for i in range(8):
        a(f"buffer_store_dwordx4 v[{64+4*i}:{67+4*i}], v8, {R(SSEG)}, s16 offen offset:256 sc1{' nt' if 'int' in a.opt else ''}")
        if i < 7: a("s_add_u32 s16, s16, 3072")
    if 'xsd' in a.opt: a(f"s_mov_b64 exec, 1\nds_add_u32 v30, v2 offset:{XGO-FLAG}")
    a(f"""
L_pso:
    s_sub_u32 s17, s3, 8
    """)
    a.stamp('sig1')
    if a.HD and 'eh' not in a.opt: spin(a, "L_hd", 30, XD0-FLAG, "ge", a.HD)
    a(f"""
    s_branch L_sw
L_g:
    """)

SD = 48
ACCS = (48, 64, 80, 96)
def phase_g(a):
    a(f"""
    v_and_b32 v20, 31, v1
    v_lshrrev_b32 v21, 5, v1
    s_lshl_b32 s18, s3, 13
    s_add_u32 s18, s18, {XT}
    v_and_b32 v22, 15, v1
    v_xor_b32 v22, v22, v21
    v_lshlrev_b32 v22, 4, v22
    v_lshl_or_b32 v22, v20, 8, v22
    v_add_u32 v4, s18, v22
    v_bfe_u32 v22, v1, 2, 2
    v_lshl_add_u32 v22, v21, 3, v22
    v_lshlrev_b32 v22, 6, v22
    v_and_b32 v23, 16, v1
    v_lshl_add_u32 v22, v23, 1, v22
    v_and_b32 v23, 3, v1
    v_lshl_add_u32 v22, v23, 3, v22
    v_add_u32 v5, {WL}, v22
    v_bfe_u32 v22, v1, 1, 3
    v_xor_b32 v22, v22, v21
    v_lshlrev_b32 v22, 4, v22
    v_lshl_or_b32 v22, v20, 7, v22
    v_add_u32 v6, s18, v22
    v_lshl_add_u32 v7, v1, 4, s18
    v_and_b32 v22, 7, v1
    v_lshrrev_b32 v23, 4, v1
    v_xor_b32 v22, v22, v23
    v_lshlrev_b32 v22, 4, v22
    v_lshrrev_b32 v23, 3, v1
    v_lshl_or_b32 v8, v23, 7, v22
    v_xor_b32 v9, 64, v8
    v_mul_u32_u24 v22, {AUS}, v21
    v_lshl_add_u32 v22, v20, 4, v22
    s_lshl_b32 s18, s3, 9
    s_add_u32 s18, s18, {AU}
    v_add_u32 v10, s18, v22
    v_xor_b32 v11, 32, v6
    v_xor_b32 v12, 64, v6
    v_xor_b32 v13, 0x60, v6
    s_mul_i32 s19, s5, {BN*128}
    s_lshl_b32 s18, s3, 12
    s_add_u32 s19, s19, s18
    s_mov_b32 s20, {NLOG2E:#x}
    s_mov_b32 s21, {NLOG2E:#x}
    s_mov_b32 s22, 0x07060100
    s_mov_b32 s23, 0x07060302
    s_cmp_eq_u32 s3, 12
    s_cselect_b32 s26, 0xff, -1
    s_cselect_b32 s27, 0xff, -1
    """)
    for ks in range(1, 8): a(f"v_xor_b32 v{48+ks}, {ks*32:#x}, v4")
    if a.dup: a(f"s_mov_b64 s[96:97], s[{STABW}:{STABW+1}]\ns_mov_b32 s99, s{STABW+3}\ns_cmp_ge_u32 s3, {a.dupw}\ns_cselect_b32 s98, s{STABW+2}, 0")
    Q = []
    def ds(txt, tag=None):
        a(txt); Q.append(tag)
    def wait(tag):
        if tag in Q:
            i = max(k for k, t in enumerate(Q) if t == tag)
            n = len(Q) - 1 - i
            assert n <= 15
            a(f"s_waitcnt lgkmcnt({n})")
            del Q[:i+1]
    def frag(t):
        p, ks, mm = t >> 4, (t >> 1) & 7, t & 1
        r = 112 + 4*(t & 3); o = (2*p+mm)*8192 + ks*1024
        ds(f"ds_read_b64_tr_b16 v[{r}:{r+1}], v5 offset:{o}", ('f', t))
        ds(f"ds_read_b64_tr_b16 v[{r+2}:{r+3}], v5 offset:{o+256}", ('f', t))
    spin(a, "L_wc", 30, WCNT-FLAG, "ge", 5)
    for t in range(4): frag(t)
    a("s_waitcnt vmcnt(0) lgkmcnt(0)"); Q.clear()
    if a.T:
        a("s_mov_b64 exec, 1"); ds(f"ds_add_u32 v30, v2 offset:{XL-FLAG}"); a("s_mov_b64 exec, -1")
    a.stamp('xl')
    for ks in range(8): ds(f"ds_read_b128 v[{16+4*ks}:{19+4*ks}], v{4 if ks == 0 else 48+ks}", ('x', ks))
    def pack(B, V, i):
        b = B + 4*i; v = V + 4*i
        return [f"v_pk_mul_f32 v[{b}:{b+1}], v[{b}:{b+1}], s[20:21]", f"v_pk_mul_f32 v[{b+2}:{b+3}], v[{b+2}:{b+3}], s[20:21]",
                f"v_cvt_pk_bf16_f32 v{b}, v{b}, v{b+1}", f"v_cvt_pk_bf16_f32 v{b+1}, v{b+2}, v{b+3}",
                f"v_perm_b32 v{v}, v{v}, v{b}, s22", f"v_perm_b32 v{v+1}, v{v+1}, v{b}, s23",
                f"v_perm_b32 v{v+2}, v{v+2}, v{b+1}, s22", f"v_perm_b32 v{v+3}, v{v+3}, v{b+1}, s23"]
    ep = []
    for i in range(4):
        ep += [('v', x) for x in pack(48, 64, i)]
        ep += [('w', i)]
    ep += [('r', i) for i in range(4)] + [('s', i) for i in range(4)]
    def emit(e):
        k, x = e
        if k == 'v': a(x)
        elif k == 'w':
            a("s_mov_b64 exec, s[26:27]")
            ds(f"ds_write_b128 v{(6, 11, 12, 13)[x]}, v[{64+4*x}:{67+4*x}]")
            a("s_mov_b64 exec, -1")
        elif k == 'r': ds(f"ds_read_b128 v[{48+4*x}:{51+4*x}], v7 offset:{x*1024}", ('r', x))
        elif k == 's':
            wait(('r', x))
            if x: a(f"s_cbranch_scc1 L_gs{x}")
            dup = f"buffer_store_dwordx4 v[{48+4*x}:{51+4*x}], v{8+(x&1)}, s[96:99], s19 offen offset:{x*1024}"
            if a.dup == 'b': a(dup)
            a(f"buffer_store_dwordx4 v[{48+4*x}:{51+4*x}], v{8+(x&1)}, {R(STABW)}, s19 offen offset:{x*1024} sc1")
            if a.dup == 'a': a(dup)
            if x: a(f"L_gs{x}:")
    a("s_cmp_eq_u32 s3, 12")
    for t in range(32):
        p, ks, mm = t >> 4, (t >> 1) & 7, t & 1
        wait(('f', t)); wait(('x', ks))
        d = ACCS[2*p+mm]; r = 112 + 4*(t & 3)
        c = "0" if ks == 0 else f"v[{d}:{d+15}]"
        a(f"v_mfma_f32_32x32x16_bf16 v[{d}:{d+15}], v[{r}:{r+3}], v[{16+4*ks}:{19+4*ks}], {c}")
        if t + 4 < 32: frag(t + 4)
        if t >= 18:
            n = 5 if ep and ep[0][0] in 'vw' else (4 if ep and ep[0][0] == 'r' else 1)
            for _ in range(n):
                if ep: emit(ep.pop(0))
    while ep: emit(ep.pop(0))
    a(f"""
    s_cselect_b32 s18, s5, 0
    v_mov_b32 v32, 0x7180
    v_mov_b32 v33, 0x7180
    v_mov_b32 v34, 0x7180
    v_mov_b32 v35, 0x7180
    v_lshlrev_b32 v12, 4, v1
    s_cmp_lg_u32 s18, 63
    s_cbranch_scc1 L_nodum
    s_mov_b32 s18, {DUMMY*128}
    buffer_store_dwordx4 v[32:35], v12, {R(STABW)}, s18 offen sc1
    buffer_store_dwordx4 v[32:35], v12, {R(STABW)}, s18 offen offset:1024 sc1
    buffer_store_dwordx4 v[32:35], v12, {R(STABW)}, s18 offen offset:2048 sc1
    buffer_store_dwordx4 v[32:35], v12, {R(STABW)}, s18 offen offset:3072 sc1
L_nodum:
    s_movk_i32 s18, {XD1}
    s_cmp_lt_u32 s3, 5
    s_cselect_b32 s18, {XD0}, s18
    s_cmp_lt_u32 s3, 9
    s_cselect_b32 s18, s18, {TRASH}
    v_mov_b32 v31, 1
    v_mov_b32 v30, s18
    s_mov_b64 exec, 1
    ds_add_u32 v30, v31
    s_mov_b64 exec, -1
    v_mov_b32 v30, {FLAG}
    """)
    for i in range(4):
        for x in pack(80, 96, i): a(x)
    a.stamp('gd')
    a(f"""
    s_mov_b32 s17, s3
    s_cmp_lt_u32 s3, 5
    s_cbranch_scc1 L_sw
    s_mov_b32 s16, 0
    s_sub_u32 s17, s3, 5
    """)
    consts(a, "L_c1", 30, PC2-FLAG)
    a("s_waitcnt vmcnt(0)")
    sig2(a, "L_sig2a", 30, PC3-FLAG)
    a.stamp('gdr')

def sig2(a, lab, flag, cntoff):
    a(f"""
    s_mov_b64 exec, 1
    ds_add_rtn_u32 v4, v{flag}, v31 offset:{cntoff}
    ds_read_b64 v[6:7], v{flag} offset:{cntoff+NONCE-PC3}
    s_lshl_b32 s18, s4, 9
    s_lshl_b32 s19, s5, 3
    s_add_u32 s18, s18, s19
    s_add_u32 s18, s18, {FL2}
    v_mov_b32 v3, 0
    s_waitcnt lgkmcnt(0)
    v_readfirstlane_b32 s19, v4
    s_cmp_lg_u32 s19, 12
    s_cbranch_scc1 {lab}
    buffer_store_dwordx2 v[6:7], v3, {R(SSEG)}, s18 offen sc1
{lab}:
    s_mov_b64 exec, -1
    """)

RK = 64
def segaddr(a):
    a(f"""
    v_lshrrev_b32 v2, 3, v1
    v_mul_u32_u24 v2, 24576, v2
    v_and_b32 v3, 7, v1
    v_lshl_add_u32 v2, v3, 4, v2
    s_mul_i32 s25, s17, {32*24576}
    s_mul_i32 s19, s5, 384
    s_add_u32 s25, s25, s19
    s_lshl_b32 s28, s17, 12
    v_mov_b32 v34, 1
    """)

def phase_s(a):
    segaddr(a)
    a(f"""
    v_and_b32 v78, {31 if 'dsp' in a.opt else 0}, v1
    v_lshlrev_b32 v78, 16, v78
    v_add_u32 v78, {(DUMMY << 16) | ZSLOT:#x}, v78
    v_lshl_add_u32 v80, s17, 6, v1
    s_movk_i32 s18, {BN}
    v_cmp_gt_u32 s[10:11], s18, v80
    v_lshlrev_b32 v64, 2, v80
    s_branch L_s1
L_sw:
    s_mov_b64 exec, -1
    s_mov_b32 s16, 1
    s_setprio 0
    """)
    segaddr(a)
    a(f"""
    v_mov_b32 v14, {PC3}
    s_add_u32 s31, s25, {1*8*24576}
    s_add_u32 s32, s25, {2*8*24576}
    s_add_u32 s33, s25, {3*8*24576}
    """)
    if a.HD and 'eh' in a.opt: spin(a, "L_hd", 14, XD0-PC3, "ge", a.HD)
    JD = ([int(o[1:]) for o in a.opt if o[:1] == 'J'] + [0])[0]
    if JD: spin(a, "L_jd", 14, XD1-PC3, "ge", JD)
    SQ = (25, 31, 32, 33)
    def sdl(q): a(f"buffer_load_dwordx4 v[{SD+4*q}:{SD+4*q+3}], v2, {R(SSEG)}, s{SQ[q]} offen offset:256 sc1{' nt' if 'snt' in a.opt else ''}")
    for q in range(4): sdl(q)
    a.stamp('sdi')
    consts(a, "L_c2", 14, PC2-PC3)
    a(f"""
L_nw:
    ds_read_b64 v[46:47], v14 offset:{NONCE-PC3}
    s_waitcnt lgkmcnt(0)
    v_readfirstlane_b32 s18, v47
    s_cmp_lg_u32 s18, 0
    s_cbranch_scc1 L_nwd
    s_sleep 1
    s_branch L_nw
L_nwd:
    """)
    tags(a)
    a(f"""
    v_mov_b32 v26, 0
    v_mov_b32 v3, 0
    v_lshlrev_b32 v38, 4, v1
    s_lshl_b32 s22, s17, 20
    s_lshl_b32 s27, s5, 9
    s_add_u32 s22, s22, s27
    s_add_u32 s22, s22, {OVF}
    s_mov_b64 s[6:7], -1
    s_mov_b64 s[8:9], -1
    s_mov_b64 s[10:11], -1
    s_mov_b64 s[12:13], -1
    s_mov_b32 s26, 0x0f0f0f0f
    s_mov_b32 s27, s26
    s_movk_i32 s21, {RETRY}
    s_mov_b32 s23, {TAGM:#x}
    s_cmp_ge_u32 s3, 5
    s_cbranch_scc1 L_sig2b
    s_waitcnt vmcnt(4)
    """)
    sig2(a, "L_sig2b", 14, 0)
    for j in range(0, 16, 2): a(f"v_mov_b64 v[{RK+j}:{RK+j+1}], 0")
    a(f"""
L_sv1:
    s_mov_b32 s20, 0
    s_waitcnt vmcnt(0)
    """)
    for q in range(4):
        d = SD + 4*q
        a(f"""
        s_and_b64 exec, s[{6+2*q}:{7+2*q}], s[{6+2*q}:{7+2*q}]
        s_cbranch_scc0 L_sq{q}
        v_xor_b32 v{d}, v{d}, v40
        v_xor_b32 v{d+1}, v{d+1}, v41
        v_xor_b32 v{d+2}, v{d+2}, v42
        v_xor_b32 v{d+3}, v{d+3}, v43
        v_and_b32 v45, v{d}, v44
        v_or3_b32 v46, v{d+1}, v{d+2}, v{d+3}
        v_and_or_b32 v45, v46, s23, v45
        v_cmp_ne_u32 vcc, 0, v45
        s_wqm_b64 s[{6+2*q}:{7+2*q}], vcc
        s_cbranch_scc0 L_sq{q}
        s_lshr_b64 s[14:15], s[{6+2*q}:{7+2*q}], 4
        s_or_b64 s[{6+2*q}:{7+2*q}], s[{6+2*q}:{7+2*q}], s[14:15]
        s_and_b64 s[{6+2*q}:{7+2*q}], s[{6+2*q}:{7+2*q}], s[26:27]
        s_lshl_b64 s[14:15], s[{6+2*q}:{7+2*q}], 4
        s_or_b64 s[{6+2*q}:{7+2*q}], s[{6+2*q}:{7+2*q}], s[14:15]
        s_mov_b64 exec, s[{6+2*q}:{7+2*q}]
        s_mov_b32 s20, 1
        """)
        sdl(q)
        a(f"L_sq{q}:")
    a(f"""
    s_mov_b64 exec, -1
    s_cmp_eq_u32 s20, 0
    s_cbranch_scc1 L_svd
    s_sub_u32 s21, s21, 1
    s_cbranch_scc0 L_sv1
    s_waitcnt vmcnt(0)
    v_mov_b32 v39, {FLAG}
    ds_or_b32 v39, v34
    """)
    for j in range(16): a(f"v_mov_b32 v{SD+j}, {MARK:#x}")
    a(f"""
L_svd:
    """)
    a.stamp('s_sd')
    a("v_bfe_u32 v45, v52, 11, 5\nv_bfe_u32 v46, v56, 11, 5\nv_bfe_u32 v47, v60, 11, 5\nv_bfe_u32 v36, v48, 11, 5")
    for q in range(1, 4):
        a(f"v_mov_b32_dpp v{44+q}, v{44+q} row_shr:{q} row_mask:0xf bank_mask:0xf bound_ctrl:0")
    a("v_or_b32 v36, v36, v45\nv_or3_b32 v36, v36, v46, v47")
    a(f"""
    v_or3_b32 v45, v48, v52, v56
    v_or_b32 v45, v45, v60
    v_cmp_ne_u32 s[14:15], 0, v36
    v_and_b32 v45, 1, v45
    v_mov_b32 v39, {FLAG}
    v_mov_b32 v28, 0
    v_mov_b32 v29, 0
    v_mov_b32 v30, {MARK:#x}
    s_mov_b32 s24, 0
    v_cmpx_ne_u32 vcc, 0, v45
    ds_or_b32 v39, v34
    """)
    def ranks(q):
        for j in range(4*q, 4*q+4):
            a(f"""
            v_and_b32 v{80+j}, 0x7fc, v{SD+j}
            v_cmpx_le_i32 vcc, 0, v{SD+j}
            ds_add_rtn_u32 v{RK+j}, v{80+j}, v34 offset:{CNT}
            s_mov_b64 exec, -1
            """)
    a(f"""
    s_cbranch_vccnz L_ovd
L_ov:
    s_cmp_eq_u64 s[14:15], 0
    s_cbranch_scc1 L_ovd
    s_ff1_i32_b64 s23, s[14:15]
    s_bitset0_b64 s[14:15], s23
    v_readlane_b32 s26, v36, s23
    s_and_b32 s27, s23, 7
    s_lshl_b32 s27, s27, 18
    s_lshr_b32 s23, s23, 3
    s_lshl_b32 s23, s23, 15
    s_add_u32 s23, s23, s27
    s_add_u32 s23, s23, s22
    s_lshl_b32 s27, s24, 4
    s_sub_u32 s23, s23, s27
    s_bfm_b64 exec, s26, s24
    s_add_u32 s24, s24, s26
    s_cmp_gt_u32 s24, 63
    s_cbranch_scc1 L_ovbad
    buffer_load_dwordx4 v[28:31], v38, {R(SSEG)}, s23 offen sc1
    s_branch L_ov
L_ovbad:
    s_mov_b64 exec, 1
    ds_or_b32 v39, v34
L_ovd:
    s_mov_b64 exec, -1
    """)
    a.stamp('s_ov')
    def ead(base, go, i):
        if i % 2 == 0: a(f"s_add_u32 m0, s28, {base}")
        a(f"s_add_u32 s19, s25, {i*8*24576 - i*1024 + go}\nbuffer_load_dwordx4 v2, {R(SSEG)}, s19 offen offset:{i*1024} sc1 lds")
    if 'eafirst' not in a.opt:
        for q in range(4): ranks(q)
    EQ = [(EALO, 0, i) for i in range(4)] + [(EAHI, 128, i) for i in range(4)]
    AL = ([o[1:] for o in a.opt if o[:1] == 'A'] + ['4220'])[0]
    def eaq(n):
        for _ in range(n):
            b, g, i = EQ.pop(0)
            a(f"s_add_u32 m0, s28, {b}\ns_add_u32 s19, s25, {i*8*24576 - i*1024 + g}\nbuffer_load_dwordx4 v2, {R(SSEG)}, s19 offen offset:{i*1024} sc1{' nt' if 'ent' in a.opt else ''} lds")
    nea = int(AL[0])
    if nea: spin(a, "L_e5", 14, XD0-PC3, "ge", 5)
    eaq(nea)
    if 'eapre' in a.opt:
        spin(a, "L_e9", 14, XD1-PC3, "ge", 4)
        for i in range(4): ead(EAHI, 128, i)
        nea = 8
    a.stamp('s_ea')
    if 'eafirst' in a.opt:
        for q in range(4): ranks(q)
    a(f"""
    v_lshlrev_b32 v37, 2, v1
    s_lshl_b32 s18, s17, 8
    s_add_u32 s18, s18, 32768
    v_add_u32 v37, s18, v37
    s_mov_b32 s18, 0xffff0000
    v_lshl_add_u32 v36, v1, 4, s28
    """)
    for j in range(16):
        off = (j >> 2) * 1024 + (j & 3) * 4
        if off:
            a(f"v_add_u32 v38, {off}, v36\nv_and_or_b32 v{SD+j}, v{SD+j}, s18, v38")
        else:
            a(f"v_and_or_b32 v{SD+j}, v{SD+j}, s18, v36")
    a(f"""
    s_waitcnt vmcnt({nea})
    v_and_b32 v27, 0x7fc, v30
    v_cmpx_le_i32 vcc, 0, v30
    ds_add_rtn_u32 v26, v27, v34 offset:{CNT}
    s_mov_b64 exec, -1
    v_and_or_b32 v30, v30, s18, v37
    """)
    a(f"""
L_s1:
    v_lshlrev_b32 v35, 2, v1
    s_lshl_b32 s35, s16, 3
    s_or_b32 s35, s35, s17
    s_cmp_eq_u32 s3, 12
    s_cselect_b32 s26, 0xff, -1
    s_cselect_b32 s27, 0xff, -1
    s_waitcnt lgkmcnt(0)
    """)
    a.stamp('s_pb')
    a("s_barrier")
    a.stamp('s1')
    def auw():
        a("s_mov_b64 exec, s[26:27]")
        for i in range(4): a(f"ds_write_b128 v10, v[{96+4*i}:{99+4*i}] offset:{i*2*AUS}")
        a("s_mov_b64 exec, -1")
    a(f"""
    s_cmp_eq_u32 s16, 1
    s_cbranch_scc1 L_s2e
    ds_read_b32 v66, v64 offset:{CNT}
    """)
    if 'eapre' not in a.opt and 'eas' not in a.opt:
        for i in range(4): ead(EAHI, 128, i)
    a(f"""
    s_waitcnt lgkmcnt(0)
    v_min_u32 v67, 63, v66
    v_sub_u32 v67, 63, v67
    v_lshlrev_b32 v67, 2, v67
    s_mov_b64 exec, s[10:11]
    ds_add_rtn_u32 v68, v67, v34 offset:{HIST}
    """)
    if 'aus' in a.opt: a("s_mov_b64 exec, -1\ns_waitcnt lgkmcnt(0)\ns_barrier\ns_cmp_eq_u32 s3, 12\ns_cbranch_scc1 L_s2g\ns_branch L_s2d")
    else: auw()
    a(f"""
    s_waitcnt lgkmcnt(4)
    s_barrier
    s_branch L_s2d
L_s2e:
    """)
    eaq(int(AL[1]))
    a(f"""
    s_barrier
    """)
    eaq(int(AL[2]))
    def tpf(sb):
        a(f"""
        s_mul_i32 s18, s{sb}, {BN*128}
        s_mul_i32 s19, s17, {98*64}
        s_add_u32 s18, s18, s19
        s_add_u32 s19, s18, 4096
        v_lshlrev_b32 v5, 6, v1
        buffer_load_dword v127, v5, {R(STABW)}, s18 offen sc1
        s_mov_b32 exec_hi, 3
        buffer_load_dword v127, v5, {R(STABW)}, s19 offen sc1
        s_mov_b32 exec_hi, -1
        """)
    if 'pf4' in a.opt: a(f"""
    s_xor_b32 s29, s5, 32
    s_lshl_b32 s18, s4, 9
    s_lshl_b32 s19, s29, 3
    s_add_u32 s18, s18, s19
    s_add_u32 s18, s18, {FL2}
    v_mov_b32 v3, 0
    ds_read_b64 v[8:9], v14 offset:{NONCE-PC3}
    buffer_load_dwordx2 v[12:13], v3, {R(SSEG)}, s18 offen sc1
    """)
    if 'pf3' in a.opt: tpf(5)
    a(f"""
    ds_write2st64_b32 v37, v28, v29 offset0:{EALO//256} offset1:{EAHI//256}
    s_cmp_ge_u32 s3, 13
    s_cbranch_scc1 L_s2f
L_s2g:
    """)
    auw()
    a(f"""
L_s2f:
L_s2d:
    """)
    a.stamp('s2')
    a(f"""
    s_cmp_gt_u32 s35, 6
    s_cbranch_scc1 L_s3d
    ds_read_b32 v69, v35 offset:{HIST}
    s_waitcnt lgkmcnt(0)
    v_mov_b32 v70, v69
    """)
    if 'aus' in a.opt: auw()
    a.scan(70)
    a(f"""
    v_sub_u32 v70, v70, v69
    ds_bpermute_b32 v70, v67, v70
    v_max_u32 v65, 2, v66
    s_waitcnt lgkmcnt(0)
    v_add_u32 v70, v70, v68
    v_and_b32 v71, 7, v70
    """)
    if a.tb: a(f"""
    v_lshrrev_b32 v72, 1, v70
    ds_bpermute_b32 v72, v72, v14
    v_lshlrev_b32 v73, 3, v71
    s_waitcnt lgkmcnt(0)
    v_lshlrev_b32 v74, 2, v72
    v_and_b32 v75, 3, v72
    v_lshl_add_u32 v73, v75, 1, v73
    v_and_b32 v72, 60, v72
    v_lshl_add_u32 v73, v72, 4, v73
    """)
    else: a(f"""
    v_lshrrev_b32 v72, 7, v70
    v_bfe_u32 v73, v70, 3, 4
    v_bfe_i32 v74, v70, 7, 1
    v_and_b32 v74, 15, v74
    v_xor_b32 v73, v73, v74
    v_lshl_add_u32 v74, v73, 2, v72
    v_lshlrev_b32 v74, 2, v74
    v_lshl_add_u32 v73, v73, 3, v71
    v_lshlrev_b32 v73, 3, v73
    v_lshl_add_u32 v73, v72, 1, v73
    """)
    a(f"""
    s_mov_b64 exec, s[10:11]
    ds_max_u32 v74, v65 offset:{LEN}
    ds_write_b16 v73, v80 offset:{PERM}
    s_mov_b64 exec, -1
L_s3d:
    s_waitcnt lgkmcnt(0)
    s_barrier
    """)
    a(f"""
    ds_read_b32 v40, v35 offset:{LEN}
    v_mov_b32 v42, {FLAG}
    ds_read_b32 v42, v42
    s_lshl_b32 s18, s3, 2
    s_add_u32 s19, s18, 1
    s_add_u32 s20, s18, 2
    s_add_u32 s21, s18, 3
    s_waitcnt lgkmcnt(0)
    v_mov_b32 v41, v40
    v_readfirstlane_b32 s22, v42
    """)
    a.scan(41)
    a(f"""
    s_nop 0
    v_readlane_b32 s23, v41, 63
    v_sub_u32 v41, v41, v40
    v_readlane_b32 s30, v40, s18
    v_readlane_b32 s31, v40, s19
    v_readlane_b32 s32, v40, s20
    v_readlane_b32 s33, v40, s21
    v_readlane_b32 s34, v41, s18
    s_cmp_gt_u32 s23, {ROWCAP}
    s_cselect_b32 s22, 1, s22
    s_cmp_lg_u32 s22, 0
    s_cbranch_scc1 L_slow
    """)
    if a.force_slow: a("s_branch L_slow")
    a(f"""
    s_cmp_gt_u32 s35, 6
    s_cbranch_scc1 L_s4e
    ds_bpermute_b32 v70, v74, v41
    ds_bpermute_b32 v75, v74, v40
    v_lshlrev_b32 v71, 2, v71
    v_add_u32 v71, {ELL}, v71
    v_mov_b32 v72, {CNT+0x7fc}
    v_mov_b32 v73, {TRASH}
    ds_write_b32 v72, v73
    s_waitcnt lgkmcnt(0)
    v_lshl_add_u32 v70, v70, 5, v71
    s_mov_b64 exec, s[10:11]
    ds_write_b32 v64, v70 offset:{CNT}
    s_mov_b64 exec, -1
    s_branch L_s4d
L_s4e:
    """)
    if int(AL[3]):
        a("s_cmp_lg_u32 s16, 1\ns_cbranch_scc1 L_s4d")
        eaq(int(AL[3]))
    a(f"""
L_s4d:
    s_waitcnt lgkmcnt(0)
    s_barrier
    """)
    a.stamp('s4')
    a(f"""
    s_cmp_eq_u32 s16, 1
    s_cbranch_scc1 L_s5
    """)
    if 'ep2' in a.opt: poll2i(a, "a")
    a(f"""
    v_lshl_add_u32 v76, v66, 5, v70
    v_lshl_add_u32 v77, v75, 5, v70
    s_mov_b64 exec, s[10:11]
L_pad:
    v_cmpx_lt_u32 vcc, v76, v77
    s_cbranch_execz L_padd
    ds_write_b32 v76, v78
    v_add_u32 v76, 32, v76
    s_branch L_pad
L_padd:
    s_mov_b64 exec, -1
    """)
    if 'pfo2' in a.opt: a(f"""
    s_mul_i32 s18, s5, {BN*128}
    s_mul_i32 s19, s17, {98*64}
    s_add_u32 s18, s18, s19
    s_add_u32 s19, s18, 4096
    v_lshlrev_b32 v5, 6, v1
    buffer_load_dword v127, v5, {R(STABW)}, s18 offen sc1
    s_mov_b32 exec_hi, 3
    buffer_load_dword v127, v5, {R(STABW)}, s19 offen sc1
    s_mov_b32 exec_hi, -1
    """)
    a(f"""
    s_branch L_s5d
L_s5:
    """)
    if 'pf4' in a.opt:
        a("s_waitcnt vmcnt(2)\nv_cmp_ne_u64 vcc, v[8:9], v[12:13]\ns_cbranch_vccnz L_s5n")
        tpf(29)
        a("L_s5n:")
    for h in range(2):
        for j in range(8*h, 8*h+8): a(f"ds_read_b32 v{80+j}, v{80+j} offset:{CNT}")
        eaq(len(EQ))
        if h == 1: a(f"ds_read_b32 v27, v27 offset:{CNT}")
        for j in range(8*h, 8*h+8):
            a(f"s_waitcnt lgkmcnt({7+h})\nv_lshl_add_u32 v{80+j}, v{RK+j}, 5, v{80+j}\nds_write_b32 v{80+j}, v{SD+j}")
    a(f"""
    s_waitcnt lgkmcnt(8)
    v_lshl_add_u32 v27, v26, 5, v27
    ds_write_b32 v27, v30
L_s5d:
    """)
    msetup(a)
    xy = 0 if 'xlate' in a.opt else 1
    poll2(a, "a", xy if 'ep2' in a.opt else None)
    if 'pf4' in a.opt: a("s_waitcnt lgkmcnt(0)")
    else: a(f"s_cmp_lg_u32 s16, 1\ns_cbranch_scc1 L_s5w\ns_waitcnt vmcnt({xy + (2 if 'pf3' in a.opt else 0)})\nL_s5w:\ns_waitcnt lgkmcnt(0)")
    sel(a, AP, UR, CK if a.pair else 0)
    a.stamp('s5p')
    a("s_barrier")

def consts(a, lab, va, off):
    spin(a, lab, va, off, 'ge', 2, 84)
    a(f"""
    v_and_b32 v92, 7, v1
    v_lshrrev_b32 v93, 4, v1
    v_lshl_add_u32 v88, v92, 2, v93
    v_lshlrev_b32 v88, 1, v88
    ds_read_u16 v84, v88 offset:{WCL}
    ds_read_u16 v85, v88 offset:{WCL+64}
    ds_read_u16 v86, v88 offset:{WCL+128}
    ds_read_u16 v87, v88 offset:{WCL+192}
    v_bfe_u32 v94, v1, 2, 2
    v_and_b32 v95, 3, v1
    v_cmp_eq_u32 s[36:37], v93, v95
    v_mul_u32_u24 v{CAU}, {AUS}, v92
    v_add_u32 v{CAU}, {AU}, v{CAU}
    s_mul_i32 s18, s5, {BN*256}
    s_lshl_b32 s19, s4, 6
    s_add_u32 s18, s18, s19
    v_lshl_add_u32 v{COUT}, v92, 3, s18
    v_cmp_eq_u32 vcc, v94, v93
    v_mov_b32 v89, 0x3f80
    v_mov_b32 v90, 4
    {'v_mov_b32 v90, v95' if 'f4' in a.opt else 'v_cndmask_b32 v90, v90, v95, vcc'}
    v_cmp_eq_u32 s[18:19], 0, v90
    v_cmp_eq_u32 s[20:21], 1, v90
    v_cmp_eq_u32 vcc, 2, v90
    v_cndmask_b32 v{SEL}, 0, v89, s[18:19]
    v_cmp_eq_u32 s[18:19], 3, v90
    v_cndmask_b32 v{SEL+1}, 0, v89, s[20:21]
    v_cndmask_b32 v{SEL+2}, 0, v89, vcc
    v_cndmask_b32 v{SEL+3}, 0, v89, s[18:19]
    ; identity for 4x4x4: lane i=l&3 holds row i
    v_cmp_gt_u32 vcc, 2, v95
    v_and_b32 v91, 1, v95
    v_lshlrev_b32 v91, 4, v91
    v_lshlrev_b32 v91, v91, v89
    v_cndmask_b32 v{IDM}, 0, v91, vcc
    v_xor_b32 v{IDM+1}, v{IDM}, v91
    s_mov_b32 s20, {NLOG2E:#x}
    s_mov_b32 s21, {NLOG2E:#x}
    v_and_b32 v88, 8, v1
    v_cmp_eq_u32 vcc, 0, v88
    s_waitcnt lgkmcnt(0)
    v_lshlrev_b32 v84, 16, v84
    v_lshlrev_b32 v85, 16, v85
    v_lshlrev_b32 v86, 16, v86
    v_lshlrev_b32 v87, 16, v87
    v_pk_mul_f32 v[84:85], v[84:85], s[20:21]
    v_pk_mul_f32 v[86:87], v[86:87], s[20:21]
    v_cvt_pk_bf16_f32 v84, v84, v85
    v_cvt_pk_bf16_f32 v85, v86, v87
    v_cndmask_b32 v{WC+0}, 0, v84, vcc
    v_cndmask_b32 v{WC+1}, 0, v85, vcc
    v_xor_b32 v{WC+2}, v{WC+0}, v84
    v_xor_b32 v{WC+3}, v{WC+1}, v85
    """)

def msetup(a):
    D = a.D
    eps = f2u(1e-6 * 2.0**KS) if a.pair else EPS
    if a.ch: eps = f2u(1e-6 * 2.0**(KC-SC))
    a(f"""
    v_lshrrev_b32 v2, 3, v1
    s_lshl_b32 s19, s3, 6
    v_lshl_add_u32 v7, v2, 3, s19
    ds_read_b64 {v2(IDS)}, v7 offset:{PERM}
    v_bfe_u32 v4, v1, 2, 2
    v_and_b32 v3, 7, v1
    v_lshlrev_b32 v{IDX+1}, 4, v3
    v_lshlrev_b32 v{IDX+3}, 4, v3
    s_lshl_b32 s18, s34, 5
    s_add_u32 s18, s18, {ELL}
    s_add_u32 s19, s18, 2
    v_lshl_add_u32 v{PTR}, v2, 2, s19
    v_lshl_add_u32 v{PTR+1}, v4, 3, s18
    s_movk_i32 s35, 256
    s_movk_i32 s38, {D*32}
    s_movk_i32 s39, {D*32}
    s_mov_b32 s28, {eps:#x}
    s_mov_b32 s29, {eps:#x}
    s_sub_u32 s24, s30, 2
    """)
    if a.ch:
        a(f"s_mov_b32 s26, {f2u(2.0**SC):#x}\ns_mov_b32 s27, {f2u(2.0**(SC-KC)):#x}\ns_mov_b32 s20, {f2u(-float(KC)):#x}\ns_mov_b32 s21, s20")
    elif a.pair:
        a(f"s_mov_b32 s26, {f2u(2.0**-KS):#x}\ns_mov_b32 s27, s26\ns_mov_b32 s20, {f2u(-float(KS)):#x}\ns_mov_b32 s21, s20")
    a(f"""
    s_waitcnt lgkmcnt(0)
    v_mad_u32_u16 v{VOUT}, v{IDS}, s35, v{COUT}
    v_mad_u32_u16 v{VAU}, v{IDS}, 16, v{CAU}
    {'s_mov_b32 s22, 0' if 'xlate' in a.opt else xrl(a)}
    ds_read_b128 {v4(UR)}, v{VAU}
    v_mad_u32_u16 v{VAU}, v{IDS}, 16, v{CAU} op_sel:[1,0,0,0]
    ds_read_b128 {v4(AUN)}, v{VAU}
    v_mov_b64 {v2(EA0)}, 0
    v_mov_b64 {v2(EA0+2)}, 0
    v_mov_b64 {v2(EA0+4)}, 0
    v_mov_b64 {v2(EA0+6)}, 0
    v_mov_b64 {v2(DEN)}, s[28:29]
    v_mov_b64 {v2(DEN+2)}, s[28:29]
    v_mov_b64 {v2(NUM)}, 0
    v_mov_b64 {v2(NUM+2)}, 0
    """)
    if a.pair: a(f"v_mov_b64 {v2(CK)}, s[20:21]\nv_mov_b64 {v2(CK+2)}, s[20:21]")

def poll2i(a, sfx):
    a(f"""
    s_cmp_lg_u32 s3, 12
    s_cbranch_scc1 L_ni2{sfx}
    v_lshlrev_b32 v20, 3, v1
    s_lshl_b32 s12, s4, 9
    s_add_u32 s12, s12, {FL2}
    buffer_load_dwordx2 v[22:23], v20, {R(SSEG)}, s12 offen sc1
    v_mov_b32 v18, {NONCE}
    ds_read_b64 v[18:19], v18
    s_mov_b32 s13, 0x40000
L_ni2{sfx}:
    """)

def poll2(a, sfx, younger=None):
    if younger is None: poll2i(a, sfx)
    a(f"""
    s_cmp_lg_u32 s3, 12
    s_cbranch_scc1 L_np2{sfx}
    v_lshlrev_b32 v20, 3, v1
    s_waitcnt vmcnt({younger or 0}) lgkmcnt(0)
L_poll2{sfx}:
    v_cmpx_ne_u64 vcc, v[18:19], v[22:23]
    s_sub_u32 s13, s13, 1
    s_cbranch_scc1 L_poll2d{sfx}
    s_cbranch_vccz L_poll2d{sfx}
    s_sleep 1
    buffer_load_dwordx2 v[22:23], v20, {R(SSEG)}, s12 offen sc1
    s_waitcnt vmcnt(0)
    s_branch L_poll2{sfx}
L_poll2d{sfx}:
    s_mov_b64 exec, -1
L_np2{sfx}:
    """)

DEN, NUM, AP, T0, EA0, UR, AUN, GR, WC, SEL, IDM, XR = 28, 32, 36, 40, 48, 56, 60, 64, 112, 116, 120, 96
A1, PP, NN, T3, CK = 8, 12, 16, 20, 24
IDX, EAD, PTR, IDS, VAU, VOUT, CAU, COUT, OT = 98, 102, 104, 106, 108, 109, 122, 123, 12
def v4(r): return f"v[{r}:{r+3}]"
def v2(r): return f"v[{r}:{r+1}]"
EAOFF = f"offset0:{EALO//256} offset1:{EAHI//256}"

def xrl(a): return ("; " if 'noxr' in a.opt else "") + f"buffer_load_dwordx2 {v2(XR)}, v{VOUT}, {R(SX)}, 0 offen" + (' nt' if 'xnt' in a.opt else '')

def TB(a, j):
    if a.ch: return T0 + 4*(j & 1)
    return (T0, T0+4, A1, T3)[j & 3] if a.pair else T0 + 4*(j & 1)

def mm(d, x, y, c): return f"v_mfma_f32_16x16x32_bf16 {v4(d)}, {v4(x)}, {v4(y)}, {v4(c) if c else 0}"

def m4(d, h, y, c): return f"v_mfma_f32_4x4x4_16b_bf16 {v4(d)}, {v2(SEL+2*h)}, {v2(y+2*h)}, {v4(c) if c else 0}"
def sel(a, d, y, c):
    if 'f4' in a.opt: a(m4(d, 0, y, c) + "\ns_nop 1\n" + m4(d, 1, y, d))
    else: a(mm(d, SEL, y, c))

def tblock(a, k):
    D = a.D; cl = " clamp" if a.pair else ""
    T = TB(a, k); Tn = TB(a, k+1)
    if 'f4' in a.opt:
        G1 = GR + 4*((k+1) % D)
        a(f"""
        {mm(Tn, EA0 + 4*((k+1) & 1), WC, AP)}
        v_exp_f32 v{T}, v{T}{cl}
        {m4(Tn, 0, G1, Tn)}
        v_exp_f32 v{T+1}, v{T+1}{cl}
        v_exp_f32 v{T+2}, v{T+2}{cl}
        {m4(Tn, 1, G1, Tn)}
        v_exp_f32 v{T+3}, v{T+3}{cl}
        """)
        return
    a(f"""
    {mm(Tn, EA0 + 4*((k+1) & 1), WC, AP)}
    v_exp_f32 v{T}, v{T}{cl}
    {mm(Tn, SEL, GR + 4*((k+1) % D), Tn)}
    v_exp_f32 v{T+1}, v{T+1}{cl}
    v_exp_f32 v{T+2}, v{T+2}{cl}
    v_exp_f32 v{T+3}, v{T+3}{cl}
    """)

def unit(a, k, kind, sw):
    D = a.D; lag = 2 if a.pair else 1; NL = D - lag
    T = TB(a, k); Tp = TB(a, k-1)
    EAw = EA0 + 4*((k+1) & 1)
    Gc = GR + 4*k; Gl = GR + 4*((k-lag) % D); Gp = GR + 4*((k-1) % D)
    Iu = IDX + 2*((k+1) & 1); Iw = IDX + 2*(k & 1)
    one = "s[26:27]" if a.pair else "1.0 op_sel_hi:[1,0]"
    def pk(op, d, x, y, z=None):
        for h in (0, 2):
            a(f"v_pk_{op}_f32 {v2(d+h)}, {v2(x+h)}, " + (v2(y+h) if isinstance(y, int) else y) + (f", {v2(z+h)}" if z is not None else ""))
    def rcp(r):
        for i in range(4): a(f"v_rcp_f32 v{r+i}, v{r+i}")
    a("s_waitcnt lgkmcnt(0)")
    if sw: sel(a, AP, AUN, CK if a.pair else 0)
    a(f"""
    {"; " if 'xl' in a.opt else ""}buffer_load_dwordx4 {v4(Gl)}, {v2(Iu)}, {R(STAB)}, 0 idxen offen sc1
    s_mov_b64 exec, s[36:37]
    ds_read2st64_b32 {v2(EAw)}, v{EAD} {EAOFF}
    ds_read2st64_b32 {v2(EAw+2)}, v{EAD+1} {EAOFF}
    ds_read_u16 v{EAD}, v{PTR+1} offset:{(k+4)*32}
    ds_read_u16 v{EAD+1}, v{PTR+1} offset:{(k+4)*32+4}
    s_mov_b64 exec, -1
    ds_read_u16 v{Iw}, v{PTR} offset:{(k+NL+1)*32}
    s_waitcnt vmcnt({NL-2})
    """)
    if sw and 'xlate' in a.opt: a(f"s_cmp_lg_u32 s22, 0\ns_cbranch_scc1 L_xl{kind}{k}\n{xrl(a)}\nL_xl{kind}{k}:")
    if k == D-1: a(f"v_lshl_add_u64 {v2(PTR)}, {v2(PTR)}, 0, s[38:39]")
    if a.ch:
        P, Nn, Dn, Q = PP, NN, A1, T3
        def av(d):
            for h in (0, 2): a(f"v_pk_fma_f32 {v2(d+h)}, {v2(T+h)}, s[26:27], s[26:27] op_sel:[0,0,1] op_sel_hi:[1,0,1]")
        def f1(d, x):
            for h in (0, 2): a(f"v_pk_fma_f32 {v2(d+h)}, {v2(d+h)}, {v2(x+h)}, 1.0 op_sel_hi:[1,1,0]")
        m, p = kind[0], int(kind[1])
        if m == 'l':
            av(T)
            if p == 0: f1(DEN, T); pk('fma', NUM, NUM, T, Gc)
            else: pk('mul', NUM, NUM, T); pk('fma', DEN, DEN, T, P); pk('fma', NUM, Gc, P, NUM)
            return
        if p == 0:
            av(P)
            if m == 'p': f1(DEN, P); pk('fma', NUM, NUM, P, Gc)
        elif p == 1:
            av(T); pk('mul', Nn, T, Gp); pk('add', Dn, P, T); pk('fma', Nn, P, Gc, Nn); pk('mul', P, P, T)
        elif p == 2:
            av(T); pk('mul', Nn, Nn, T); pk('fma', Dn, Dn, T, P); pk('fma', Nn, Gc, P, Nn); pk('mul', P, P, T)
        else:
            av(T); pk('mul', Q, P, T); rcp(Q)
            pk('mul', Nn, Nn, T); pk('fma', Dn, Dn, T, P); pk('fma', Nn, Gc, P, Nn)
            pk('fma', DEN, Dn, Q, DEN); pk('fma', NUM, Nn, Q, NUM)
        if m == 'p' and p in (1, 2):
            pk('fma', DEN, DEN, P, Dn); pk('fma', NUM, NUM, P, Nn)
        return
    if kind == 'U':
        pk('add', T, T, one); rcp(T); pk('add', DEN, DEN, T); pk('fma', NUM, T, Gc, NUM)
    elif kind == 'S':
        pk('add', Tp, Tp, one); pk('add', T, T, one); pk('mul', PP, Tp, T); rcp(PP)
        pk('mul', NN, T, Gp); pk('add', T, T, Tp); pk('fma', NN, Tp, Gc, NN)
        pk('fma', DEN, T, PP, DEN); pk('fma', NUM, NN, PP, NUM)

def phase_m(a):
    D = a.D; lag = 2 if a.pair else 1; NL = D - lag
    a.stamp(9)
    if a.prof:
        a("v_mov_b32 v126, v15\ns_memtime s[86:87]\ns_waitcnt lgkmcnt(0)\ns_sub_u32 s92, s86, s92\nv_writelane_b32 v126, s92, 30"); a.sreg = 126
    if 'prio' in a.opt: a("s_setprio 3\ns_mov_b32 s23, 3")
    if 'em0' in a.opt:
        if 'map2' in a.opt: a(f"""
        s_and_b32 s18, s4, 1
        s_mul_i32 s18, s18, {TABSL - 37*128}
        s_bfe_u32 s94, s2, 0x10001
        s_mul_i32 s19, s94, {TABSL}
        s_sub_u32 s18, s19, s18
        s_ashr_i32 s19, s18, 31
        s_add_u32 s{STAB}, s{STAB}, s18
        s_addc_u32 s{STAB+1}, s{STAB+1}, s19
        s_add_u32 s{STABW}, s{STABW}, s18
        s_addc_u32 s{STABW+1}, s{STABW+1}, s19
        """)
        else: a("s_and_b32 s94, s4, 1")
        a(f"s_cmp_eq_u32 s94, 0\ns_mov_b32 s95, {-TABSL}\ns_cselect_b32 s94, {TABSL}, s95\ns_ashr_i32 s95, s94, 31")
    if 'emu' in a.opt: a(f"""
    s_and_b32 s18, s4, 1
    s_mul_i32 s18, s18, {TABSL - 37*128}
    s_sub_u32 s{STAB}, s{STAB}, s18
    s_subb_u32 s{STAB+1}, s{STAB+1}, 0
    s_sub_u32 s{STABW}, s{STABW}, s18
    s_subb_u32 s{STABW+1}, s{STABW+1}, 0
    """)
    for q in range(NL): a(f"ds_read_u16 v{8+q}, v{PTR} offset:{q*32}")
    a(f"""
    ds_read_u16 v16, v{PTR+1}
    ds_read_u16 v17, v{PTR+1} offset:4
    ds_read_u16 v18, v{PTR+1} offset:32
    ds_read_u16 v19, v{PTR+1} offset:36
    ds_read_u16 v{IDX+2}, v{PTR} offset:{NL*32}
    """)
    for q in range(NL):
        a(f"s_waitcnt lgkmcnt({NL-1-q+5})\nv_lshl_add_u32 v{8+q}, v{8+q}, 7, v{IDX+1}\nbuffer_load_dwordx4 {v4(GR+4*q)}, v{8+q}, {R(STABW)}, 0 offen sc1")
        if q == 0: a(f"""
        s_waitcnt lgkmcnt(1)
        s_mov_b64 exec, s[36:37]
        ds_read2st64_b32 {v2(EA0)}, v16 {EAOFF}
        ds_read2st64_b32 {v2(EA0+2)}, v17 {EAOFF}
        ds_read2st64_b32 {v2(EA0+4)}, v18 {EAOFF}
        ds_read2st64_b32 {v2(EA0+6)}, v19 {EAOFF}
        ds_read_u16 v{EAD}, v{PTR+1} offset:64
        ds_read_u16 v{EAD+1}, v{PTR+1} offset:68
        s_mov_b64 exec, -1
        """)
    a(f"""
    s_waitcnt lgkmcnt(0)
    {mm(TB(a, 0), EA0, WC, AP)}
    s_waitcnt vmcnt({NL-1})
    s_nop 4
    """)
    sel(a, TB(a, 0), GR, TB(a, 0))
    a(f"""
    s_mov_b64 exec, s[36:37]
    ds_read2st64_b32 {v2(EA0)}, v{EAD} {EAOFF}
    ds_read2st64_b32 {v2(EA0+2)}, v{EAD+1} {EAOFF}
    ds_read_u16 v{EAD}, v{PTR+1} offset:96
    ds_read_u16 v{EAD+1}, v{PTR+1} offset:100
    s_mov_b64 exec, -1
    s_waitcnt vmcnt({NL-2})
    s_nop 1
    """)
    a.stamp(10)
    tblock(a, 0)
    if a.prof:
        a(f"s_mov_b32 s90, {len(a.names)}"); a.names += ['g1', 'g2', 'g3', 'g4']
    CS = list(range(0, 4, 4 // a.ch)) if a.ch else []
    for c in CS:
        for j in range(D):
            k = (j + c) % D
            a(f"L_m{c}_{k}:\ns_sub_u32 s24, s24, 1\ns_cbranch_scc1 L_b{c}_{k}")
            unit(a, k, f"n{j & 3}", False)
            tblock(a, k+1)
        a(f"s_branch L_m{c}_{c}")
    for c in (() if a.ch else (0, 1) if a.pair else (0,)):
        for j in range(D):
            k = (j + c) % D; kind = 'FS'[j & 1] if a.pair else 'U'
            lab = kind if a.pair else 'F'
            a(f"L_m{lab}{k}:\ns_sub_u32 s24, s24, 1\ns_cbranch_scc1 L_b{lab}{k}")
            unit(a, k, kind, False)
            tblock(a, k+1)
        a(f"s_branch L_mF{c}")
    for k0 in range(D):
      for kd in (CS if a.ch else 'FS' if a.pair else 'F'):
        k = (k0 + 1) % D
        OT = T3 if a.ch else 12
        if a.ch:
            a(f"L_b{kd}_{k0}:")
            unit(a, k0, f"p{(k0-kd) & 3}", True)
            tblock(a, k0+1)
            unit(a, k, f"l{(k0+1-kd) & 3}", False)
            if kd != CS[-1]:
                a(f"s_branch L_ep{k}"); continue
        else:
          a(f"L_b{kd}{k0}:")
          unit(a, k0, kd if a.pair else 'U', True)
          tblock(a, k0+1)
          unit(a, k, 'S' if a.pair and kd == 'F' else 'U', False)
          if a.pair and kd == 'F':
            a(f"s_branch L_ep{k}"); continue
        a(f"""
L_ep{k}:
        v_rcp_f32 v{DEN}, v{DEN}
        v_rcp_f32 v{DEN+1}, v{DEN+1}
        v_rcp_f32 v{DEN+2}, v{DEN+2}
        v_rcp_f32 v{DEN+3}, v{DEN+3}
        s_cmp_ge_u32 s{22 if 'xlate' in a.opt else 30}, {NL-2}
        s_cbranch_scc1 L_bx{k}
        s_waitcnt vmcnt(1)
L_bx{k}:
        v_pk_fma_f32 {v2(NUM)}, {v2(NUM)}, {v2(DEN)}, {v2(UR)}
        v_pk_fma_f32 {v2(NUM+2)}, {v2(NUM+2)}, {v2(DEN+2)}, {v2(UR+2)}
        ds_read_b128 {v4(UR)}, v{VAU}
        v_max_f32 v{NUM}, 0, v{NUM}
        v_max_f32 v{NUM+1}, 0, v{NUM+1}
        v_max_f32 v{NUM+2}, 0, v{NUM+2}
        v_max_f32 v{NUM+3}, 0, v{NUM+3}
        v_lshrrev_b64 {v2(IDS)}, 16, {v2(IDS)}
        v_mov_b64 {v2(DEN)}, s[28:29]
        v_mfma_f32_4x4x4_16b_bf16 {v4(OT)}, {v2(IDM)}, {v2(XR)}, {v4(NUM)}
        v_mov_b64 {v2(DEN+2)}, s[28:29]
        v_mad_u32_u16 v{VAU}, v{IDS}, 16, v{CAU} op_sel:[1,0,0,0]
        v_mov_b64 {v2(NUM)}, 0
        v_mov_b64 {v2(NUM+2)}, 0
        ds_read_b128 {v4(AUN)}, v{VAU}
        v_cvt_pk_bf16_f32 v{OT}, v{OT}, v{OT+1}
        v_cvt_pk_bf16_f32 v{OT+1}, v{OT+2}, v{OT+3}
        {f"s_cmp_eq_u32 s22, 0{chr(10)}s_cselect_b32 s18, {TABSL}, 0{chr(10)}s_add_u32 s{STAB}, s{STAB}, s18{chr(10)}s_addc_u32 s{STAB+1}, s{STAB+1}, 0" if 'emu' in a.opt else ''}
        {f"s_cmp_eq_u32 s22, 0{chr(10)}s_cselect_b64 s[18:19], s[94:95], 0{chr(10)}s_add_u32 s{STAB}, s{STAB}, s18{chr(10)}s_addc_u32 s{STAB+1}, s{STAB+1}, s19" if 'em0' in a.opt else ''}
        s_mov_b32 s30, s31
        {'s_mov_b32 s22, s31' if 'xlate' in a.opt else ''}
        s_mov_b32 s31, s32
        s_mov_b32 s32, s33
        s_mov_b32 s33, 0
        {f"s_cmp_lg_u32 s30, 0{chr(10)}s_cbranch_scc1 L_ns{k}" if 'nost' in a.opt else ''}
        buffer_store_dwordx2 {v2(OT)}, v{VOUT}, {R(SOUT)}, 0 offen{' sc1' if 'osc1' in a.opt and 'nosc' not in a.opt else ''}{' nt' if 'ont' in a.opt else ''}
L_ns{k}:
        """)
        if a.prof: a("s_memrealtime s[100:101]\ns_waitcnt lgkmcnt(0)\ns_add_u32 s90, s90, 1\ns_mov_b32 m0, s90\nv_writelane_b32 v126, s100, m0")
        a(f"""
        v_mad_u32_u16 v{VOUT}, v{IDS}, s35, v{COUT}
        s_sub_u32 s24, s30, 2
        s_cbranch_scc1 L_fin
        {xrl(a)}
        """)
        if 'p4' in a.opt: a(f"""
        s_cmp_lg_u32 s32, 0
        s_cbranch_scc1 L_pt{k}
        s_setprio 2
        s_cmp_lg_u32 s31, 0
        s_cbranch_scc1 L_pt{k}
        s_setprio 1
L_pt{k}:
        """)
        elif 'prio' in a.opt: a(f"""
        s_sub_u32 s23, s23, 1
        s_cmp_eq_u32 s23, 2
        s_cbranch_scc0 L_pr{k}
        s_setprio 2
L_pr{k}:
        s_cmp_eq_u32 s23, 1
        s_cbranch_scc0 L_ps{k}
        s_setprio 1
L_ps{k}:
        s_cmp_eq_u32 s23, 0
        s_cbranch_scc0 L_pt{k}
        s_setprio 0
L_pt{k}:
        """)
        if a.ch:
            p = ((k+1) & 3) % (4 // a.ch); c = ((k+1) & 3) - p
            if p == 1:
                a(f"v_mov_b32 v{PP}, {f2u(2.0**35):#x}\nv_mov_b32 v{PP+1}, v{PP}\nv_mov_b64 {v2(PP+2)}, {v2(PP)}\nv_mov_b64 {v2(GR+4*k)}, 0\nv_mov_b64 {v2(GR+4*k+2)}, 0")
            elif p > 1:
                a(f"v_mov_b32 v{PP}, 1.0\nv_mov_b32 v{PP+1}, 1.0\nv_mov_b64 {v2(PP+2)}, {v2(PP)}")
                for r in (NN, NN+2, A1, A1+2): a(f"v_mov_b64 {v2(r)}, 0")
            tblock(a, k+1)
            a(f"s_branch L_m{c}_{(k+1) % D}")
            continue
        tblock(a, k+1)
        a(f"s_branch L_mF{(k+1) % D}")

def slow(a):
    a(f"""
L_slow:
    s_waitcnt vmcnt(0) lgkmcnt(0)
    s_barrier
    v_mov_b64 v[4:5], 0
    v_mov_b64 v[6:7], 0
    v_lshlrev_b32 v2, 4, v0
    v_add_u32 v2, {ACC}, v2
    s_mov_b32 s18, 0
L_sz:
    v_cmp_gt_u32 vcc, {ACC+100352}, v2
    s_mov_b64 exec, vcc
    ds_write_b128 v2, v[4:7]
    s_mov_b64 exec, -1
    v_add_u32 v2, 16384, v2
    s_add_u32 s18, s18, 1
    s_cmp_lt_u32 s18, 7
    s_cbranch_scc1 L_sz
    s_cmp_gt_u32 s3, 1
    s_cbranch_scc1 L_swc
    v_lshrrev_b32 v3, 4, v0
    v_bfe_u32 v4, v0, 2, 2
    v_and_b32 v5, 3, v0
    v_lshl_add_u32 v3, v3, 2, v5
    v_lshlrev_b32 v3, 1, v3
    v_lshl_add_u32 v3, v4, 8, v3
    s_lshl_b32 s20, s4, 6
    buffer_load_ushort v3, v3, {R(SWC)}, s20 offen
    v_lshlrev_b32 v4, 2, v0
    v_add_u32 v4, {WCF}, v4
    s_waitcnt vmcnt(0)
    v_lshlrev_b32 v3, 16, v3
    v_mul_f32 v3, {NLOG2E:#x}, v3
    ds_write_b32 v4, v3
L_swc:
    """)
    poll2(a, "b")
    a(f"""
    s_waitcnt vmcnt(0) lgkmcnt(0)
    s_barrier
    s_mul_i32 s20, s5, {BN}
    s_mov_b32 s21, {E}
    s_movk_i32 s22, {BN}
    v_mov_b32 v2, v0
    s_mov_b32 s18, 0
L_se:
    v_lshlrev_b32 v3, 2, v2
    v_lshlrev_b32 v4, 3, v2
    buffer_load_dword v5, v3, {R(SDST)}, 0 offen
    v_cmp_gt_u32 s[24:25], s21, v2
    s_waitcnt vmcnt(0)
    v_subrev_u32 v5, s20, v5
    v_cmp_gt_u32 vcc, s22, v5
    s_and_b64 exec, vcc, s[24:25]
    s_cbranch_execz L_sn
    buffer_load_dword v6, v3, {R(SSRC)}, 0 offen
    buffer_load_dwordx2 v[8:9], v4, {R(SEA)}, 0 offen
    v_lshlrev_b32 v7, 4, v5
    v_add_u32 v7, {AU}, v7
    v_lshlrev_b32 v14, 8, v5
    v_add_u32 v14, {ACC}, v14
    v_mov_b32 v15, {WCF}
    s_mov_b32 s19, 0
    s_waitcnt vmcnt(0)
    v_lshlrev_b32 v6, 7, v6
    v_lshlrev_b32 v10, 16, v8
    v_and_b32 v11, 0xffff0000, v8
    v_lshlrev_b32 v12, 16, v9
    v_and_b32 v13, 0xffff0000, v9
L_sc:
    buffer_load_dwordx4 v[16:19], v6, {R(STABW)}, s19 offen sc1
    ds_read_b128 v[20:23], v7
    ds_read_b128 v[24:27], v15
    ds_read_b128 v[28:31], v15 offset:16
    ds_read_b128 v[32:35], v15 offset:32
    ds_read_b128 v[36:39], v15 offset:48
    s_waitcnt vmcnt(0) lgkmcnt(0)
    """)
    for r in range(4):
        a(f"""
        v_lshlrev_b32 v40, 16, v{16+r}
        v_lshlrev_b32 v41, 16, v{20+r}
        v_add_f32 v40, v40, v41
        v_fmac_f32 v40, v10, v{24+r}
        v_fmac_f32 v40, v11, v{28+r}
        v_fmac_f32 v40, v12, v{32+r}
        v_fmac_f32 v40, v13, v{36+r}
        v_exp_f32 v40, v40
        s_nop 0
        v_add_f32 v40, 1.0, v40
        v_rcp_f32 v40, v40
        s_nop 0
        v_mul_f32 v41, v40, v{16+r}
        ds_add_f32 v14, v40 offset:{4*r}
        ds_add_f32 v14, v41 offset:{128+4*r}
        """)
    a(f"""
    v_add_u32 v7, {AUS}, v7
    v_add_u32 v14, 16, v14
    v_add_u32 v15, 64, v15
    s_add_u32 s19, s19, 16
    s_cmp_lt_u32 s19, 128
    s_cbranch_scc1 L_sc
L_sn:
    s_mov_b64 exec, -1
    v_add_u32 v2, 1024, v2
    s_add_u32 s18, s18, 1
    s_cmp_lt_u32 s18, {(E+1023)//1024}
    s_cbranch_scc1 L_se
    s_waitcnt lgkmcnt(0)
    s_barrier
    s_mul_i32 s20, s5, {BN*256}
    s_lshl_b32 s19, s4, 6
    s_add_u32 s20, s20, s19
    v_mov_b32 v2, v0
    s_mov_b32 s18, 0
L_so:
    v_cmp_gt_u32 vcc, {BN*8}, v2
    s_mov_b64 exec, vcc
    s_cbranch_execz L_fin
    v_lshrrev_b32 v3, 3, v2
    v_and_b32 v4, 7, v2
    v_lshlrev_b32 v5, 8, v3
    v_lshl_add_u32 v6, v4, 3, v5
    buffer_load_dwordx2 v[8:9], v6, {R(SX)}, s20 offen
    v_lshl_add_u32 v5, v4, 4, v5
    v_add_u32 v5, {ACC}, v5
    ds_read_b128 v[16:19], v5
    ds_read_b128 v[20:23], v5 offset:128
    v_mul_u32_u24 v7, {AUS}, v4
    v_lshl_add_u32 v7, v3, 4, v7
    v_add_u32 v7, {AU}, v7
    ds_read_b128 v[24:27], v7
    s_waitcnt vmcnt(0) lgkmcnt(0)
    v_lshlrev_b32 v10, 16, v8
    v_and_b32 v11, 0xffff0000, v8
    v_lshlrev_b32 v12, 16, v9
    v_and_b32 v13, 0xffff0000, v9
    """)
    for r in range(4):
        a(f"""
        v_add_f32 v{16+r}, {EPS:#x}, v{16+r}
        v_rcp_f32 v{16+r}, v{16+r}
        s_nop 0
        v_fmac_f32 v{24+r}, v{16+r}, v{20+r}
        v_max_f32 v{24+r}, 0, v{24+r}
        v_add_f32 v{24+r}, v{24+r}, v{10+r}
        """)
    a(f"""
    v_cvt_pk_bf16_f32 v8, v24, v25
    v_cvt_pk_bf16_f32 v9, v26, v27
    buffer_store_dwordx2 v[8:9], v6, {R(SOUT)}, s20 offen
    v_add_u32 v2, 1024, v2
    s_add_u32 s18, s18, 1
    s_cmp_lt_u32 s18, 4
    s_cbranch_scc1 L_so
    """)

def fin(a):
    a("L_fin:")
    if a.prof:
        a("s_mov_b64 exec, -1\ns_waitcnt vmcnt(0)")
        a.stamp(11)
        a(f"""
        v_writelane_b32 v126, s84, 0
        s_memtime s[88:89]
        s_waitcnt lgkmcnt(0)
        s_sub_u32 s88, s88, s86
        v_writelane_b32 v126, s88, 31
        s_lshl_b32 s18, s2, 11
        s_lshl_b32 s19, s3, 7
        s_add_u32 s18, s18, s19
        s_add_u32 s18, s18, {PROFOFF}
        v_lshlrev_b32 v3, 2, v1
        s_mov_b32 exec_lo, -1
        s_mov_b32 exec_hi, 0
        buffer_store_dword v126, v3, {R(SSEG)}, s18 offen
        """)
        a("; STAMPS " + ",".join(["start"] + [str(x) for x in a.names]))
    a("L_end:\ns_endpgm")

def build(D=8, prof=False, force_slow=False, opt=()):
    a = G(D, prof, force_slow, opt)
    prologue(a); phase_p(a); phase_g(a); phase_s(a); phase_m(a); slow(a); fin(a)
    errs = hz.check(a.L)
    for e in errs: print("WARN", e, file=sys.stderr)
    ref = open(f"cdna_kernels/{NAME}.s.ref").read().split('\n')
    head = [l for l in ref if l.startswith(';') and '@launch' not in l]
    out = head + [f"; @launch grid=(256,1,1) block=(1024,1,1) lds={LDS_SIZE}",
        '.amdgcn_target "amdgcn-amd-amdhsa--gfx950"', '.text', f'.globl {NAME}_kernel', '.p2align 8',
        f'.type {NAME}_kernel,@function', f'{NAME}_kernel:'] + a.L + [
        '.section .rodata,"a"', '.p2align 6', f'.amdhsa_kernel {NAME}_kernel',
        '  .amdhsa_next_free_vgpr 128', '  .amdhsa_next_free_sgpr 102', '  .amdhsa_accum_offset 128',
        '  .amdhsa_group_segment_fixed_size 0', '  .amdhsa_kernarg_size 96', '  .amdhsa_user_sgpr_count 2',
        '  .amdhsa_user_sgpr_kernarg_segment_ptr 1', '  .amdhsa_system_sgpr_workgroup_id_x 1', '.end_amdhsa_kernel', '']
    return '\n'.join(out)

if __name__ == '__main__':
    ap = argparse.ArgumentParser()
    ap.add_argument('-o', default=f"cdna_kernels/{NAME}.s")
    ap.add_argument('-D', type=int, default=8)
    ap.add_argument('--prof', action='store_true')
    ap.add_argument('--slow', action='store_true')
    ap.add_argument('--opt', default='')
    x = ap.parse_args()
    open(x.o, 'w').write(build(x.D, x.prof, x.slow, x.opt.split(',')))
```

```python
import sys, struct, argparse
import hz

NAME = "standalone__edge_featured_mpnn_gatedgcn__graph"
N, E = 25000, 400000
BN = 392
CH = 1564
MARK = 0x800007FC
DUMMY = 25100
OVF = 8 << 20
FL2 = 7 << 20
TABOFF = 16 << 20
TABSL = 25600 * 128
PROFOFF = 64 << 20
PCNT, HIST, LEN, FLAG, PC1, OVC, PC3, XGO, PC2, F1, WCNT, XL, NONCE, TRASH, PERM, CNT, WCL = 0, 256, 512, 768, 772, 776, 780, 784, 788, 792, 796, 800, 808, 816, 1024, 2048, 3712
XD0, XD1 = F1, 820
TAGM = 0xF803
RETRY = 2048
XT = 4096
WL = XT + BN * 256
IMG = WL + 32768
OVL = IMG + 24576
LDS_SIZE = 163840
AUS = 6288
AU = LDS_SIZE - 8 * AUS
STG = WL
EALO = 4096
EASZ = 34816
EAHI = EALO + EASZ
ELL = EAHI + EASZ
ROWCAP = 1008
ZSLOT = 32768 + 63 * 4
ACC = 4096
WCF = WL
assert ELL + 32768 <= AU and STG + 8192 <= AU and OVL + 1024 <= LDS_SIZE
NLOG2E = struct.unpack('<I', struct.pack('<f', -1.4426950408889634))[0]
KC, SC = 40, 15
KS = 48
def f2u(x): return struct.unpack('<I', struct.pack('<f', x))[0]
EPS = struct.unpack('<I', struct.pack('<f', 1e-6))[0]

TBL = {2: [0, 1, 6, 9, 2, 11, 10, 5, 15, 4, 8, 8, 13, 7, 9, 6, 12, 7, 5, 11, 13, 2, 4, 14, 1, 14, 12, 7, 4, 14, 3, 2, 10, 3, 10, 15, 12, 5, 15, 1, 3, 0, 0, 13, 11, 8, 3, 6, 9],
       4: [0, 6, 5, 4, 2, 2, 1, 11, 7, 15, 8, 1, 9, 10, 7, 10, 8, 14, 5, 14, 3, 4, 12, 1, 6, 13, 3, 12, 11, 9, 0, 13, 9, 7, 15, 3, 2, 13, 4, 11, 12, 0, 5, 10, 6, 8, 15, 14, 3],
       6: [4, 5, 2, 7, 2, 0, 6, 1, 10, 1, 0, 1, 0, 13, 9, 8, 11, 6, 15, 14, 3, 8, 3, 3, 7, 10, 9, 12, 11, 5, 7, 6, 14, 4, 2, 11, 5, 9, 12, 12, 8, 15, 15, 13, 13, 10, 14, 4, 3]}

class G:
    def __init__(s, D=8, prof=False, force_slow=False, opt=()):
        s.opt = set(opt); s.pair = 'pair' in opt; s.XE = ([int(o[1:]) for o in opt if o[:1] == 'X'] + [0])[0]; s.EE = ([int(o[1:]) for o in opt if o[:1] == 'E'] + [0])[0]; s.YE = ([int(o[1:]) for o in opt if o[:1] == 'Y'] + [0])[0]; s.HD = ([int(o[1:]) for o in opt if o[:1] == 'H'] + [0])[0]; s.T = ([int(o[1:]) for o in opt if o[:1] == 'T'] + [0])[0]
        s.dup = ([o[3] for o in opt if o[:3] == 'dup'] + [''])[0]; s.dupw = ([int(o[4:]) for o in opt if o[:3] == 'dup'] + [0])[0]; s.tb = ([int(o[2:]) for o in opt if o[:2] == 'tb'] + [0])[0]; s.ch = ([int(o[2:]) for o in opt if o[:2] == 'ch'] + [0])[0]; s.L = []; s.D = D; s.prof = prof; s.force_slow = force_slow; s.nst = 0; s.names = []; s.sreg = 15
    def __call__(s, txt):
        for l in txt.strip('\n').split('\n'):
            l = l.strip()
            if l: s.L.append(('' if l.endswith(':') else '    ') + l)
    def srd(s, d, p, n, extra1=None):
        s(f"s_mov_b32 s{d}, s{p}")
        if extra1 is None: s(f"s_mov_b32 s{d+1}, s{p+1}")
        else: s(f"s_or_b32 s{d+1}, s{p+1}, {extra1:#x}")
        s(f"s_mov_b32 s{d+2}, {n:#x}\ns_mov_b32 s{d+3}, 0x20000")
    def stamp(s, k):
        if s.prof:
            s.names.append(k)
            s(f"s_memrealtime s[100:101]\ns_waitcnt lgkmcnt(0)\nv_writelane_b32 v{s.sreg}, s100, {len(s.names)}")
    def scan(s, v):
        for m in ("row_shr:1 row_mask:0xf bank_mask:0xf bound_ctrl:0", "row_shr:2 row_mask:0xf bank_mask:0xf bound_ctrl:0",
                  "row_shr:4 row_mask:0xf bank_mask:0xf bound_ctrl:0", "row_shr:8 row_mask:0xf bank_mask:0xf bound_ctrl:0",
                  "row_bcast:15 row_mask:0xa bank_mask:0xf", "row_bcast:31 row_mask:0xc bank_mask:0xf"):
            s(f"s_nop 1\nv_add_u32_dpp v{v}, v{v}, v{v} {m}")

SX, SEA, SSRC, SDST, SW, SOUT, SDBG, SSEG, STABW, STAB, SWC = 40, 44, 48, 52, 56, 60, 64, 68, 72, 76, 80
def R(d): return f"s[{d}:{d+3}]"

def w2(a, lab, k, extra):
    a(f"s_cbranch_scc1 {lab}\ns_waitcnt vmcnt({k})\n{lab}:\ns_waitcnt vmcnt({k+extra})")

def srds(a):
    a.srd(SOUT, 34, N*256); a.srd(SDBG, 36, 256)
    a.srd(SSEG, 38, (PROFOFF + (1 << 20)) if a.prof else TABOFF)
    a(f"""
    s_mul_i32 s9, s4, {TABSL}
    s_add_u32 s9, s9, {TABOFF}
    s_add_u32 s12, s38, s9
    s_addc_u32 s13, s39, 0
    """)
    a.srd(STABW, 12, TABSL); a.srd(STAB, 12, 25600, extra1=128 << 16)

def xdma(a, lab):
    nt = ' nt' if 'dnt' in a.opt else ''
    a(f"""
    s_mul_i32 s14, s5, {BN*256}
    s_lshl_b32 s15, s3, 13
    s_add_u32 s14, s14, s15
    s_add_u32 m0, s15, {XT}
    v_xor_b32 v17, 64, v16
    v_xor_b32 v18, 0x80, v16
    v_xor_b32 v19, 0xc0, v16
    s_cmp_eq_u32 s3, 12
    buffer_load_dwordx4 v16, {R(SX)}, s14 offen{nt} lds
    buffer_load_dwordx4 v17, {R(SX)}, s14 offen offset:1024{nt} lds
    s_cbranch_scc1 {lab}
    buffer_load_dwordx4 v18, {R(SX)}, s14 offen offset:2048{nt} lds
    buffer_load_dwordx4 v19, {R(SX)}, s14 offen offset:3072{nt} lds
    s_add_u32 m0, s15, {XT+4096}
    s_add_u32 s14, s14, 4096
    buffer_load_dwordx4 v16, {R(SX)}, s14 offen{nt} lds
    buffer_load_dwordx4 v17, {R(SX)}, s14 offen offset:1024{nt} lds
    buffer_load_dwordx4 v18, {R(SX)}, s14 offen offset:2048{nt} lds
    buffer_load_dwordx4 v19, {R(SX)}, s14 offen offset:3072{nt} lds
{lab}:
    """)

def spin(a, lab, vaddr, off, cmp, val, vt=32):
    a(f"""
{lab}:
    ds_read_b32 v{vt}, v{vaddr} offset:{off}
    s_waitcnt lgkmcnt(0)
    v_readfirstlane_b32 s18, v{vt}
    s_cmp_{cmp}_u32 s18, {val}
    s_cbranch_scc1 {lab}d
    s_sleep 1
    s_branch {lab}
{lab}d:
    """)

def allsrds(a):
    a.srd(SDST, 22, E*4); a.srd(SSRC, 20, E*4); a.srd(SEA, 18, E*8)
    a.srd(SWC, 28, 1024)
    srds(a)

MAP = ["""s_and_b32 s4, s2, 3
    s_lshr_b32 s5, s2, 3
    s_bfe_u32 s6, s2, 0x10002
    s_lshl_b32 s6, s6, 5
    s_add_u32 s5, s5, s6""",
    """s_and_b32 s4, s2, 1
    s_lshl_b32 s4, s4, 1
    s_bfe_u32 s6, s2, 0x10003
    s_add_u32 s4, s4, s6
    s_lshr_b32 s5, s2, 4
    s_bfe_u32 s6, s2, 0x20001
    s_lshl_b32 s6, s6, 4
    s_add_u32 s5, s5, s6""",
    """s_bfe_u32 s4, s2, 0x20003
    s_lshr_b32 s5, s2, 5
    s_and_b32 s6, s2, 7
    s_lshl_b32 s6, s6, 3
    s_add_u32 s5, s5, s6"""]

def icw(a):
    if 'icw' not in a.opt: return ''
    return """s_cmp_lg_u32 s3, 15
    s_cbranch_scc1 L_icd
    s_getpc_b64 s[12:13]
L_icp:
    v_lshlrev_b32 v6, 7, v1
    v_mov_b32 v7, 0
    v_lshl_add_u64 v[6:7], v[6:7], 0, s[12:13]
    s_mov_b32 s12, 8192
    s_mov_b32 s13, 0
    global_load_dword v127, v[6:7], off offset:1024
    v_lshl_add_u64 v[6:7], v[6:7], 0, s[12:13]
    global_load_dword v127, v[6:7], off offset:1024
L_icd:"""

def prologue(a):
    a(f"""
    s_cmp_ge_u32 s2, 256
    s_cbranch_scc1 L_end
    s_load_dwordx16 s[16:31], s[0:1], 0
    s_load_dwordx8 s[32:39], s[0:1], 64
    """)
    if 'icx' in a.opt: a("""
    s_getpc_b64 s[12:13]
L_icp:
    v_lshlrev_b32 v6, 7, v0
    v_mov_b32 v7, 0
    v_cmp_gt_u32 vcc, L_slow-L_icp-128, v6
    v_lshl_add_u64 v[6:7], v[6:7], 0, s[12:13]
    s_and_b64 exec, vcc, vcc
    s_cbranch_scc0 L_icd
    global_load_dword v127, v[6:7], off offset:128
L_icd:
    s_mov_b64 exec, -1
    """)
    if a.prof: a("s_memrealtime s[84:85]\ns_memtime s[92:93]\nv_mov_b32 v15, 0")
    a(f"""
    v_lshrrev_b32 v2, 6, v0
    v_and_b32 v1, 63, v0
    v_lshlrev_b32 v4, 4, v0
    v_readfirstlane_b32 s3, v2
    v_mov_b32 v3, 0
    s_lshl_b32 s9, s2, 4
    s_add_u32 s9, s9, s3
    s_cmp_lg_u32 s9, 14
    s_cbranch_scc1 L_i0
    ; launch tag: a mix of the clock, published through d_debug
    s_memrealtime s[12:13]
    s_waitcnt lgkmcnt(0)
    s_mul_i32 s14, s12, 0x9E3779B1
    s_mul_i32 s12, s12, 0x85EBCA6B
    s_xor_b32 s13, s13, s12
    s_bitset1_b32 s13, 31
    v_mov_b32 v8, s14
    v_mov_b32 v9, s13
    s_mov_b64 exec, 1
    global_store_dwordx2 v3, v[8:9], s[36:37] offset:136 sc1
    s_mov_b64 exec, -1
L_i0:
    {icw(a)}
    v_lshrrev_b32 v6, 3, v0
    v_mul_u32_u24 v6, 384, v6
    v_and_b32 v7, 7, v0
    v_lshl_add_u32 v6, v7, 4, v6
    v_add_u32 v6, {IMG+256}, v6
    v_subrev_u32 v7, {512*16}, v4
    s_cmp_lt_u32 s3, 8
    s_cselect_b32 s9, {MARK:#x}, 0
    v_mov_b32 v20, s9
    v_mov_b32 v21, s9
    v_mov_b32 v22, s9
    v_mov_b32 v23, s9
    s_cbranch_scc1 L_i1
    v_mov_b32 v6, v7
L_i1:
    s_cmp_ge_u32 s3, 12
    s_cbranch_scc1 L_i2
    ds_write_b128 v6, v[20:23]
L_i2:
    {MAP[2 if 'map4' in a.opt else 1 if 'map2' in a.opt else 0]}
    v_subrev_u32 v3, {320*16}, v4
    v_lshlrev_b32 v4, 1, v3
    s_mul_i32 s6, s2, {CH*4}
    s_lshl_b32 s7, s6, 1
    s_movk_i32 s8, {CH*4}
    s_cmp_eq_u32 s2, 255
    s_cselect_b32 s8, {(E-255*CH)*4}, s8
    v_cmp_gt_u32 s[10:11], s8, v3
    v_lshrrev_b32 v5, 2, v1
    v_and_b32 v6, 3, v1
    v_lshlrev_b32 v6, 4, v6
    v_lshl_or_b32 v5, v5, 8, v6
    v_lshrrev_b32 v6, 4, v1
    v_and_b32 v7, 15, v1
    v_xor_b32 v16, v7, v6
    v_lshlrev_b32 v6, 8, v6
    v_lshl_or_b32 v16, v16, 4, v6
    v_mov_b32 v2, 1
    v_mov_b32 v30, {FLAG}
    s_cmp_lt_u32 s3, 5
    s_cbranch_scc1 L_i3
    s_setprio 2
L_i3:
    s_waitcnt lgkmcnt(0)
    s_barrier
    """)
    a.srd(SX, 16, N*256)
    a(f"""
    s_cmp_ge_u32 s3, 5
    s_cbranch_scc1 L_l0
    s_cmp_eq_u32 s3, 4
    s_cbranch_scc1 L_e1
    s_cmp_eq_u32 s3, 0
    s_cselect_b64 s[12:13], s[26:27], s[32:33]
    s_cmp_eq_u32 s3, 2
    s_cselect_b64 s[12:13], s[24:25], s[12:13]
    s_cmp_eq_u32 s3, 3
    s_cselect_b64 s[12:13], s[30:31], s[12:13]
    """)
    a.srd(SW, 12, 32768)
    a(f"""
    s_lshl_b32 s15, s3, 13
    s_lshl_b32 s14, s4, 6
    """)
    for q in range(8):
        if q % 4 == 0: a(f"s_add_u32 m0, s15, {WL + q*1024}")
        a(f"s_add_u32 s12, s14, {q*4096 - (q%4)*1024}\nbuffer_load_dwordx4 v5, {R(SW)}, s12 offen offset:{(q%4)*1024} lds")
    a("L_e1:")
    if a.T:
        allsrds(a)
        a(f"""
        s_cmp_lt_u32 s3, {a.T}
        s_cbranch_scc1 L_e2
        s_mov_b64 exec, 1
        s_waitcnt vmcnt(0)
        ds_add_u32 v30, v2 offset:{WCNT-FLAG}
        s_mov_b64 exec, -1
        s_branch L_xw
L_e2:
        """)
    if a.EE:
        allsrds(a)
        a(f"""
        {'s_bitcmp1_b32 s2, 2' if 'elo' in a.opt else 's_bitcmp0_b32 s2, 2' if 'ehi' in a.opt else ''}
        {'s_cbranch_scc1 L_e3' if 'elo' in a.opt or 'ehi' in a.opt else ''}
        s_cmp_lt_u32 s3, {a.EE}
        s_cbranch_scc1 L_e3
        s_mov_b64 exec, 1
        s_waitcnt vmcnt(0)
        ds_add_u32 v30, v2 offset:{WCNT-FLAG}
        s_mov_b64 exec, -1
        s_mov_b32 s19, 2
        s_branch L_xg
L_e3:
        """)
    xdma(a, "L_nx1")
    if not a.T and not a.EE: allsrds(a)
    a(f"""
    s_mov_b64 exec, 1
    s_waitcnt vmcnt(8)
    ds_add_u32 v30, v2 offset:{WCNT-FLAG}
    s_mov_b64 exec, -1
    s_branch L_g
L_l0:
    s_cmp_ge_u32 s3, 13
    s_cbranch_scc1 L_h0
    """)
    a.srd(SDST, 22, E*4); a.srd(SSRC, 20, E*4); a.srd(SEA, 18, E*8)
    a(f"""
    s_cmp_eq_u64 s[10:11], 0
    s_cbranch_scc1 L_noedge
    s_mov_b64 exec, s[10:11]
    buffer_load_dwordx4 v[8:11], v3, {R(SDST)}, s6 offen{' nt' if 'int' in a.opt else ''}
    buffer_load_dwordx4 v[40:43], v3, {R(SSRC)}, s6 offen{' nt' if 'int' in a.opt else ''}
    buffer_load_dwordx4 v[32:35], v4, {R(SEA)}, s7 offen{' nt' if 'int' in a.opt else ''}
    buffer_load_dwordx4 v[36:39], v4, {R(SEA)}, s7 offen offset:16{' nt' if 'int' in a.opt else ''}
    s_mov_b64 exec, -1
L_noedge:
    """)
    a.srd(SWC, 28, 1024)
    srds(a)

def tags(a):
    a(f"""
    v_and_b32 v45, 7, v1
    v_cmp_eq_u32 vcc, 0, v45
    v_lshlrev_b32 v45, 2, v45
    v_lshrrev_b64 v[46:47], v45, v[46:47]
    v_mov_b32 v44, {TAGM:#x}
    v_cndmask_b32 v44, v44, 2, vcc
    v_and_b32 v40, v44, v46
    v_lshrrev_b32 v41, 5, v46
    v_lshrrev_b32 v42, 10, v46
    v_lshrrev_b32 v43, 15, v46
    v_and_b32 v41, {TAGM:#x}, v41
    v_and_b32 v42, {TAGM:#x}, v42
    v_and_b32 v43, {TAGM:#x}, v43
    """)

def phase_p(a):
    M = ("s[12:13]", "s[14:15]", "s[20:21]", "s[22:23]")
    a(f"""
    s_cmp_eq_u64 s[10:11], 0
    s_cbranch_scc1 L_p_done
    s_mov_b64 exec, s[10:11]
    s_mov_b32 s16, 42800
    s_mov_b32 s17, {(-MARK) & 0xffffffff:#x}
    s_movk_i32 s18, 384
    v_mov_b32 v3, {IMG}
    s_waitcnt vmcnt(3)
    """)
    for j in range(4): a(f"v_mul_u32_u24 v{44+j}, s16, v{8+j}")
    for j in range(4): a(f"v_lshrrev_b32 v{44+j}, 24, v{44+j}")
    for j in range(4): a(f"v_lshlrev_b32 v{48+j}, 2, v{44+j}\nds_add_rtn_u32 v{20+j}, v{48+j}, v2 offset:{PCNT}")
    for j in range(4):
        a(f"""
        v_mul_u32_u24 v{48+j}, {BN*4}, v{44+j}
        v_lshl_add_u32 v{8+j}, v{8+j}, 2, s17
        v_sub_u32 v{8+j}, v{8+j}, v{48+j}
        v_mad_u32_u24 v{48+j}, v{44+j}, s18, v3
        """)
    a("s_waitcnt vmcnt(2)")
    for j in range(4): a(f"v_lshl_add_u32 v{8+j}, v{40+j}, 16, v{8+j}")
    for j in range(4):
        a(f"""
        s_waitcnt lgkmcnt({3-j})
        v_add_u32 v{52+j}, v{20+j}, v{44+j}
        v_cmp_gt_u32 {M[j]}, 32, v{20+j}
        v_and_b32 v{52+j}, 31, v{52+j}
        v_lshl_add_u32 v{52+j}, v{52+j}, 2, v{48+j}
        """)
    for j in range(4): a(f"s_mov_b64 exec, {M[j]}\nds_add_u32 v{52+j}, v{8+j} offset:256")
    for j in range(4):
        if j % 2 == 0: a(f"s_waitcnt vmcnt({1 - j//2})")
        a(f"s_mov_b64 exec, {M[j]}\nds_write2_b32 v{52+j}, v{32+2*j}, v{33+2*j} offset0:0 offset1:32")
    for j in range(4):
        rk, bk, base, sd, lo, hi = 20+j, 44+j, 48+j, 8+j, 32+2*j, 33+2*j
        a(f"""
        s_andn2_b64 exec, s[10:11], {M[j]}
        s_cbranch_execz L_po{j}
        ds_add_rtn_u32 v28, v30, v2 offset:{OVC-FLAG}
        v_mov_b32 v24, v{lo}
        v_mov_b32 v25, v{hi}
        v_add_u32 v26, {MARK:#x}, v{sd}
        v_lshlrev_b32 v27, 9, v{bk}
        v_lshl_add_u32 v27, v{rk}, 4, v27
        v_mov_b32 v29, 0x800
        s_waitcnt lgkmcnt(0)
        v_max_u32 v31, v28, v{rk}
        v_cmp_lt_u32 vcc, 62, v31
        v_lshlrev_b32 v28, 4, v28
        v_add_u32 v28, {OVL}, v28
        s_andn2_b64 s[24:25], exec, vcc
        s_mov_b64 exec, vcc
        ds_or_b32 v30, v2
        s_mov_b64 exec, s[24:25]
        ds_add_u32 v{base}, v29 offset:256
        ds_write_b128 v28, v[24:27]
L_po{j}:
        """)
    a(f"""
L_p_done:
    s_mov_b64 exec, 1
    ds_add_u32 v30, v2 offset:{PC1-FLAG}
    s_mov_b64 exec, -1
    s_setprio 0
    """)
    a.stamp('p_w')
    if a.tb:
        n = [0]*16
        for g, w in enumerate(TBL[a.tb]):
            a(f"v_writelane_b32 v14, {4*w + n[w]}, {g}"); n[w] += 1
    if 'xpf' in a.opt: a(f"""
    s_cmp_lg_u32 s3, 12
    s_cbranch_scc1 L_xpf
    s_mul_i32 s14, s5, {BN*256}
    s_mul_i32 s15, s4, {232*64}
    s_add_u32 s14, s14, s15
    s_add_u32 s14, s14, {160*256}
    s_add_u32 s15, s14, {116*64}
    v_lshlrev_b32 v8, 6, v1
    s_mov_b32 exec_hi, {(1 << 26) - 1:#x}
    buffer_load_dword v9, v8, {R(SX)}, s14 offen
    buffer_load_dword v9, v8, {R(SX)}, s14 offen offset:{58*64}
    buffer_load_dword v9, v8, {R(SX)}, s15 offen
    buffer_load_dword v9, v8, {R(SX)}, s15 offen offset:{58*64}
    s_mov_b32 exec_hi, -1
    s_waitcnt vmcnt(0)
L_xpf:
    """)
    if a.XE: a(f"s_cmp_lt_u32 s3, {a.XE}\ns_cbranch_scc1 L_xgd")
    Z = [o for o in a.opt if o[:1] == 'Z']
    if Z: a(f"s_bitcmp1_b32 s2, 2\ns_cselect_b32 s19, {int(Z[0][2], 16)}, {int(Z[0][1], 16)}\ns_cmp_lt_u32 s3, s19\ns_cselect_b32 s19, 2, 3")
    elif a.YE: a(f"s_cmp_lt_u32 s3, {a.YE}\ns_cselect_b32 s19, 2, 3")
    if 'noxgo' not in a.opt: spin(a, "L_xg", 30, XGO-FLAG, "ge", "s19" if a.YE else 3)
    if a.T:
        a(f"L_xw:\ns_sub_u32 s19, s3, {a.T-1}\ns_cselect_b32 s19, 0, s19")
        spin(a, "L_xt", 30, XL-FLAG, "ge", "s19")
    a.stamp('xgo')
    xdma(a, "L_nx2")
    a(f"""
    s_branch L_g
L_h0:
    """)
    allsrds(a)
    a(f"""
    v_lshlrev_b32 v4, 4, v1
    s_mul_i32 s16, s2, 24576
    v_mov_b32 v3, 0
    s_movk_i32 s17, 384
    s_cmp_eq_u32 s3, 13
    s_cbranch_scc1 L_h13
    v_lshrrev_b32 v8, 4, v1
    v_lshlrev_b32 v9, 4, v7
    v_mad_u32_u24 v8, v8, s17, v9
    s_cmp_lg_u32 s3, 15
    s_cbranch_scc1 L_h2
    v_add_u32 v8, {32*384}, v8
    v_lshl_or_b32 v6, v7, 2, v6
    s_movk_i32 m0, {WCL}
    s_lshl_b32 s9, s4, 6
    buffer_load_dword v6, {R(SWC)}, s9 offen lds
L_h2:
    v_add_u32 v9, {IMG}, v8
    s_add_u32 s17, s16, {3*1536}
    s_add_u32 s19, s16, {6*1536}
    s_setprio 0
    """)
    spin(a, "L_hp", 30, PC1-FLAG, "ge", 8)
    a("s_setprio 3")
    a.stamp('b1')
    for i in range(8): a(f"ds_read_b128 v[{64+4*i}:{67+4*i}], v9 offset:{i*1536}")
    for i in range(8):
        a(f"s_waitcnt lgkmcnt({7-i})\nbuffer_store_dwordx4 v[{64+4*i}:{67+4*i}], v8, {R(SSEG)}, s{(16,17,19)[i//3]} offen offset:{(i%3)*1536} sc1{' nt' if 'int' in a.opt else ''}")
    a(f"""
    s_mov_b64 exec, 1
    ds_add_u32 v30, v2 offset:{XGO-FLAG}
    """)
    a.stamp('imi')
    if 'eaf' in a.opt: a(f"""
    s_lshl_b32 s19, s3, 11
    s_lshl_b32 s18, s2, 3
    s_add_u32 s19, s19, s18
    s_add_u32 s19, s19, {FL2 + 4096 - 14*2048}
L_en:
    ds_read_b64 v[46:47], v30 offset:{NONCE-FLAG}
    s_waitcnt lgkmcnt(0)
    v_readfirstlane_b32 s18, v47
    s_cmp_lg_u32 s18, 0
    s_cbranch_scc1 L_end2
    s_sleep 1
    s_branch L_en
L_end2:
    s_waitcnt vmcnt(0)
    buffer_store_dwordx2 v[46:47], v3, {R(SSEG)}, s19 offen sc1
    """)
    else: a("s_waitcnt vmcnt(0)")
    a(f"""
    ds_add_u32 v30, v2 offset:{PC2-FLAG}
    s_branch L_pso
L_h13:
    v_lshrrev_b32 v8, 3, v1
    v_and_b32 v9, 0x70, v4
    v_mad_u32_u24 v8, v8, s17, v9
    v_add_u32 v9, {IMG+256}, v8
    v_add_u32 v5, {OVL}, v4
    s_mov_b32 s18, 0x40000
L_tag:
    buffer_load_dwordx2 v[46:47], v3, {R(SDBG)}, 0 offen offset:136 sc1
    s_waitcnt vmcnt(0)
    v_cmp_eq_u32 vcc, 0, v47
    s_sub_u32 s18, s18, 1
    s_cbranch_scc1 L_tagd
    s_cbranch_vccz L_tagd
    s_sleep 1
    s_branch L_tag
L_tagd:
    v_or_b32 v47, 0x80000000, v47
    ds_write_b64 v30, v[46:47] offset:{NONCE-FLAG}
    """)
    a.stamp('tag')
    tags(a)
    a("s_setprio 0")
    spin(a, "L_hq", 30, PC1-FLAG, "ge", 8)
    a(f"""
    s_setprio 3
    ds_read_b96 v[36:38], v30
    ds_read_b128 v[24:27], v5
    """)
    for i in range(8): a(f"ds_read_b128 v[{64+4*i}:{67+4*i}], v9 offset:{i*3072}")
    a(f"""
    s_lshl_b32 s19, s2, 15
    s_add_u32 s19, s19, {OVF-512}
    s_waitcnt lgkmcnt(8)
    v_cmp_gt_u32 s[20:21], v38, v1
    v_cmp_eq_u32 vcc, 0, v36
    v_and_b32 v36, 1, v36
    v_bfi_b32 v36, v44, 0, v36
    v_or_b32 v40, v40, v36
    s_and_b64 exec, s[20:21], vcc
    s_cbranch_scc0 L_psn
    buffer_store_dwordx4 v[24:27], v27, {R(SSEG)}, s19 offen sc1
L_psn:
    s_mov_b64 exec, 1
    ds_add_u32 v30, v2 offset:{(TRASH if 'xsd' in a.opt else XGO)-FLAG}
    s_mov_b64 exec, -1
    """)
    for i in range(8):
        a(f"s_waitcnt lgkmcnt({8-i})")
        for j in range(4): a(f"v_xor_b32 v{64+4*i+j}, v{64+4*i+j}, v{40+j}")
    a("s_waitcnt vmcnt(0)")
    if 'eaf' not in a.opt: spin(a, "L_hr", 30, PC2-FLAG, "ge", 2)
    for i in range(8):
        a(f"buffer_store_dwordx4 v[{64+4*i}:{67+4*i}], v8, {R(SSEG)}, s16 offen offset:256 sc1{' nt' if 'int' in a.opt else ''}")
        if i < 7: a("s_add_u32 s16, s16, 3072")
    if 'xsd' in a.opt: a(f"s_mov_b64 exec, 1\nds_add_u32 v30, v2 offset:{XGO-FLAG}")
    a(f"""
L_pso:
    s_sub_u32 s17, s3, 8
    """)
    a.stamp('sig1')
    if a.HD and 'eh' not in a.opt: spin(a, "L_hd", 30, XD0-FLAG, "ge", a.HD)
    a(f"""
    s_branch L_sw
L_g:
    """)

SD = 48
ACCS = (48, 64, 80, 96)
def phase_g(a):
    a(f"""
    v_and_b32 v20, 31, v1
    v_lshrrev_b32 v21, 5, v1
    s_lshl_b32 s18, s3, 13
    s_add_u32 s18, s18, {XT}
    v_and_b32 v22, 15, v1
    v_xor_b32 v22, v22, v21
    v_lshlrev_b32 v22, 4, v22
    v_lshl_or_b32 v22, v20, 8, v22
    v_add_u32 v4, s18, v22
    v_bfe_u32 v22, v1, 2, 2
    v_lshl_add_u32 v22, v21, 3, v22
    v_lshlrev_b32 v22, 6, v22
    v_and_b32 v23, 16, v1
    v_lshl_add_u32 v22, v23, 1, v22
    v_and_b32 v23, 3, v1
    v_lshl_add_u32 v22, v23, 3, v22
    v_add_u32 v5, {WL}, v22
    v_bfe_u32 v22, v1, 1, 3
    v_xor_b32 v22, v22, v21
    v_lshlrev_b32 v22, 4, v22
    v_lshl_or_b32 v22, v20, 7, v22
    v_add_u32 v6, s18, v22
    v_lshl_add_u32 v7, v1, 4, s18
    v_and_b32 v22, 7, v1
    v_lshrrev_b32 v23, 4, v1
    v_xor_b32 v22, v22, v23
    v_lshlrev_b32 v22, 4, v22
    v_lshrrev_b32 v23, 3, v1
    v_lshl_or_b32 v8, v23, 7, v22
    v_xor_b32 v9, 64, v8
    v_mul_u32_u24 v22, {AUS}, v21
    v_lshl_add_u32 v22, v20, 4, v22
    s_lshl_b32 s18, s3, 9
    s_add_u32 s18, s18, {AU}
    v_add_u32 v10, s18, v22
    v_xor_b32 v11, 32, v6
    v_xor_b32 v12, 64, v6
    v_xor_b32 v13, 0x60, v6
    s_mul_i32 s19, s5, {BN*128}
    s_lshl_b32 s18, s3, 12
    s_add_u32 s19, s19, s18
    s_mov_b32 s20, {NLOG2E:#x}
    s_mov_b32 s21, {NLOG2E:#x}
    s_mov_b32 s22, 0x07060100
    s_mov_b32 s23, 0x07060302
    s_cmp_eq_u32 s3, 12
    s_cselect_b32 s26, 0xff, -1
    s_cselect_b32 s27, 0xff, -1
    """)
    for ks in range(1, 8): a(f"v_xor_b32 v{48+ks}, {ks*32:#x}, v4")
    if a.dup: a(f"s_mov_b64 s[96:97], s[{STABW}:{STABW+1}]\ns_mov_b32 s99, s{STABW+3}\ns_cmp_ge_u32 s3, {a.dupw}\ns_cselect_b32 s98, s{STABW+2}, 0")
    Q = []
    def ds(txt, tag=None):
        a(txt); Q.append(tag)
    def wait(tag):
        if tag in Q:
            i = max(k for k, t in enumerate(Q) if t == tag)
            n = len(Q) - 1 - i
            assert n <= 15
            a(f"s_waitcnt lgkmcnt({n})")
            del Q[:i+1]
    def frag(t):
        p, ks, mm = t >> 4, (t >> 1) & 7, t & 1
        r = 112 + 4*(t & 3); o = (2*p+mm)*8192 + ks*1024
        ds(f"ds_read_b64_tr_b16 v[{r}:{r+1}], v5 offset:{o}", ('f', t))
        ds(f"ds_read_b64_tr_b16 v[{r+2}:{r+3}], v5 offset:{o+256}", ('f', t))
    spin(a, "L_wc", 30, WCNT-FLAG, "ge", 5)
    for t in range(4): frag(t)
    a("s_waitcnt vmcnt(0) lgkmcnt(0)"); Q.clear()
    if a.T:
        a("s_mov_b64 exec, 1"); ds(f"ds_add_u32 v30, v2 offset:{XL-FLAG}"); a("s_mov_b64 exec, -1")
    a.stamp('xl')
    for ks in range(8): ds(f"ds_read_b128 v[{16+4*ks}:{19+4*ks}], v{4 if ks == 0 else 48+ks}", ('x', ks))
    def pack(B, V, i):
        b = B + 4*i; v = V + 4*i
        return [f"v_pk_mul_f32 v[{b}:{b+1}], v[{b}:{b+1}], s[20:21]", f"v_pk_mul_f32 v[{b+2}:{b+3}], v[{b+2}:{b+3}], s[20:21]",
                f"v_cvt_pk_bf16_f32 v{b}, v{b}, v{b+1}", f"v_cvt_pk_bf16_f32 v{b+1}, v{b+2}, v{b+3}",
                f"v_perm_b32 v{v}, v{v}, v{b}, s22", f"v_perm_b32 v{v+1}, v{v+1}, v{b}, s23",
                f"v_perm_b32 v{v+2}, v{v+2}, v{b+1}, s22", f"v_perm_b32 v{v+3}, v{v+3}, v{b+1}, s23"]
    ep = []
    for i in range(4):
        ep += [('v', x) for x in pack(48, 64, i)]
        ep += [('w', i)]
    ep += [('r', i) for i in range(4)] + [('s', i) for i in range(4)]
    def emit(e):
        k, x = e
        if k == 'v': a(x)
        elif k == 'w':
            a("s_mov_b64 exec, s[26:27]")
            ds(f"ds_write_b128 v{(6, 11, 12, 13)[x]}, v[{64+4*x}:{67+4*x}]")
            a("s_mov_b64 exec, -1")
        elif k == 'r': ds(f"ds_read_b128 v[{48+4*x}:{51+4*x}], v7 offset:{x*1024}", ('r', x))
        elif k == 's':
            wait(('r', x))
            if x: a(f"s_cbranch_scc1 L_gs{x}")
            dup = f"buffer_store_dwordx4 v[{48+4*x}:{51+4*x}], v{8+(x&1)}, s[96:99], s19 offen offset:{x*1024}"
            if a.dup == 'b': a(dup)
            a(f"buffer_store_dwordx4 v[{48+4*x}:{51+4*x}], v{8+(x&1)}, {R(STABW)}, s19 offen offset:{x*1024} sc1")
            if a.dup == 'a': a(dup)
            if x: a(f"L_gs{x}:")
    a("s_cmp_eq_u32 s3, 12")
    for t in range(32):
        p, ks, mm = t >> 4, (t >> 1) & 7, t & 1
        wait(('f', t)); wait(('x', ks))
        d = ACCS[2*p+mm]; r = 112 + 4*(t & 3)
        c = "0" if ks == 0 else f"v[{d}:{d+15}]"
        a(f"v_mfma_f32_32x32x16_bf16 v[{d}:{d+15}], v[{r}:{r+3}], v[{16+4*ks}:{19+4*ks}], {c}")
        if t + 4 < 32: frag(t + 4)
        if t >= 18:
            n = 5 if ep and ep[0][0] in 'vw' else (4 if ep and ep[0][0] == 'r' else 1)
            for _ in range(n):
                if ep: emit(ep.pop(0))
    while ep: emit(ep.pop(0))
    a(f"""
    s_cselect_b32 s18, s5, 0
    v_mov_b32 v32, 0x7180
    v_mov_b32 v33, 0x7180
    v_mov_b32 v34, 0x7180
    v_mov_b32 v35, 0x7180
    v_lshlrev_b32 v12, 4, v1
    s_cmp_lg_u32 s18, 63
    s_cbranch_scc1 L_nodum
    s_mov_b32 s18, {DUMMY*128}
    buffer_store_dwordx4 v[32:35], v12, {R(STABW)}, s18 offen sc1
    buffer_store_dwordx4 v[32:35], v12, {R(STABW)}, s18 offen offset:1024 sc1
    buffer_store_dwordx4 v[32:35], v12, {R(STABW)}, s18 offen offset:2048 sc1
    buffer_store_dwordx4 v[32:35], v12, {R(STABW)}, s18 offen offset:3072 sc1
L_nodum:
    s_movk_i32 s18, {XD1}
    s_cmp_lt_u32 s3, 5
    s_cselect_b32 s18, {XD0}, s18
    s_cmp_lt_u32 s3, 9
    s_cselect_b32 s18, s18, {TRASH}
    v_mov_b32 v31, 1
    v_mov_b32 v30, s18
    s_mov_b64 exec, 1
    ds_add_u32 v30, v31
    s_mov_b64 exec, -1
    v_mov_b32 v30, {FLAG}
    """)
    for i in range(4):
        for x in pack(80, 96, i): a(x)
    a.stamp('gd')
    a(f"""
    s_mov_b32 s17, s3
    s_cmp_lt_u32 s3, 5
    s_cbranch_scc1 L_sw
    s_mov_b32 s16, 0
    s_sub_u32 s17, s3, 5
    """)
    consts(a, "L_c1", 30, PC2-FLAG)
    a("s_waitcnt vmcnt(0)")
    sig2(a, "L_sig2a", 30, PC3-FLAG)
    a.stamp('gdr')

def sig2(a, lab, flag, cntoff):
    a(f"""
    s_mov_b64 exec, 1
    ds_add_rtn_u32 v4, v{flag}, v31 offset:{cntoff}
    ds_read_b64 v[6:7], v{flag} offset:{cntoff+NONCE-PC3}
    s_lshl_b32 s18, s4, 9
    s_lshl_b32 s19, s5, 3
    s_add_u32 s18, s18, s19
    s_add_u32 s18, s18, {FL2}
    v_mov_b32 v3, 0
    s_waitcnt lgkmcnt(0)
    v_readfirstlane_b32 s19, v4
    s_cmp_lg_u32 s19, 12
    s_cbranch_scc1 {lab}
    buffer_store_dwordx2 v[6:7], v3, {R(SSEG)}, s18 offen sc1
{lab}:
    s_mov_b64 exec, -1
    """)

RK = 64
def segaddr(a):
    a(f"""
    v_lshrrev_b32 v2, 3, v1
    v_mul_u32_u24 v2, 24576, v2
    v_and_b32 v3, 7, v1
    v_lshl_add_u32 v2, v3, 4, v2
    s_mul_i32 s25, s17, {32*24576}
    s_mul_i32 s19, s5, 384
    s_add_u32 s25, s25, s19
    s_lshl_b32 s28, s17, 12
    v_mov_b32 v34, 1
    """)

def phase_s(a):
    segaddr(a)
    a(f"""
    v_and_b32 v78, {31 if 'dsp' in a.opt else 0}, v1
    v_lshlrev_b32 v78, 16, v78
    v_add_u32 v78, {(DUMMY << 16) | ZSLOT:#x}, v78
    v_lshl_add_u32 v80, s17, 6, v1
    s_movk_i32 s18, {BN}
    v_cmp_gt_u32 s[10:11], s18, v80
    v_lshlrev_b32 v64, 2, v80
    s_branch L_s1
L_sw:
    s_mov_b64 exec, -1
    s_mov_b32 s16, 1
    s_setprio 0
    """)
    segaddr(a)
    a(f"""
    v_mov_b32 v14, {PC3}
    s_add_u32 s31, s25, {1*8*24576}
    s_add_u32 s32, s25, {2*8*24576}
    s_add_u32 s33, s25, {3*8*24576}
    """)
    if a.HD and 'eh' in a.opt: spin(a, "L_hd", 14, XD0-PC3, "ge", a.HD)
    JD = ([int(o[1:]) for o in a.opt if o[:1] == 'J'] + [0])[0]
    if JD: spin(a, "L_jd", 14, XD1-PC3, "ge", JD)
    SQ = (25, 31, 32, 33)
    def sdl(q): a(f"buffer_load_dwordx4 v[{SD+4*q}:{SD+4*q+3}], v2, {R(SSEG)}, s{SQ[q]} offen offset:256 sc1{' nt' if 'snt' in a.opt else ''}")
    for q in range(4): sdl(q)
    EAF = f"buffer_load_dwordx2 v[28:29], v36, {R(SSEG)}, 0 offen sc1"
    if 'eaf' in a.opt: a(f"""
    s_lshr_b32 s18, s5, 5
    s_lshl_b32 s18, s18, 11
    s_lshl_b32 s19, s17, 8
    s_add_u32 s18, s18, s19
    s_add_u32 s18, s18, {FL2 + 4096}
    v_and_b32 v36, 31, v1
    v_lshl_add_u32 v36, v36, 3, s18
    {EAF}
    """)
    a.stamp('sdi')
    consts(a, "L_c2", 14, PC2-PC3)
    a(f"""
L_nw:
    ds_read_b64 v[46:47], v14 offset:{NONCE-PC3}
    s_waitcnt lgkmcnt(0)
    v_readfirstlane_b32 s18, v47
    s_cmp_lg_u32 s18, 0
    s_cbranch_scc1 L_nwd
    s_sleep 1
    s_branch L_nw
L_nwd:
    """)
    tags(a)
    a(f"""
    v_mov_b32 v26, 0
    v_mov_b32 v3, 0
    v_lshlrev_b32 v38, 4, v1
    s_lshl_b32 s22, s17, 20
    s_lshl_b32 s27, s5, 9
    s_add_u32 s22, s22, s27
    s_add_u32 s22, s22, {OVF}
    s_mov_b64 s[6:7], -1
    s_mov_b64 s[8:9], -1
    s_mov_b64 s[10:11], -1
    s_mov_b64 s[12:13], -1
    s_mov_b32 s26, 0x0f0f0f0f
    s_mov_b32 s27, s26
    s_movk_i32 s21, {RETRY}
    s_mov_b32 s23, {TAGM:#x}
    s_cmp_ge_u32 s3, 5
    s_cbranch_scc1 L_sig2b
    s_waitcnt vmcnt({5 if 'eaf' in a.opt else 4})
    """)
    sig2(a, "L_sig2b", 14, 0)
    for j in range(0, 16, 2): a(f"v_mov_b64 v[{RK+j}:{RK+j+1}], 0")
    a(f"""
L_sv1:
    s_mov_b32 s20, 0
    """)
    if 'eaf' in a.opt: a(f"""
    ds_read_b64 v[46:47], v14 offset:{NONCE-PC3}
    s_waitcnt vmcnt(0) lgkmcnt(0)
    v_cmp_ne_u64 vcc, v[46:47], v[28:29]
    s_cmp_eq_u64 vcc, 0
    s_cbranch_scc1 L_sf
    s_mov_b32 s20, 1
    {EAF}
L_sf:
    """)
    else: a("s_waitcnt vmcnt(0)")
    for q in range(4):
        d = SD + 4*q
        a(f"""
        s_and_b64 exec, s[{6+2*q}:{7+2*q}], s[{6+2*q}:{7+2*q}]
        s_cbranch_scc0 L_sq{q}
        v_xor_b32 v{d}, v{d}, v40
        v_xor_b32 v{d+1}, v{d+1}, v41
        v_xor_b32 v{d+2}, v{d+2}, v42
        v_xor_b32 v{d+3}, v{d+3}, v43
        v_and_b32 v45, v{d}, v44
        v_or3_b32 v46, v{d+1}, v{d+2}, v{d+3}
        v_and_or_b32 v45, v46, s23, v45
        v_cmp_ne_u32 vcc, 0, v45
        s_wqm_b64 s[{6+2*q}:{7+2*q}], vcc
        s_cbranch_scc0 L_sq{q}
        s_lshr_b64 s[14:15], s[{6+2*q}:{7+2*q}], 4
        s_or_b64 s[{6+2*q}:{7+2*q}], s[{6+2*q}:{7+2*q}], s[14:15]
        s_and_b64 s[{6+2*q}:{7+2*q}], s[{6+2*q}:{7+2*q}], s[26:27]
        s_lshl_b64 s[14:15], s[{6+2*q}:{7+2*q}], 4
        s_or_b64 s[{6+2*q}:{7+2*q}], s[{6+2*q}:{7+2*q}], s[14:15]
        s_mov_b64 exec, s[{6+2*q}:{7+2*q}]
        s_mov_b32 s20, 1
        """)
        sdl(q)
        a(f"L_sq{q}:")
    a(f"""
    s_mov_b64 exec, -1
    s_cmp_eq_u32 s20, 0
    s_cbranch_scc1 L_svd
    s_sub_u32 s21, s21, 1
    s_cbranch_scc0 L_sv1
    s_waitcnt vmcnt(0)
    v_mov_b32 v39, {FLAG}
    ds_or_b32 v39, v34
    """)
    for j in range(16): a(f"v_mov_b32 v{SD+j}, {MARK:#x}")
    a(f"""
L_svd:
    """)
    a.stamp('s_sd')
    a("v_bfe_u32 v45, v52, 11, 5\nv_bfe_u32 v46, v56, 11, 5\nv_bfe_u32 v47, v60, 11, 5\nv_bfe_u32 v36, v48, 11, 5")
    for q in range(1, 4):
        a(f"v_mov_b32_dpp v{44+q}, v{44+q} row_shr:{q} row_mask:0xf bank_mask:0xf bound_ctrl:0")
    a("v_or_b32 v36, v36, v45\nv_or3_b32 v36, v36, v46, v47")
    a(f"""
    v_or3_b32 v45, v48, v52, v56
    v_or_b32 v45, v45, v60
    v_cmp_ne_u32 s[14:15], 0, v36
    v_and_b32 v45, 1, v45
    v_mov_b32 v39, {FLAG}
    v_mov_b32 v28, 0
    v_mov_b32 v29, 0
    v_mov_b32 v30, {MARK:#x}
    s_mov_b32 s24, 0
    v_cmpx_ne_u32 vcc, 0, v45
    ds_or_b32 v39, v34
    """)
    def ranks(q):
        for j in range(4*q, 4*q+4):
            a(f"""
            v_and_b32 v{80+j}, 0x7fc, v{SD+j}
            v_cmpx_le_i32 vcc, 0, v{SD+j}
            ds_add_rtn_u32 v{RK+j}, v{80+j}, v34 offset:{CNT}
            s_mov_b64 exec, -1
            """)
    a(f"""
    s_cbranch_vccnz L_ovd
L_ov:
    s_cmp_eq_u64 s[14:15], 0
    s_cbranch_scc1 L_ovd
    s_ff1_i32_b64 s23, s[14:15]
    s_bitset0_b64 s[14:15], s23
    v_readlane_b32 s26, v36, s23
    s_and_b32 s27, s23, 7
    s_lshl_b32 s27, s27, 18
    s_lshr_b32 s23, s23, 3
    s_lshl_b32 s23, s23, 15
    s_add_u32 s23, s23, s27
    s_add_u32 s23, s23, s22
    s_lshl_b32 s27, s24, 4
    s_sub_u32 s23, s23, s27
    s_bfm_b64 exec, s26, s24
    s_add_u32 s24, s24, s26
    s_cmp_gt_u32 s24, 63
    s_cbranch_scc1 L_ovbad
    buffer_load_dwordx4 v[28:31], v38, {R(SSEG)}, s23 offen sc1
    s_branch L_ov
L_ovbad:
    s_mov_b64 exec, 1
    ds_or_b32 v39, v34
L_ovd:
    s_mov_b64 exec, -1
    """)
    a.stamp('s_ov')
    def ead(base, go, i):
        if i % 2 == 0: a(f"s_add_u32 m0, s28, {base}")
        a(f"s_add_u32 s19, s25, {i*8*24576 - i*1024 + go}\nbuffer_load_dwordx4 v2, {R(SSEG)}, s19 offen offset:{i*1024} sc1 lds")
    if 'eafirst' not in a.opt:
        for q in range(4): ranks(q)
    EQ = [(EALO, 0, i) for i in range(4)] + [(EAHI, 128, i) for i in range(4)]
    AL = ([o[1:] for o in a.opt if o[:1] == 'A'] + ['4220'])[0]
    def eaq(n):
        for _ in range(n):
            b, g, i = EQ.pop(0)
            a(f"s_add_u32 m0, s28, {b}\ns_add_u32 s19, s25, {i*8*24576 - i*1024 + g}\nbuffer_load_dwordx4 v2, {R(SSEG)}, s19 offen offset:{i*1024} sc1{' nt' if 'ent' in a.opt else ''} lds")
    nea = int(AL[0])
    if nea: spin(a, "L_e5", 14, XD0-PC3, "ge", 5)
    eaq(nea)
    if 'eapre' in a.opt:
        spin(a, "L_e9", 14, XD1-PC3, "ge", 4)
        for i in range(4): ead(EAHI, 128, i)
        nea = 8
    a.stamp('s_ea')
    if 'eafirst' in a.opt:
        for q in range(4): ranks(q)
    a(f"""
    v_lshlrev_b32 v37, 2, v1
    s_lshl_b32 s18, s17, 8
    s_add_u32 s18, s18, 32768
    v_add_u32 v37, s18, v37
    s_mov_b32 s18, 0xffff0000
    v_lshl_add_u32 v36, v1, 4, s28
    """)
    for j in range(16):
        off = (j >> 2) * 1024 + (j & 3) * 4
        if off:
            a(f"v_add_u32 v38, {off}, v36\nv_and_or_b32 v{SD+j}, v{SD+j}, s18, v38")
        else:
            a(f"v_and_or_b32 v{SD+j}, v{SD+j}, s18, v36")
    a(f"""
    s_waitcnt vmcnt({nea})
    v_and_b32 v27, 0x7fc, v30
    v_cmpx_le_i32 vcc, 0, v30
    ds_add_rtn_u32 v26, v27, v34 offset:{CNT}
    s_mov_b64 exec, -1
    v_and_or_b32 v30, v30, s18, v37
    """)
    a(f"""
L_s1:
    v_lshlrev_b32 v35, 2, v1
    s_lshl_b32 s35, s16, 3
    s_or_b32 s35, s35, s17
    s_cmp_eq_u32 s3, 12
    s_cselect_b32 s26, 0xff, -1
    s_cselect_b32 s27, 0xff, -1
    s_waitcnt lgkmcnt(0)
    """)
    a.stamp('s_pb')
    a("s_barrier")
    a.stamp('s1')
    def auw():
        a("s_mov_b64 exec, s[26:27]")
        for i in range(4): a(f"ds_write_b128 v10, v[{96+4*i}:{99+4*i}] offset:{i*2*AUS}")
        a("s_mov_b64 exec, -1")
    a(f"""
    s_cmp_eq_u32 s16, 1
    s_cbranch_scc1 L_s2e
    ds_read_b32 v66, v64 offset:{CNT}
    """)
    if 'eapre' not in a.opt and 'eas' not in a.opt:
        for i in range(4): ead(EAHI, 128, i)
    a(f"""
    s_waitcnt lgkmcnt(0)
    v_min_u32 v67, 63, v66
    v_sub_u32 v67, 63, v67
    v_lshlrev_b32 v67, 2, v67
    s_mov_b64 exec, s[10:11]
    ds_add_rtn_u32 v68, v67, v34 offset:{HIST}
    """)
    if 'aus' in a.opt: a("s_mov_b64 exec, -1\ns_waitcnt lgkmcnt(0)\ns_barrier\ns_cmp_eq_u32 s3, 12\ns_cbranch_scc1 L_s2g\ns_branch L_s2d")
    else: auw()
    a(f"""
    s_waitcnt lgkmcnt(4)
    s_barrier
    s_branch L_s2d
L_s2e:
    """)
    eaq(int(AL[1]))
    a(f"""
    s_barrier
    """)
    eaq(int(AL[2]))
    def tpf(sb):
        a(f"""
        s_mul_i32 s18, s{sb}, {BN*128}
        s_mul_i32 s19, s17, {98*64}
        s_add_u32 s18, s18, s19
        s_add_u32 s19, s18, 4096
        v_lshlrev_b32 v5, 6, v1
        buffer_load_dword v127, v5, {R(STABW)}, s18 offen sc1
        s_mov_b32 exec_hi, 3
        buffer_load_dword v127, v5, {R(STABW)}, s19 offen sc1
        s_mov_b32 exec_hi, -1
        """)
    if 'pf4' in a.opt: a(f"""
    s_xor_b32 s29, s5, 32
    s_lshl_b32 s18, s4, 9
    s_lshl_b32 s19, s29, 3
    s_add_u32 s18, s18, s19
    s_add_u32 s18, s18, {FL2}
    v_mov_b32 v3, 0
    ds_read_b64 v[8:9], v14 offset:{NONCE-PC3}
    buffer_load_dwordx2 v[12:13], v3, {R(SSEG)}, s18 offen sc1
    """)
    if 'pf3' in a.opt: tpf(5)
    a(f"""
    ds_write2st64_b32 v37, v28, v29 offset0:{EALO//256} offset1:{EAHI//256}
    s_cmp_ge_u32 s3, 13
    s_cbranch_scc1 L_s2f
L_s2g:
    """)
    auw()
    a(f"""
L_s2f:
L_s2d:
    """)
    a.stamp('s2')
    a(f"""
    s_cmp_gt_u32 s35, 6
    s_cbranch_scc1 L_s3d
    ds_read_b32 v69, v35 offset:{HIST}
    s_waitcnt lgkmcnt(0)
    v_mov_b32 v70, v69
    """)
    if 'aus' in a.opt: auw()
    a.scan(70)
    a(f"""
    v_sub_u32 v70, v70, v69
    ds_bpermute_b32 v70, v67, v70
    v_max_u32 v65, 2, v66
    s_waitcnt lgkmcnt(0)
    v_add_u32 v70, v70, v68
    v_and_b32 v71, 7, v70
    """)
    if a.tb: a(f"""
    v_lshrrev_b32 v72, 1, v70
    ds_bpermute_b32 v72, v72, v14
    v_lshlrev_b32 v73, 3, v71
    s_waitcnt lgkmcnt(0)
    v_lshlrev_b32 v74, 2, v72
    v_and_b32 v75, 3, v72
    v_lshl_add_u32 v73, v75, 1, v73
    v_and_b32 v72, 60, v72
    v_lshl_add_u32 v73, v72, 4, v73
    """)
    else: a(f"""
    v_lshrrev_b32 v72, 7, v70
    v_bfe_u32 v73, v70, 3, 4
    v_bfe_i32 v74, v70, 7, 1
    v_and_b32 v74, 15, v74
    v_xor_b32 v73, v73, v74
    v_lshl_add_u32 v74, v73, 2, v72
    v_lshlrev_b32 v74, 2, v74
    v_lshl_add_u32 v73, v73, 3, v71
    v_lshlrev_b32 v73, 3, v73
    v_lshl_add_u32 v73, v72, 1, v73
    """)
    a(f"""
    s_mov_b64 exec, s[10:11]
    ds_max_u32 v74, v65 offset:{LEN}
    ds_write_b16 v73, v80 offset:{PERM}
    s_mov_b64 exec, -1
L_s3d:
    s_waitcnt lgkmcnt(0)
    s_barrier
    """)
    a(f"""
    ds_read_b32 v40, v35 offset:{LEN}
    v_mov_b32 v42, {FLAG}
    ds_read_b32 v42, v42
    s_lshl_b32 s18, s3, 2
    s_add_u32 s19, s18, 1
    s_add_u32 s20, s18, 2
    s_add_u32 s21, s18, 3
    s_waitcnt lgkmcnt(0)
    v_mov_b32 v41, v40
    v_readfirstlane_b32 s22, v42
    """)
    a.scan(41)
    a(f"""
    s_nop 0
    v_readlane_b32 s23, v41, 63
    v_sub_u32 v41, v41, v40
    v_readlane_b32 s30, v40, s18
    v_readlane_b32 s31, v40, s19
    v_readlane_b32 s32, v40, s20
    v_readlane_b32 s33, v40, s21
    v_readlane_b32 s34, v41, s18
    s_cmp_gt_u32 s23, {ROWCAP}
    s_cselect_b32 s22, 1, s22
    s_cmp_lg_u32 s22, 0
    s_cbranch_scc1 L_slow
    """)
    if a.force_slow: a("s_branch L_slow")
    a(f"""
    s_cmp_gt_u32 s35, 6
    s_cbranch_scc1 L_s4e
    ds_bpermute_b32 v70, v74, v41
    ds_bpermute_b32 v75, v74, v40
    v_lshlrev_b32 v71, 2, v71
    v_add_u32 v71, {ELL}, v71
    v_mov_b32 v72, {CNT+0x7fc}
    v_mov_b32 v73, {TRASH}
    ds_write_b32 v72, v73
    s_waitcnt lgkmcnt(0)
    v_lshl_add_u32 v70, v70, 5, v71
    s_mov_b64 exec, s[10:11]
    ds_write_b32 v64, v70 offset:{CNT}
    s_mov_b64 exec, -1
    s_branch L_s4d
L_s4e:
    """)
    if int(AL[3]):
        a("s_cmp_lg_u32 s16, 1\ns_cbranch_scc1 L_s4d")
        eaq(int(AL[3]))
    a(f"""
L_s4d:
    s_waitcnt lgkmcnt(0)
    s_barrier
    """)
    a.stamp('s4')
    a(f"""
    s_cmp_eq_u32 s16, 1
    s_cbranch_scc1 L_s5
    """)
    if 'ep2' in a.opt: poll2i(a, "a")
    a(f"""
    v_lshl_add_u32 v76, v66, 5, v70
    v_lshl_add_u32 v77, v75, 5, v70
    s_mov_b64 exec, s[10:11]
L_pad:
    v_cmpx_lt_u32 vcc, v76, v77
    s_cbranch_execz L_padd
    ds_write_b32 v76, v78
    v_add_u32 v76, 32, v76
    s_branch L_pad
L_padd:
    s_mov_b64 exec, -1
    """)
    if 'pfo2' in a.opt: a(f"""
    s_mul_i32 s18, s5, {BN*128}
    s_mul_i32 s19, s17, {98*64}
    s_add_u32 s18, s18, s19
    s_add_u32 s19, s18, 4096
    v_lshlrev_b32 v5, 6, v1
    buffer_load_dword v127, v5, {R(STABW)}, s18 offen sc1
    s_mov_b32 exec_hi, 3
    buffer_load_dword v127, v5, {R(STABW)}, s19 offen sc1
    s_mov_b32 exec_hi, -1
    """)
    a(f"""
    s_branch L_s5d
L_s5:
    """)
    if 'pf4' in a.opt:
        a("s_waitcnt vmcnt(2)\nv_cmp_ne_u64 vcc, v[8:9], v[12:13]\ns_cbranch_vccnz L_s5n")
        tpf(29)
        a("L_s5n:")
    for h in range(2):
        for j in range(8*h, 8*h+8): a(f"ds_read_b32 v{80+j}, v{80+j} offset:{CNT}")
        eaq(len(EQ))
        if h == 1: a(f"ds_read_b32 v27, v27 offset:{CNT}")
        for j in range(8*h, 8*h+8):
            a(f"s_waitcnt lgkmcnt({7+h})\nv_lshl_add_u32 v{80+j}, v{RK+j}, 5, v{80+j}\nds_write_b32 v{80+j}, v{SD+j}")
    a(f"""
    s_waitcnt lgkmcnt(8)
    v_lshl_add_u32 v27, v26, 5, v27
    ds_write_b32 v27, v30
L_s5d:
    """)
    msetup(a)
    xy = 0 if 'xlate' in a.opt else 1
    poll2(a, "a", xy if 'ep2' in a.opt else None)
    if 'pf4' in a.opt: a("s_waitcnt lgkmcnt(0)")
    else: a(f"s_cmp_lg_u32 s16, 1\ns_cbranch_scc1 L_s5w\ns_waitcnt vmcnt({xy + (2 if 'pf3' in a.opt else 0)})\nL_s5w:\ns_waitcnt lgkmcnt(0)")
    sel(a, AP, UR, CK if a.pair else 0)
    a.stamp('s5p')
    a("s_barrier")

def consts(a, lab, va, off):
    spin(a, lab, va, off, 'ge', 2, 84)
    a(f"""
    v_and_b32 v92, 7, v1
    v_lshrrev_b32 v93, 4, v1
    v_lshl_add_u32 v88, v92, 2, v93
    v_lshlrev_b32 v88, 1, v88
    ds_read_u16 v84, v88 offset:{WCL}
    ds_read_u16 v85, v88 offset:{WCL+64}
    ds_read_u16 v86, v88 offset:{WCL+128}
    ds_read_u16 v87, v88 offset:{WCL+192}
    v_bfe_u32 v94, v1, 2, 2
    v_and_b32 v95, 3, v1
    v_cmp_eq_u32 s[36:37], v93, v95
    v_mul_u32_u24 v{CAU}, {AUS}, v92
    v_add_u32 v{CAU}, {AU}, v{CAU}
    s_mul_i32 s18, s5, {BN*256}
    s_lshl_b32 s19, s4, 6
    s_add_u32 s18, s18, s19
    v_lshl_add_u32 v{COUT}, v92, 3, s18
    v_cmp_eq_u32 vcc, v94, v93
    v_mov_b32 v89, 0x3f80
    v_mov_b32 v90, 4
    {'v_mov_b32 v90, v95' if 'f4' in a.opt else 'v_cndmask_b32 v90, v90, v95, vcc'}
    v_cmp_eq_u32 s[18:19], 0, v90
    v_cmp_eq_u32 s[20:21], 1, v90
    v_cmp_eq_u32 vcc, 2, v90
    v_cndmask_b32 v{SEL}, 0, v89, s[18:19]
    v_cmp_eq_u32 s[18:19], 3, v90
    v_cndmask_b32 v{SEL+1}, 0, v89, s[20:21]
    v_cndmask_b32 v{SEL+2}, 0, v89, vcc
    v_cndmask_b32 v{SEL+3}, 0, v89, s[18:19]
    ; identity for 4x4x4: lane i=l&3 holds row i
    v_cmp_gt_u32 vcc, 2, v95
    v_and_b32 v91, 1, v95
    v_lshlrev_b32 v91, 4, v91
    v_lshlrev_b32 v91, v91, v89
    v_cndmask_b32 v{IDM}, 0, v91, vcc
    v_xor_b32 v{IDM+1}, v{IDM}, v91
    s_mov_b32 s20, {NLOG2E:#x}
    s_mov_b32 s21, {NLOG2E:#x}
    v_and_b32 v88, 8, v1
    v_cmp_eq_u32 vcc, 0, v88
    s_waitcnt lgkmcnt(0)
    v_lshlrev_b32 v84, 16, v84
    v_lshlrev_b32 v85, 16, v85
    v_lshlrev_b32 v86, 16, v86
    v_lshlrev_b32 v87, 16, v87
    v_pk_mul_f32 v[84:85], v[84:85], s[20:21]
    v_pk_mul_f32 v[86:87], v[86:87], s[20:21]
    v_cvt_pk_bf16_f32 v84, v84, v85
    v_cvt_pk_bf16_f32 v85, v86, v87
    v_cndmask_b32 v{WC+0}, 0, v84, vcc
    v_cndmask_b32 v{WC+1}, 0, v85, vcc
    v_xor_b32 v{WC+2}, v{WC+0}, v84
    v_xor_b32 v{WC+3}, v{WC+1}, v85
    """)

def msetup(a):
    D = a.D
    eps = f2u(1e-6 * 2.0**KS) if a.pair else EPS
    if a.ch: eps = f2u(1e-6 * 2.0**(KC-SC))
    a(f"""
    v_lshrrev_b32 v2, 3, v1
    s_lshl_b32 s19, s3, 6
    v_lshl_add_u32 v7, v2, 3, s19
    ds_read_b64 {v2(IDS)}, v7 offset:{PERM}
    v_bfe_u32 v4, v1, 2, 2
    v_and_b32 v3, 7, v1
    v_lshlrev_b32 v{IDX+1}, 4, v3
    v_lshlrev_b32 v{IDX+3}, 4, v3
    s_lshl_b32 s18, s34, 5
    s_add_u32 s18, s18, {ELL}
    s_add_u32 s19, s18, 2
    v_lshl_add_u32 v{PTR}, v2, 2, s19
    v_lshl_add_u32 v{PTR+1}, v4, 3, s18
    s_movk_i32 s35, 256
    s_movk_i32 s38, {D*32}
    s_movk_i32 s39, {D*32}
    s_mov_b32 s28, {eps:#x}
    s_mov_b32 s29, {eps:#x}
    s_sub_u32 s24, s30, 2
    """)
    if a.ch:
        a(f"s_mov_b32 s26, {f2u(2.0**SC):#x}\ns_mov_b32 s27, {f2u(2.0**(SC-KC)):#x}\ns_mov_b32 s20, {f2u(-float(KC)):#x}\ns_mov_b32 s21, s20")
    elif a.pair:
        a(f"s_mov_b32 s26, {f2u(2.0**-KS):#x}\ns_mov_b32 s27, s26\ns_mov_b32 s20, {f2u(-float(KS)):#x}\ns_mov_b32 s21, s20")
    a(f"""
    s_waitcnt lgkmcnt(0)
    v_mad_u32_u16 v{VOUT}, v{IDS}, s35, v{COUT}
    v_mad_u32_u16 v{VAU}, v{IDS}, 16, v{CAU}
    {'s_mov_b32 s22, 0' if 'xlate' in a.opt else xrl(a)}
    ds_read_b128 {v4(UR)}, v{VAU}
    v_mad_u32_u16 v{VAU}, v{IDS}, 16, v{CAU} op_sel:[1,0,0,0]
    ds_read_b128 {v4(AUN)}, v{VAU}
    v_mov_b64 {v2(EA0)}, 0
    v_mov_b64 {v2(EA0+2)}, 0
    v_mov_b64 {v2(EA0+4)}, 0
    v_mov_b64 {v2(EA0+6)}, 0
    v_mov_b64 {v2(DEN)}, s[28:29]
    v_mov_b64 {v2(DEN+2)}, s[28:29]
    v_mov_b64 {v2(NUM)}, 0
    v_mov_b64 {v2(NUM+2)}, 0
    """)
    if a.pair: a(f"v_mov_b64 {v2(CK)}, s[20:21]\nv_mov_b64 {v2(CK+2)}, s[20:21]")

def poll2i(a, sfx):
    a(f"""
    s_cmp_lg_u32 s3, 12
    s_cbranch_scc1 L_ni2{sfx}
    v_lshlrev_b32 v20, 3, v1
    s_lshl_b32 s12, s4, 9
    s_add_u32 s12, s12, {FL2}
    buffer_load_dwordx2 v[22:23], v20, {R(SSEG)}, s12 offen sc1
    v_mov_b32 v18, {NONCE}
    ds_read_b64 v[18:19], v18
    s_mov_b32 s13, 0x40000
L_ni2{sfx}:
    """)

def poll2(a, sfx, younger=None):
    if younger is None: poll2i(a, sfx)
    a(f"""
    s_cmp_lg_u32 s3, 12
    s_cbranch_scc1 L_np2{sfx}
    v_lshlrev_b32 v20, 3, v1
    s_waitcnt vmcnt({younger or 0}) lgkmcnt(0)
L_poll2{sfx}:
    v_cmpx_ne_u64 vcc, v[18:19], v[22:23]
    s_sub_u32 s13, s13, 1
    s_cbranch_scc1 L_poll2d{sfx}
    s_cbranch_vccz L_poll2d{sfx}
    s_sleep 1
    buffer_load_dwordx2 v[22:23], v20, {R(SSEG)}, s12 offen sc1
    s_waitcnt vmcnt(0)
    s_branch L_poll2{sfx}
L_poll2d{sfx}:
    s_mov_b64 exec, -1
L_np2{sfx}:
    """)

DEN, NUM, AP, T0, EA0, UR, AUN, GR, WC, SEL, IDM, XR = 28, 32, 36, 40, 48, 56, 60, 64, 112, 116, 120, 96
A1, PP, NN, T3, CK = 8, 12, 16, 20, 24
IDX, EAD, PTR, IDS, VAU, VOUT, CAU, COUT, OT = 98, 102, 104, 106, 108, 109, 122, 123, 12
def v4(r): return f"v[{r}:{r+3}]"
def v2(r): return f"v[{r}:{r+1}]"
EAOFF = f"offset0:{EALO//256} offset1:{EAHI//256}"

def xrl(a): return ("; " if 'noxr' in a.opt else "") + f"buffer_load_dwordx2 {v2(XR)}, v{VOUT}, {R(SX)}, 0 offen" + (' nt' if 'xnt' in a.opt else '')

def TB(a, j):
    if a.ch: return T0 + 4*(j & 1)
    return (T0, T0+4, A1, T3)[j & 3] if a.pair else T0 + 4*(j & 1)

def mm(d, x, y, c): return f"v_mfma_f32_16x16x32_bf16 {v4(d)}, {v4(x)}, {v4(y)}, {v4(c) if c else 0}"

def m4(d, h, y, c): return f"v_mfma_f32_4x4x4_16b_bf16 {v4(d)}, {v2(SEL+2*h)}, {v2(y+2*h)}, {v4(c) if c else 0}"
def sel(a, d, y, c):
    if 'f4' in a.opt: a(m4(d, 0, y, c) + "\ns_nop 1\n" + m4(d, 1, y, d))
    else: a(mm(d, SEL, y, c))

def tblock(a, k):
    D = a.D; cl = " clamp" if a.pair else ""
    T = TB(a, k); Tn = TB(a, k+1)
    if 'f4' in a.opt:
        G1 = GR + 4*((k+1) % D)
        a(f"""
        {mm(Tn, EA0 + 4*((k+1) & 1), WC, AP)}
        v_exp_f32 v{T}, v{T}{cl}
        {m4(Tn, 0, G1, Tn)}
        v_exp_f32 v{T+1}, v{T+1}{cl}
        v_exp_f32 v{T+2}, v{T+2}{cl}
        {m4(Tn, 1, G1, Tn)}
        v_exp_f32 v{T+3}, v{T+3}{cl}
        """)
        return
    a(f"""
    {mm(Tn, EA0 + 4*((k+1) & 1), WC, AP)}
    v_exp_f32 v{T}, v{T}{cl}
    {mm(Tn, SEL, GR + 4*((k+1) % D), Tn)}
    v_exp_f32 v{T+1}, v{T+1}{cl}
    v_exp_f32 v{T+2}, v{T+2}{cl}
    v_exp_f32 v{T+3}, v{T+3}{cl}
    """)

def unit(a, k, kind, sw):
    D = a.D; lag = 2 if a.pair else 1; NL = D - lag
    T = TB(a, k); Tp = TB(a, k-1)
    EAw = EA0 + 4*((k+1) & 1)
    Gc = GR + 4*k; Gl = GR + 4*((k-lag) % D); Gp = GR + 4*((k-1) % D)
    Iu = IDX + 2*((k+1) & 1); Iw = IDX + 2*(k & 1)
    one = "s[26:27]" if a.pair else "1.0 op_sel_hi:[1,0]"
    def pk(op, d, x, y, z=None):
        for h in (0, 2):
            a(f"v_pk_{op}_f32 {v2(d+h)}, {v2(x+h)}, " + (v2(y+h) if isinstance(y, int) else y) + (f", {v2(z+h)}" if z is not None else ""))
    def rcp(r):
        for i in range(4): a(f"v_rcp_f32 v{r+i}, v{r+i}")
    a("s_waitcnt lgkmcnt(0)")
    if sw: sel(a, AP, AUN, CK if a.pair else 0)
    a(f"""
    {"; " if 'xl' in a.opt else ""}buffer_load_dwordx4 {v4(Gl)}, {v2(Iu)}, {R(STAB)}, 0 idxen offen sc1
    s_mov_b64 exec, s[36:37]
    ds_read2st64_b32 {v2(EAw)}, v{EAD} {EAOFF}
    ds_read2st64_b32 {v2(EAw+2)}, v{EAD+1} {EAOFF}
    ds_read_u16 v{EAD}, v{PTR+1} offset:{(k+4)*32}
    ds_read_u16 v{EAD+1}, v{PTR+1} offset:{(k+4)*32+4}
    s_mov_b64 exec, -1
    ds_read_u16 v{Iw}, v{PTR} offset:{(k+NL+1)*32}
    s_waitcnt vmcnt({NL-2})
    """)
    if sw and 'xlate' in a.opt: a(f"s_cmp_lg_u32 s22, 0\ns_cbranch_scc1 L_xl{kind}{k}\n{xrl(a)}\nL_xl{kind}{k}:")
    if k == D-1: a(f"v_lshl_add_u64 {v2(PTR)}, {v2(PTR)}, 0, s[38:39]")
    if a.ch:
        P, Nn, Dn, Q = PP, NN, A1, T3
        def av(d):
            for h in (0, 2): a(f"v_pk_fma_f32 {v2(d+h)}, {v2(T+h)}, s[26:27], s[26:27] op_sel:[0,0,1] op_sel_hi:[1,0,1]")
        def f1(d, x):
            for h in (0, 2): a(f"v_pk_fma_f32 {v2(d+h)}, {v2(d+h)}, {v2(x+h)}, 1.0 op_sel_hi:[1,1,0]")
        m, p = kind[0], int(kind[1])
        if m == 'l':
            av(T)
            if p == 0: f1(DEN, T); pk('fma', NUM, NUM, T, Gc)
            else: pk('mul', NUM, NUM, T); pk('fma', DEN, DEN, T, P); pk('fma', NUM, Gc, P, NUM)
            return
        if p == 0:
            av(P)
            if m == 'p': f1(DEN, P); pk('fma', NUM, NUM, P, Gc)
        elif p == 1:
            av(T); pk('mul', Nn, T, Gp); pk('add', Dn, P, T); pk('fma', Nn, P, Gc, Nn); pk('mul', P, P, T)
        elif p == 2:
            av(T); pk('mul', Nn, Nn, T); pk('fma', Dn, Dn, T, P); pk('fma', Nn, Gc, P, Nn); pk('mul', P, P, T)
        else:
            av(T); pk('mul', Q, P, T); rcp(Q)
            pk('mul', Nn, Nn, T); pk('fma', Dn, Dn, T, P); pk('fma', Nn, Gc, P, Nn)
            pk('fma', DEN, Dn, Q, DEN); pk('fma', NUM, Nn, Q, NUM)
        if m == 'p' and p in (1, 2):
            pk('fma', DEN, DEN, P, Dn); pk('fma', NUM, NUM, P, Nn)
        return
    if kind == 'U':
        pk('add', T, T, one); rcp(T); pk('add', DEN, DEN, T); pk('fma', NUM, T, Gc, NUM)
    elif kind == 'S':
        pk('add', Tp, Tp, one); pk('add', T, T, one); pk('mul', PP, Tp, T); rcp(PP)
        pk('mul', NN, T, Gp); pk('add', T, T, Tp); pk('fma', NN, Tp, Gc, NN)
        pk('fma', DEN, T, PP, DEN); pk('fma', NUM, NN, PP, NUM)

def phase_m(a):
    D = a.D; lag = 2 if a.pair else 1; NL = D - lag
    a.stamp(9)
    if a.prof:
        a("v_mov_b32 v126, v15\ns_memtime s[86:87]\ns_waitcnt lgkmcnt(0)\ns_sub_u32 s92, s86, s92\nv_writelane_b32 v126, s92, 30"); a.sreg = 126
    if 'prio' in a.opt: a("s_setprio 3\ns_mov_b32 s23, 3")
    if 'em0' in a.opt:
        if 'map2' in a.opt: a(f"""
        s_and_b32 s18, s4, 1
        s_mul_i32 s18, s18, {TABSL - 37*128}
        s_bfe_u32 s94, s2, 0x10001
        s_mul_i32 s19, s94, {TABSL}
        s_sub_u32 s18, s19, s18
        s_ashr_i32 s19, s18, 31
        s_add_u32 s{STAB}, s{STAB}, s18
        s_addc_u32 s{STAB+1}, s{STAB+1}, s19
        s_add_u32 s{STABW}, s{STABW}, s18
        s_addc_u32 s{STABW+1}, s{STABW+1}, s19
        """)
        else: a("s_and_b32 s94, s4, 1")
        a(f"s_cmp_eq_u32 s94, 0\ns_mov_b32 s95, {-TABSL}\ns_cselect_b32 s94, {TABSL}, s95\ns_ashr_i32 s95, s94, 31")
    if 'emu' in a.opt: a(f"""
    s_and_b32 s18, s4, 1
    s_mul_i32 s18, s18, {TABSL - 37*128}
    s_sub_u32 s{STAB}, s{STAB}, s18
    s_subb_u32 s{STAB+1}, s{STAB+1}, 0
    s_sub_u32 s{STABW}, s{STABW}, s18
    s_subb_u32 s{STABW+1}, s{STABW+1}, 0
    """)
    for q in range(NL): a(f"ds_read_u16 v{8+q}, v{PTR} offset:{q*32}")
    a(f"""
    ds_read_u16 v16, v{PTR+1}
    ds_read_u16 v17, v{PTR+1} offset:4
    ds_read_u16 v18, v{PTR+1} offset:32
    ds_read_u16 v19, v{PTR+1} offset:36
    ds_read_u16 v{IDX+2}, v{PTR} offset:{NL*32}
    """)
    for q in range(NL):
        a(f"s_waitcnt lgkmcnt({NL-1-q+5})\nv_lshl_add_u32 v{8+q}, v{8+q}, 7, v{IDX+1}\nbuffer_load_dwordx4 {v4(GR+4*q)}, v{8+q}, {R(STABW)}, 0 offen sc1")
        if q == 0: a(f"""
        s_waitcnt lgkmcnt(1)
        s_mov_b64 exec, s[36:37]
        ds_read2st64_b32 {v2(EA0)}, v16 {EAOFF}
        ds_read2st64_b32 {v2(EA0+2)}, v17 {EAOFF}
        ds_read2st64_b32 {v2(EA0+4)}, v18 {EAOFF}
        ds_read2st64_b32 {v2(EA0+6)}, v19 {EAOFF}
        ds_read_u16 v{EAD}, v{PTR+1} offset:64
        ds_read_u16 v{EAD+1}, v{PTR+1} offset:68
        s_mov_b64 exec, -1
        """)
    a(f"""
    s_waitcnt lgkmcnt(0)
    {mm(TB(a, 0), EA0, WC, AP)}
    s_waitcnt vmcnt({NL-1})
    s_nop 4
    """)
    sel(a, TB(a, 0), GR, TB(a, 0))
    a(f"""
    s_mov_b64 exec, s[36:37]
    ds_read2st64_b32 {v2(EA0)}, v{EAD} {EAOFF}
    ds_read2st64_b32 {v2(EA0+2)}, v{EAD+1} {EAOFF}
    ds_read_u16 v{EAD}, v{PTR+1} offset:96
    ds_read_u16 v{EAD+1}, v{PTR+1} offset:100
    s_mov_b64 exec, -1
    s_waitcnt vmcnt({NL-2})
    s_nop 1
    """)
    a.stamp(10)
    tblock(a, 0)
    if a.prof:
        a(f"s_mov_b32 s90, {len(a.names)}"); a.names += ['g1', 'g2', 'g3', 'g4']
    CS = list(range(0, 4, 4 // a.ch)) if a.ch else []
    for c in CS:
        for j in range(D):
            k = (j + c) % D
            a(f"L_m{c}_{k}:\ns_sub_u32 s24, s24, 1\ns_cbranch_scc1 L_b{c}_{k}")
            unit(a, k, f"n{j & 3}", False)
            tblock(a, k+1)
        a(f"s_branch L_m{c}_{c}")
    for c in (() if a.ch else (0, 1) if a.pair else (0,)):
        for j in range(D):
            k = (j + c) % D; kind = 'FS'[j & 1] if a.pair else 'U'
            lab = kind if a.pair else 'F'
            a(f"L_m{lab}{k}:\ns_sub_u32 s24, s24, 1\ns_cbranch_scc1 L_b{lab}{k}")
            unit(a, k, kind, False)
            tblock(a, k+1)
        a(f"s_branch L_mF{c}")
    for k0 in range(D):
      for kd in (CS if a.ch else 'FS' if a.pair else 'F'):
        k = (k0 + 1) % D
        OT = T3 if a.ch else 12
        if a.ch:
            a(f"L_b{kd}_{k0}:")
            unit(a, k0, f"p{(k0-kd) & 3}", True)
            tblock(a, k0+1)
            unit(a, k, f"l{(k0+1-kd) & 3}", False)
            if kd != CS[-1]:
                a(f"s_branch L_ep{k}"); continue
        else:
          a(f"L_b{kd}{k0}:")
          unit(a, k0, kd if a.pair else 'U', True)
          tblock(a, k0+1)
          unit(a, k, 'S' if a.pair and kd == 'F' else 'U', False)
          if a.pair and kd == 'F':
            a(f"s_branch L_ep{k}"); continue
        a(f"""
L_ep{k}:
        v_rcp_f32 v{DEN}, v{DEN}
        v_rcp_f32 v{DEN+1}, v{DEN+1}
        v_rcp_f32 v{DEN+2}, v{DEN+2}
        v_rcp_f32 v{DEN+3}, v{DEN+3}
        s_cmp_ge_u32 s{22 if 'xlate' in a.opt else 30}, {NL-2}
        s_cbranch_scc1 L_bx{k}
        s_waitcnt vmcnt(1)
L_bx{k}:
        v_pk_fma_f32 {v2(NUM)}, {v2(NUM)}, {v2(DEN)}, {v2(UR)}
        v_pk_fma_f32 {v2(NUM+2)}, {v2(NUM+2)}, {v2(DEN+2)}, {v2(UR+2)}
        ds_read_b128 {v4(UR)}, v{VAU}
        v_max_f32 v{NUM}, 0, v{NUM}
        v_max_f32 v{NUM+1}, 0, v{NUM+1}
        v_max_f32 v{NUM+2}, 0, v{NUM+2}
        v_max_f32 v{NUM+3}, 0, v{NUM+3}
        v_lshrrev_b64 {v2(IDS)}, 16, {v2(IDS)}
        v_mov_b64 {v2(DEN)}, s[28:29]
        v_mfma_f32_4x4x4_16b_bf16 {v4(OT)}, {v2(IDM)}, {v2(XR)}, {v4(NUM)}
        v_mov_b64 {v2(DEN+2)}, s[28:29]
        v_mad_u32_u16 v{VAU}, v{IDS}, 16, v{CAU} op_sel:[1,0,0,0]
        v_mov_b64 {v2(NUM)}, 0
        v_mov_b64 {v2(NUM+2)}, 0
        ds_read_b128 {v4(AUN)}, v{VAU}
        v_cvt_pk_bf16_f32 v{OT}, v{OT}, v{OT+1}
        v_cvt_pk_bf16_f32 v{OT+1}, v{OT+2}, v{OT+3}
        {f"s_cmp_eq_u32 s22, 0{chr(10)}s_cselect_b32 s18, {TABSL}, 0{chr(10)}s_add_u32 s{STAB}, s{STAB}, s18{chr(10)}s_addc_u32 s{STAB+1}, s{STAB+1}, 0" if 'emu' in a.opt else ''}
        {f"s_cmp_eq_u32 s22, 0{chr(10)}s_cselect_b64 s[18:19], s[94:95], 0{chr(10)}s_add_u32 s{STAB}, s{STAB}, s18{chr(10)}s_addc_u32 s{STAB+1}, s{STAB+1}, s19" if 'em0' in a.opt else ''}
        s_mov_b32 s30, s31
        {'s_mov_b32 s22, s31' if 'xlate' in a.opt else ''}
        s_mov_b32 s31, s32
        s_mov_b32 s32, s33
        s_mov_b32 s33, 0
        {f"s_cmp_lg_u32 s30, 0{chr(10)}s_cbranch_scc1 L_ns{k}" if 'nost' in a.opt else ''}
        buffer_store_dwordx2 {v2(OT)}, v{VOUT}, {R(SOUT)}, 0 offen{' sc1' if 'osc1' in a.opt and 'nosc' not in a.opt else ''}{' nt' if 'ont' in a.opt else ''}
L_ns{k}:
        """)
        if a.prof: a("s_memrealtime s[100:101]\ns_waitcnt lgkmcnt(0)\ns_add_u32 s90, s90, 1\ns_mov_b32 m0, s90\nv_writelane_b32 v126, s100, m0")
        a(f"""
        v_mad_u32_u16 v{VOUT}, v{IDS}, s35, v{COUT}
        s_sub_u32 s24, s30, 2
        s_cbranch_scc1 L_fin
        {xrl(a)}
        """)
        if 'p4' in a.opt: a(f"""
        s_cmp_lg_u32 s32, 0
        s_cbranch_scc1 L_pt{k}
        s_setprio 2
        s_cmp_lg_u32 s31, 0
        s_cbranch_scc1 L_pt{k}
        s_setprio 1
L_pt{k}:
        """)
        elif 'prio' in a.opt: a(f"""
        s_sub_u32 s23, s23, 1
        s_cmp_eq_u32 s23, 2
        s_cbranch_scc0 L_pr{k}
        s_setprio 2
L_pr{k}:
        s_cmp_eq_u32 s23, 1
        s_cbranch_scc0 L_ps{k}
        s_setprio 1
L_ps{k}:
        s_cmp_eq_u32 s23, 0
        s_cbranch_scc0 L_pt{k}
        s_setprio 0
L_pt{k}:
        """)
        if a.ch:
            p = ((k+1) & 3) % (4 // a.ch); c = ((k+1) & 3) - p
            if p == 1:
                a(f"v_mov_b32 v{PP}, {f2u(2.0**35):#x}\nv_mov_b32 v{PP+1}, v{PP}\nv_mov_b64 {v2(PP+2)}, {v2(PP)}\nv_mov_b64 {v2(GR+4*k)}, 0\nv_mov_b64 {v2(GR+4*k+2)}, 0")
            elif p > 1:
                a(f"v_mov_b32 v{PP}, 1.0\nv_mov_b32 v{PP+1}, 1.0\nv_mov_b64 {v2(PP+2)}, {v2(PP)}")
                for r in (NN, NN+2, A1, A1+2): a(f"v_mov_b64 {v2(r)}, 0")
            tblock(a, k+1)
            a(f"s_branch L_m{c}_{(k+1) % D}")
            continue
        tblock(a, k+1)
        a(f"s_branch L_mF{(k+1) % D}")

def slow(a):
    a(f"""
L_slow:
    s_waitcnt vmcnt(0) lgkmcnt(0)
    s_barrier
    v_mov_b64 v[4:5], 0
    v_mov_b64 v[6:7], 0
    v_lshlrev_b32 v2, 4, v0
    v_add_u32 v2, {ACC}, v2
    s_mov_b32 s18, 0
L_sz:
    v_cmp_gt_u32 vcc, {ACC+100352}, v2
    s_mov_b64 exec, vcc
    ds_write_b128 v2, v[4:7]
    s_mov_b64 exec, -1
    v_add_u32 v2, 16384, v2
    s_add_u32 s18, s18, 1
    s_cmp_lt_u32 s18, 7
    s_cbranch_scc1 L_sz
    s_cmp_gt_u32 s3, 1
    s_cbranch_scc1 L_swc
    v_lshrrev_b32 v3, 4, v0
    v_bfe_u32 v4, v0, 2, 2
    v_and_b32 v5, 3, v0
    v_lshl_add_u32 v3, v3, 2, v5
    v_lshlrev_b32 v3, 1, v3
    v_lshl_add_u32 v3, v4, 8, v3
    s_lshl_b32 s20, s4, 6
    buffer_load_ushort v3, v3, {R(SWC)}, s20 offen
    v_lshlrev_b32 v4, 2, v0
    v_add_u32 v4, {WCF}, v4
    s_waitcnt vmcnt(0)
    v_lshlrev_b32 v3, 16, v3
    v_mul_f32 v3, {NLOG2E:#x}, v3
    ds_write_b32 v4, v3
L_swc:
    """)
    poll2(a, "b")
    a(f"""
    s_waitcnt vmcnt(0) lgkmcnt(0)
    s_barrier
    s_mul_i32 s20, s5, {BN}
    s_mov_b32 s21, {E}
    s_movk_i32 s22, {BN}
    v_mov_b32 v2, v0
    s_mov_b32 s18, 0
L_se:
    v_lshlrev_b32 v3, 2, v2
    v_lshlrev_b32 v4, 3, v2
    buffer_load_dword v5, v3, {R(SDST)}, 0 offen
    v_cmp_gt_u32 s[24:25], s21, v2
    s_waitcnt vmcnt(0)
    v_subrev_u32 v5, s20, v5
    v_cmp_gt_u32 vcc, s22, v5
    s_and_b64 exec, vcc, s[24:25]
    s_cbranch_execz L_sn
    buffer_load_dword v6, v3, {R(SSRC)}, 0 offen
    buffer_load_dwordx2 v[8:9], v4, {R(SEA)}, 0 offen
    v_lshlrev_b32 v7, 4, v5
    v_add_u32 v7, {AU}, v7
    v_lshlrev_b32 v14, 8, v5
    v_add_u32 v14, {ACC}, v14
    v_mov_b32 v15, {WCF}
    s_mov_b32 s19, 0
    s_waitcnt vmcnt(0)
    v_lshlrev_b32 v6, 7, v6
    v_lshlrev_b32 v10, 16, v8
    v_and_b32 v11, 0xffff0000, v8
    v_lshlrev_b32 v12, 16, v9
    v_and_b32 v13, 0xffff0000, v9
L_sc:
    buffer_load_dwordx4 v[16:19], v6, {R(STABW)}, s19 offen sc1
    ds_read_b128 v[20:23], v7
    ds_read_b128 v[24:27], v15
    ds_read_b128 v[28:31], v15 offset:16
    ds_read_b128 v[32:35], v15 offset:32
    ds_read_b128 v[36:39], v15 offset:48
    s_waitcnt vmcnt(0) lgkmcnt(0)
    """)
    for r in range(4):
        a(f"""
        v_lshlrev_b32 v40, 16, v{16+r}
        v_lshlrev_b32 v41, 16, v{20+r}
        v_add_f32 v40, v40, v41
        v_fmac_f32 v40, v10, v{24+r}
        v_fmac_f32 v40, v11, v{28+r}
        v_fmac_f32 v40, v12, v{32+r}
        v_fmac_f32 v40, v13, v{36+r}
        v_exp_f32 v40, v40
        s_nop 0
        v_add_f32 v40, 1.0, v40
        v_rcp_f32 v40, v40
        s_nop 0
        v_mul_f32 v41, v40, v{16+r}
        ds_add_f32 v14, v40 offset:{4*r}
        ds_add_f32 v14, v41 offset:{128+4*r}
        """)
    a(f"""
    v_add_u32 v7, {AUS}, v7
    v_add_u32 v14, 16, v14
    v_add_u32 v15, 64, v15
    s_add_u32 s19, s19, 16
    s_cmp_lt_u32 s19, 128
    s_cbranch_scc1 L_sc
L_sn:
    s_mov_b64 exec, -1
    v_add_u32 v2, 1024, v2
    s_add_u32 s18, s18, 1
    s_cmp_lt_u32 s18, {(E+1023)//1024}
    s_cbranch_scc1 L_se
    s_waitcnt lgkmcnt(0)
    s_barrier
    s_mul_i32 s20, s5, {BN*256}
    s_lshl_b32 s19, s4, 6
    s_add_u32 s20, s20, s19
    v_mov_b32 v2, v0
    s_mov_b32 s18, 0
L_so:
    v_cmp_gt_u32 vcc, {BN*8}, v2
    s_mov_b64 exec, vcc
    s_cbranch_execz L_fin
    v_lshrrev_b32 v3, 3, v2
    v_and_b32 v4, 7, v2
    v_lshlrev_b32 v5, 8, v3
    v_lshl_add_u32 v6, v4, 3, v5
    buffer_load_dwordx2 v[8:9], v6, {R(SX)}, s20 offen
    v_lshl_add_u32 v5, v4, 4, v5
    v_add_u32 v5, {ACC}, v5
    ds_read_b128 v[16:19], v5
    ds_read_b128 v[20:23], v5 offset:128
    v_mul_u32_u24 v7, {AUS}, v4
    v_lshl_add_u32 v7, v3, 4, v7
    v_add_u32 v7, {AU}, v7
    ds_read_b128 v[24:27], v7
    s_waitcnt vmcnt(0) lgkmcnt(0)
    v_lshlrev_b32 v10, 16, v8
    v_and_b32 v11, 0xffff0000, v8
    v_lshlrev_b32 v12, 16, v9
    v_and_b32 v13, 0xffff0000, v9
    """)
    for r in range(4):
        a(f"""
        v_add_f32 v{16+r}, {EPS:#x}, v{16+r}
        v_rcp_f32 v{16+r}, v{16+r}
        s_nop 0
        v_fmac_f32 v{24+r}, v{16+r}, v{20+r}
        v_max_f32 v{24+r}, 0, v{24+r}
        v_add_f32 v{24+r}, v{24+r}, v{10+r}
        """)
    a(f"""
    v_cvt_pk_bf16_f32 v8, v24, v25
    v_cvt_pk_bf16_f32 v9, v26, v27
    buffer_store_dwordx2 v[8:9], v6, {R(SOUT)}, s20 offen
    v_add_u32 v2, 1024, v2
    s_add_u32 s18, s18, 1
    s_cmp_lt_u32 s18, 4
    s_cbranch_scc1 L_so
    """)

def fin(a):
    a("L_fin:")
    if a.prof:
        a("s_mov_b64 exec, -1\ns_waitcnt vmcnt(0)")
        a.stamp(11)
        a(f"""
        v_writelane_b32 v126, s84, 0
        s_memtime s[88:89]
        s_waitcnt lgkmcnt(0)
        s_sub_u32 s88, s88, s86
        v_writelane_b32 v126, s88, 31
        s_lshl_b32 s18, s2, 11
        s_lshl_b32 s19, s3, 7
        s_add_u32 s18, s18, s19
        s_add_u32 s18, s18, {PROFOFF}
        v_lshlrev_b32 v3, 2, v1
        s_mov_b32 exec_lo, -1
        s_mov_b32 exec_hi, 0
        buffer_store_dword v126, v3, {R(SSEG)}, s18 offen
        """)
        a("; STAMPS " + ",".join(["start"] + [str(x) for x in a.names]))
    a("L_end:\ns_endpgm")

def build(D=8, prof=False, force_slow=False, opt=()):
    a = G(D, prof, force_slow, opt)
    prologue(a); phase_p(a); phase_g(a); phase_s(a); phase_m(a); slow(a); fin(a)
    errs = hz.check(a.L)
    for e in errs: print("WARN", e, file=sys.stderr)
    ref = open(f"cdna_kernels/{NAME}.s.ref").read().split('\n')
    head = [l for l in ref if l.startswith(';') and '@launch' not in l]
    out = head + [f"; @launch grid=(256,1,1) block=(1024,1,1) lds={LDS_SIZE}",
        '.amdgcn_target "amdgcn-amd-amdhsa--gfx950"', '.text', f'.globl {NAME}_kernel', '.p2align 8',
        f'.type {NAME}_kernel,@function', f'{NAME}_kernel:'] + a.L + [
        '.section .rodata,"a"', '.p2align 6', f'.amdhsa_kernel {NAME}_kernel',
        '  .amdhsa_next_free_vgpr 128', '  .amdhsa_next_free_sgpr 102', '  .amdhsa_accum_offset 128',
        '  .amdhsa_group_segment_fixed_size 0', '  .amdhsa_kernarg_size 96', '  .amdhsa_user_sgpr_count 2',
        '  .amdhsa_user_sgpr_kernarg_segment_ptr 1', '  .amdhsa_system_sgpr_workgroup_id_x 1', '.end_amdhsa_kernel', '']
    return '\n'.join(out)

if __name__ == '__main__':
    ap = argparse.ArgumentParser()
    ap.add_argument('-o', default=f"cdna_kernels/{NAME}.s")
    ap.add_argument('-D', type=int, default=8)
    ap.add_argument('--prof', action='store_true')
    ap.add_argument('--slow', action='store_true')
    ap.add_argument('--opt', default='')
    x = ap.parse_args()
    open(x.o, 'w').write(build(x.D, x.prof, x.slow, x.opt.split(',')))
```

```python
import sys, struct, argparse
import hz

NAME = "standalone__edge_featured_mpnn_gatedgcn__graph"
N, E = 25000, 400000
BN = 392
CH = 1564
MARK = 0x800007FC
DUMMY = 25100
OVF = 8 << 20
FL2 = 7 << 20
TABOFF = 16 << 20
TABSL = 25600 * 128
PROFOFF = 64 << 20
PCNT, HIST, LEN, FLAG, PC1, OVC, PC3, XGO, PC2, F1, WCNT, XL, NONCE, TRASH, PERM, CNT, WCL = 0, 256, 512, 768, 772, 776, 780, 784, 788, 792, 796, 800, 808, 816, 1024, 2048, 3712
XD0, XD1 = F1, 820
TAGM = 0xF803
RETRY = 2048
XT = 4096
WL = XT + BN * 256
IMG = WL + 32768
OVL = IMG + 24576
LDS_SIZE = 163840
AUS = 6288
AU = LDS_SIZE - 8 * AUS
STG = WL
EALO = 4096
EASZ = 34816
EAHI = EALO + EASZ
ELL = EAHI + EASZ
ROWCAP = 1008
ZSLOT = 32768 + 63 * 4
ACC = 4096
WCF = WL
assert ELL + 32768 <= AU and STG + 8192 <= AU and OVL + 1024 <= LDS_SIZE
NLOG2E = struct.unpack('<I', struct.pack('<f', -1.4426950408889634))[0]
KC, SC = 40, 15
KS = 48
def f2u(x): return struct.unpack('<I', struct.pack('<f', x))[0]
EPS = struct.unpack('<I', struct.pack('<f', 1e-6))[0]

TBL = {2: [0, 1, 6, 9, 2, 11, 10, 5, 15, 4, 8, 8, 13, 7, 9, 6, 12, 7, 5, 11, 13, 2, 4, 14, 1, 14, 12, 7, 4, 14, 3, 2, 10, 3, 10, 15, 12, 5, 15, 1, 3, 0, 0, 13, 11, 8, 3, 6, 9],
       4: [0, 6, 5, 4, 2, 2, 1, 11, 7, 15, 8, 1, 9, 10, 7, 10, 8, 14, 5, 14, 3, 4, 12, 1, 6, 13, 3, 12, 11, 9, 0, 13, 9, 7, 15, 3, 2, 13, 4, 11, 12, 0, 5, 10, 6, 8, 15, 14, 3],
       6: [4, 5, 2, 7, 2, 0, 6, 1, 10, 1, 0, 1, 0, 13, 9, 8, 11, 6, 15, 14, 3, 8, 3, 3, 7, 10, 9, 12, 11, 5, 7, 6, 14, 4, 2, 11, 5, 9, 12, 12, 8, 15, 15, 13, 13, 10, 14, 4, 3]}

class G:
    def __init__(s, D=8, prof=False, force_slow=False, opt=()):
        s.opt = set(opt); s.pair = 'pair' in opt; s.XE = ([int(o[1:]) for o in opt if o[:1] == 'X'] + [0])[0]; s.EE = ([int(o[1:]) for o in opt if o[:1] == 'E'] + [0])[0]; s.YE = ([int(o[1:]) for o in opt if o[:1] == 'Y'] + [0])[0]; s.HD = ([int(o[1:]) for o in opt if o[:1] == 'H'] + [0])[0]; s.T = ([int(o[1:]) for o in opt if o[:1] == 'T'] + [0])[0]
        s.dup = ([o[3] for o in opt if o[:3] == 'dup'] + [''])[0]; s.dupw = ([int(o[4:]) for o in opt if o[:3] == 'dup'] + [0])[0]; s.tb = ([int(o[2:]) for o in opt if o[:2] == 'tb'] + [0])[0]; s.ch = ([int(o[2:]) for o in opt if o[:2] == 'ch'] + [0])[0]; s.L = []; s.D = D; s.prof = prof; s.force_slow = force_slow; s.nst = 0; s.names = []; s.sreg = 15
    def __call__(s, txt):
        for l in txt.strip('\n').split('\n'):
            l = l.strip()
            if l: s.L.append(('' if l.endswith(':') else '    ') + l)
    def srd(s, d, p, n, extra1=None):
        s(f"s_mov_b32 s{d}, s{p}")
        if extra1 is None: s(f"s_mov_b32 s{d+1}, s{p+1}")
        else: s(f"s_or_b32 s{d+1}, s{p+1}, {extra1:#x}")
        s(f"s_mov_b32 s{d+2}, {n:#x}\ns_mov_b32 s{d+3}, 0x20000")
    def stamp(s, k):
        if s.prof:
            s.names.append(k)
            s(f"s_memrealtime s[100:101]\ns_waitcnt lgkmcnt(0)\nv_writelane_b32 v{s.sreg}, s100, {len(s.names)}")
    def scan(s, v):
        for m in ("row_shr:1 row_mask:0xf bank_mask:0xf bound_ctrl:0", "row_shr:2 row_mask:0xf bank_mask:0xf bound_ctrl:0",
                  "row_shr:4 row_mask:0xf bank_mask:0xf bound_ctrl:0", "row_shr:8 row_mask:0xf bank_mask:0xf bound_ctrl:0",
                  "row_bcast:15 row_mask:0xa bank_mask:0xf", "row_bcast:31 row_mask:0xc bank_mask:0xf"):
            s(f"s_nop 1\nv_add_u32_dpp v{v}, v{v}, v{v} {m}")

SX, SEA, SSRC, SDST, SW, SOUT, SDBG, SSEG, STABW, STAB, SWC = 40, 44, 48, 52, 56, 60, 64, 68, 72, 76, 80
def R(d): return f"s[{d}:{d+3}]"

def w2(a, lab, k, extra):
    a(f"s_cbranch_scc1 {lab}\ns_waitcnt vmcnt({k})\n{lab}:\ns_waitcnt vmcnt({k+extra})")

def srds(a):
    a.srd(SOUT, 34, N*256); a.srd(SDBG, 36, 256)
    a.srd(SSEG, 38, (PROFOFF + (1 << 20)) if a.prof else TABOFF)
    a(f"""
    s_mul_i32 s9, s4, {TABSL}
    s_add_u32 s9, s9, {TABOFF}
    s_add_u32 s12, s38, s9
    s_addc_u32 s13, s39, 0
    """)
    a.srd(STABW, 12, TABSL); a.srd(STAB, 12, 25600, extra1=128 << 16)

def xdma(a, lab):
    nt = ' nt' if 'dnt' in a.opt else ''
    a(f"""
    s_mul_i32 s14, s5, {BN*256}
    s_lshl_b32 s15, s3, 13
    s_add_u32 s14, s14, s15
    s_add_u32 m0, s15, {XT}
    v_xor_b32 v17, 64, v16
    v_xor_b32 v18, 0x80, v16
    v_xor_b32 v19, 0xc0, v16
    s_cmp_eq_u32 s3, 12
    buffer_load_dwordx4 v16, {R(SX)}, s14 offen{nt} lds
    buffer_load_dwordx4 v17, {R(SX)}, s14 offen offset:1024{nt} lds
    s_cbranch_scc1 {lab}
    buffer_load_dwordx4 v18, {R(SX)}, s14 offen offset:2048{nt} lds
    buffer_load_dwordx4 v19, {R(SX)}, s14 offen offset:3072{nt} lds
    s_add_u32 m0, s15, {XT+4096}
    s_add_u32 s14, s14, 4096
    buffer_load_dwordx4 v16, {R(SX)}, s14 offen{nt} lds
    buffer_load_dwordx4 v17, {R(SX)}, s14 offen offset:1024{nt} lds
    buffer_load_dwordx4 v18, {R(SX)}, s14 offen offset:2048{nt} lds
    buffer_load_dwordx4 v19, {R(SX)}, s14 offen offset:3072{nt} lds
{lab}:
    """)

def spin(a, lab, vaddr, off, cmp, val, vt=32):
    a(f"""
{lab}:
    ds_read_b32 v{vt}, v{vaddr} offset:{off}
    s_waitcnt lgkmcnt(0)
    v_readfirstlane_b32 s18, v{vt}
    s_cmp_{cmp}_u32 s18, {val}
    s_cbranch_scc1 {lab}d
    s_sleep 1
    s_branch {lab}
{lab}d:
    """)

def allsrds(a):
    a.srd(SDST, 22, E*4); a.srd(SSRC, 20, E*4); a.srd(SEA, 18, E*8)
    a.srd(SWC, 28, 1024)
    srds(a)

MAP = ["""s_and_b32 s4, s2, 3
    s_lshr_b32 s5, s2, 3
    s_bfe_u32 s6, s2, 0x10002
    s_lshl_b32 s6, s6, 5
    s_add_u32 s5, s5, s6""",
    """s_and_b32 s4, s2, 1
    s_lshl_b32 s4, s4, 1
    s_bfe_u32 s6, s2, 0x10003
    s_add_u32 s4, s4, s6
    s_lshr_b32 s5, s2, 4
    s_bfe_u32 s6, s2, 0x20001
    s_lshl_b32 s6, s6, 4
    s_add_u32 s5, s5, s6""",
    """s_bfe_u32 s4, s2, 0x20003
    s_lshr_b32 s5, s2, 5
    s_and_b32 s6, s2, 7
    s_lshl_b32 s6, s6, 3
    s_add_u32 s5, s5, s6"""]

def icw(a):
    if 'icw' not in a.opt: return ''
    return """s_cmp_lg_u32 s3, 15
    s_cbranch_scc1 L_icd
    s_getpc_b64 s[12:13]
L_icp:
    v_lshlrev_b32 v6, 7, v1
    v_mov_b32 v7, 0
    v_lshl_add_u64 v[6:7], v[6:7], 0, s[12:13]
    s_mov_b32 s12, 8192
    s_mov_b32 s13, 0
    global_load_dword v127, v[6:7], off offset:1024
    v_lshl_add_u64 v[6:7], v[6:7], 0, s[12:13]
    global_load_dword v127, v[6:7], off offset:1024
L_icd:"""

def prologue(a):
    a(f"""
    s_cmp_ge_u32 s2, 256
    s_cbranch_scc1 L_end
    s_load_dwordx16 s[16:31], s[0:1], 0
    s_load_dwordx8 s[32:39], s[0:1], 64
    """)
    if 'icx' in a.opt: a("""
    s_getpc_b64 s[12:13]
L_icp:
    v_lshlrev_b32 v6, 7, v0
    v_mov_b32 v7, 0
    v_cmp_gt_u32 vcc, L_slow-L_icp-128, v6
    v_lshl_add_u64 v[6:7], v[6:7], 0, s[12:13]
    s_and_b64 exec, vcc, vcc
    s_cbranch_scc0 L_icd
    global_load_dword v127, v[6:7], off offset:128
L_icd:
    s_mov_b64 exec, -1
    """)
    if a.prof: a("s_memrealtime s[84:85]\ns_memtime s[92:93]\nv_mov_b32 v15, 0")
    a(f"""
    v_lshrrev_b32 v2, 6, v0
    v_and_b32 v1, 63, v0
    v_lshlrev_b32 v4, 4, v0
    v_readfirstlane_b32 s3, v2
    v_mov_b32 v3, 0
    s_lshl_b32 s9, s2, 4
    s_add_u32 s9, s9, s3
    s_cmp_lg_u32 s9, 14
    s_cbranch_scc1 L_i0
    ; launch tag: a mix of the clock, published through d_debug
    s_memrealtime s[12:13]
    s_waitcnt lgkmcnt(0)
    s_mul_i32 s14, s12, 0x9E3779B1
    s_mul_i32 s12, s12, 0x85EBCA6B
    s_xor_b32 s13, s13, s12
    s_bitset1_b32 s13, 31
    v_mov_b32 v8, s14
    v_mov_b32 v9, s13
    s_mov_b64 exec, 1
    global_store_dwordx2 v3, v[8:9], s[36:37] offset:136 sc1
    s_mov_b64 exec, -1
L_i0:
    {icw(a)}
    v_lshrrev_b32 v6, 3, v0
    v_mul_u32_u24 v6, 384, v6
    v_and_b32 v7, 7, v0
    v_lshl_add_u32 v6, v7, 4, v6
    v_add_u32 v6, {IMG+256}, v6
    v_subrev_u32 v7, {512*16}, v4
    s_cmp_lt_u32 s3, 8
    s_cselect_b32 s9, {MARK:#x}, 0
    v_mov_b32 v20, s9
    v_mov_b32 v21, s9
    v_mov_b32 v22, s9
    v_mov_b32 v23, s9
    s_cbranch_scc1 L_i1
    v_mov_b32 v6, v7
L_i1:
    s_cmp_ge_u32 s3, 12
    s_cbranch_scc1 L_i2
    ds_write_b128 v6, v[20:23]
L_i2:
    {MAP[2 if 'map4' in a.opt else 1 if 'map2' in a.opt else 0]}
    v_subrev_u32 v3, {320*16}, v4
    v_lshlrev_b32 v4, 1, v3
    s_mul_i32 s6, s2, {CH*4}
    s_lshl_b32 s7, s6, 1
    s_movk_i32 s8, {CH*4}
    s_cmp_eq_u32 s2, 255
    s_cselect_b32 s8, {(E-255*CH)*4}, s8
    v_cmp_gt_u32 s[10:11], s8, v3
    v_lshrrev_b32 v5, 2, v1
    v_and_b32 v6, 3, v1
    v_lshlrev_b32 v6, 4, v6
    v_lshl_or_b32 v5, v5, 8, v6
    v_lshrrev_b32 v6, 4, v1
    v_and_b32 v7, 15, v1
    v_xor_b32 v16, v7, v6
    v_lshlrev_b32 v6, 8, v6
    v_lshl_or_b32 v16, v16, 4, v6
    v_mov_b32 v2, 1
    v_mov_b32 v30, {FLAG}
    s_cmp_lt_u32 s3, 5
    s_cbranch_scc1 L_i3
    s_setprio 2
L_i3:
    s_waitcnt lgkmcnt(0)
    s_barrier
    """)
    a.srd(SX, 16, N*256)
    a(f"""
    s_cmp_ge_u32 s3, 5
    s_cbranch_scc1 L_l0
    s_cmp_eq_u32 s3, 4
    s_cbranch_scc1 L_e1
    s_cmp_eq_u32 s3, 0
    s_cselect_b64 s[12:13], s[26:27], s[32:33]
    s_cmp_eq_u32 s3, 2
    s_cselect_b64 s[12:13], s[24:25], s[12:13]
    s_cmp_eq_u32 s3, 3
    s_cselect_b64 s[12:13], s[30:31], s[12:13]
    """)
    a.srd(SW, 12, 32768)
    a(f"""
    s_lshl_b32 s15, s3, 13
    s_lshl_b32 s14, s4, 6
    """)
    for q in range(8):
        if q % 4 == 0: a(f"s_add_u32 m0, s15, {WL + q*1024}")
        a(f"s_add_u32 s12, s14, {q*4096 - (q%4)*1024}\nbuffer_load_dwordx4 v5, {R(SW)}, s12 offen offset:{(q%4)*1024} lds")
    a("L_e1:")
    if a.T:
        allsrds(a)
        a(f"""
        s_cmp_lt_u32 s3, {a.T}
        s_cbranch_scc1 L_e2
        s_mov_b64 exec, 1
        s_waitcnt vmcnt(0)
        ds_add_u32 v30, v2 offset:{WCNT-FLAG}
        s_mov_b64 exec, -1
        s_branch L_xw
L_e2:
        """)
    if a.EE:
        allsrds(a)
        a(f"""
        {'s_bitcmp1_b32 s2, 2' if 'elo' in a.opt else 's_bitcmp0_b32 s2, 2' if 'ehi' in a.opt else ''}
        {'s_cbranch_scc1 L_e3' if 'elo' in a.opt or 'ehi' in a.opt else ''}
        s_cmp_lt_u32 s3, {a.EE}
        s_cbranch_scc1 L_e3
        s_mov_b64 exec, 1
        s_waitcnt vmcnt(0)
        ds_add_u32 v30, v2 offset:{WCNT-FLAG}
        s_mov_b64 exec, -1
        s_mov_b32 s19, 2
        s_branch L_xg
L_e3:
        """)
    xdma(a, "L_nx1")
    if not a.T and not a.EE: allsrds(a)
    a(f"""
    s_mov_b64 exec, 1
    s_waitcnt vmcnt(8)
    ds_add_u32 v30, v2 offset:{WCNT-FLAG}
    s_mov_b64 exec, -1
    s_branch L_g
L_l0:
    s_cmp_ge_u32 s3, 13
    s_cbranch_scc1 L_h0
    """)
    a.srd(SDST, 22, E*4); a.srd(SSRC, 20, E*4); a.srd(SEA, 18, E*8)
    a(f"""
    s_cmp_eq_u64 s[10:11], 0
    s_cbranch_scc1 L_noedge
    s_mov_b64 exec, s[10:11]
    buffer_load_dwordx4 v[8:11], v3, {R(SDST)}, s6 offen{' nt' if 'int' in a.opt else ''}
    buffer_load_dwordx4 v[40:43], v3, {R(SSRC)}, s6 offen{' nt' if 'int' in a.opt else ''}
    buffer_load_dwordx4 v[32:35], v4, {R(SEA)}, s7 offen{' nt' if 'int' in a.opt else ''}
    buffer_load_dwordx4 v[36:39], v4, {R(SEA)}, s7 offen offset:16{' nt' if 'int' in a.opt else ''}
    s_mov_b64 exec, -1
L_noedge:
    """)
    a.srd(SWC, 28, 1024)
    srds(a)

def tags(a):
    a(f"""
    v_and_b32 v45, 7, v1
    v_cmp_eq_u32 vcc, 0, v45
    v_lshlrev_b32 v45, 2, v45
    v_lshrrev_b64 v[46:47], v45, v[46:47]
    v_mov_b32 v44, {TAGM:#x}
    v_cndmask_b32 v44, v44, 2, vcc
    v_and_b32 v40, v44, v46
    v_lshrrev_b32 v41, 5, v46
    v_lshrrev_b32 v42, 10, v46
    v_lshrrev_b32 v43, 15, v46
    v_and_b32 v41, {TAGM:#x}, v41
    v_and_b32 v42, {TAGM:#x}, v42
    v_and_b32 v43, {TAGM:#x}, v43
    """)

def phase_p(a):
    M = ("s[12:13]", "s[14:15]", "s[20:21]", "s[22:23]")
    a(f"""
    s_cmp_eq_u64 s[10:11], 0
    s_cbranch_scc1 L_p_done
    s_mov_b64 exec, s[10:11]
    s_mov_b32 s16, 42800
    s_mov_b32 s17, {(-MARK) & 0xffffffff:#x}
    s_movk_i32 s18, 384
    v_mov_b32 v3, {IMG}
    s_waitcnt vmcnt(3)
    """)
    for j in range(4): a(f"v_mul_u32_u24 v{44+j}, s16, v{8+j}")
    for j in range(4): a(f"v_lshrrev_b32 v{44+j}, 24, v{44+j}")
    for j in range(4): a(f"v_lshlrev_b32 v{48+j}, 2, v{44+j}\nds_add_rtn_u32 v{20+j}, v{48+j}, v2 offset:{PCNT}")
    for j in range(4):
        a(f"""
        v_mul_u32_u24 v{48+j}, {BN*4}, v{44+j}
        v_lshl_add_u32 v{8+j}, v{8+j}, 2, s17
        v_sub_u32 v{8+j}, v{8+j}, v{48+j}
        v_mad_u32_u24 v{48+j}, v{44+j}, s18, v3
        """)
    a("s_waitcnt vmcnt(2)")
    for j in range(4): a(f"v_lshl_add_u32 v{8+j}, v{40+j}, 16, v{8+j}")
    for j in range(4):
        a(f"""
        s_waitcnt lgkmcnt({3-j})
        v_add_u32 v{52+j}, v{20+j}, v{44+j}
        v_cmp_gt_u32 {M[j]}, 32, v{20+j}
        v_and_b32 v{52+j}, 31, v{52+j}
        v_lshl_add_u32 v{52+j}, v{52+j}, 2, v{48+j}
        """)
    for j in range(4): a(f"s_mov_b64 exec, {M[j]}\nds_add_u32 v{52+j}, v{8+j} offset:256")
    for j in range(4):
        if j % 2 == 0: a(f"s_waitcnt vmcnt({1 - j//2})")
        a(f"s_mov_b64 exec, {M[j]}\nds_write2_b32 v{52+j}, v{32+2*j}, v{33+2*j} offset0:0 offset1:32")
    for j in range(4):
        rk, bk, base, sd, lo, hi = 20+j, 44+j, 48+j, 8+j, 32+2*j, 33+2*j
        a(f"""
        s_andn2_b64 exec, s[10:11], {M[j]}
        s_cbranch_execz L_po{j}
        ds_add_rtn_u32 v28, v30, v2 offset:{OVC-FLAG}
        v_mov_b32 v24, v{lo}
        v_mov_b32 v25, v{hi}
        v_add_u32 v26, {MARK:#x}, v{sd}
        v_lshlrev_b32 v27, 9, v{bk}
        v_lshl_add_u32 v27, v{rk}, 4, v27
        v_mov_b32 v29, 0x800
        s_waitcnt lgkmcnt(0)
        v_max_u32 v31, v28, v{rk}
        v_cmp_lt_u32 vcc, 62, v31
        v_lshlrev_b32 v28, 4, v28
        v_add_u32 v28, {OVL}, v28
        s_andn2_b64 s[24:25], exec, vcc
        s_mov_b64 exec, vcc
        ds_or_b32 v30, v2
        s_mov_b64 exec, s[24:25]
        ds_add_u32 v{base}, v29 offset:256
        ds_write_b128 v28, v[24:27]
L_po{j}:
        """)
    a(f"""
L_p_done:
    s_mov_b64 exec, 1
    ds_add_u32 v30, v2 offset:{PC1-FLAG}
    s_mov_b64 exec, -1
    s_setprio 0
    """)
    a.stamp('p_w')
    if a.tb:
        n = [0]*16
        for g, w in enumerate(TBL[a.tb]):
            a(f"v_writelane_b32 v14, {4*w + n[w]}, {g}"); n[w] += 1
    if 'xpf' in a.opt: a(f"""
    s_cmp_lg_u32 s3, 12
    s_cbranch_scc1 L_xpf
    s_mul_i32 s14, s5, {BN*256}
    s_mul_i32 s15, s4, {232*64}
    s_add_u32 s14, s14, s15
    s_add_u32 s14, s14, {160*256}
    s_add_u32 s15, s14, {116*64}
    v_lshlrev_b32 v8, 6, v1
    s_mov_b32 exec_hi, {(1 << 26) - 1:#x}
    buffer_load_dword v9, v8, {R(SX)}, s14 offen
    buffer_load_dword v9, v8, {R(SX)}, s14 offen offset:{58*64}
    buffer_load_dword v9, v8, {R(SX)}, s15 offen
    buffer_load_dword v9, v8, {R(SX)}, s15 offen offset:{58*64}
    s_mov_b32 exec_hi, -1
    s_waitcnt vmcnt(0)
L_xpf:
    """)
    if a.XE: a(f"s_cmp_lt_u32 s3, {a.XE}\ns_cbranch_scc1 L_xgd")
    Z = [o for o in a.opt if o[:1] == 'Z']
    if Z: a(f"s_bitcmp1_b32 s2, 2\ns_cselect_b32 s19, {int(Z[0][2], 16)}, {int(Z[0][1], 16)}\ns_cmp_lt_u32 s3, s19\ns_cselect_b32 s19, 2, 3")
    elif a.YE: a(f"s_cmp_lt_u32 s3, {a.YE}\ns_cselect_b32 s19, 2, 3")
    if 'noxgo' not in a.opt: spin(a, "L_xg", 30, XGO-FLAG, "ge", "s19" if a.YE else 3)
    if a.T:
        a(f"L_xw:\ns_sub_u32 s19, s3, {a.T-1}\ns_cselect_b32 s19, 0, s19")
        spin(a, "L_xt", 30, XL-FLAG, "ge", "s19")
    a.stamp('xgo')
    xdma(a, "L_nx2")
    a(f"""
    s_branch L_g
L_h0:
    """)
    allsrds(a)
    a(f"""
    v_lshlrev_b32 v4, 4, v1
    s_mul_i32 s16, s2, 24576
    v_mov_b32 v3, 0
    s_movk_i32 s17, 384
    s_cmp_eq_u32 s3, 13
    s_cbranch_scc1 L_h13
    v_lshrrev_b32 v8, 4, v1
    v_lshlrev_b32 v9, 4, v7
    v_mad_u32_u24 v8, v8, s17, v9
    s_cmp_lg_u32 s3, 15
    s_cbranch_scc1 L_h2
    v_add_u32 v8, {32*384}, v8
    v_lshl_or_b32 v6, v7, 2, v6
    s_movk_i32 m0, {WCL}
    s_lshl_b32 s9, s4, 6
    buffer_load_dword v6, {R(SWC)}, s9 offen lds
L_h2:
    v_add_u32 v9, {IMG}, v8
    s_add_u32 s17, s16, {3*1536}
    s_add_u32 s19, s16, {6*1536}
    s_setprio 0
    """)
    spin(a, "L_hp", 30, PC1-FLAG, "ge", 8)
    a("s_setprio 3")
    a.stamp('b1')
    for i in range(8): a(f"ds_read_b128 v[{64+4*i}:{67+4*i}], v9 offset:{i*1536}")
    for i in range(8):
        a(f"s_waitcnt lgkmcnt({7-i})\nbuffer_store_dwordx4 v[{64+4*i}:{67+4*i}], v8, {R(SSEG)}, s{(16,17,19)[i//3]} offen offset:{(i%3)*1536} sc1{' nt' if 'int' in a.opt else ''}")
    a(f"""
    s_mov_b64 exec, 1
    ds_add_u32 v30, v2 offset:{XGO-FLAG}
    """)
    a.stamp('imi')
    if 'eaf' in a.opt: a(f"""
    s_lshl_b32 s19, s3, 11
    s_lshl_b32 s18, s2, 3
    s_add_u32 s19, s19, s18
    s_add_u32 s19, s19, {FL2 + 4096 - 14*2048}
L_en:
    ds_read_b64 v[46:47], v30 offset:{NONCE-FLAG}
    s_waitcnt lgkmcnt(0)
    v_readfirstlane_b32 s18, v47
    s_cmp_lg_u32 s18, 0
    s_cbranch_scc1 L_end2
    s_sleep 1
    s_branch L_en
L_end2:
    s_waitcnt vmcnt(0)
    buffer_store_dwordx2 v[46:47], v3, {R(SSEG)}, s19 offen sc1
    """)
    else: a("s_waitcnt vmcnt(0)")
    a(f"""
    ds_add_u32 v30, v2 offset:{PC2-FLAG}
    s_branch L_pso
L_h13:
    v_lshrrev_b32 v8, 3, v1
    v_and_b32 v9, 0x70, v4
    v_mad_u32_u24 v8, v8, s17, v9
    v_add_u32 v9, {IMG+256}, v8
    v_add_u32 v5, {OVL}, v4
    s_mov_b32 s18, 0x40000
L_tag:
    buffer_load_dwordx2 v[46:47], v3, {R(SDBG)}, 0 offen offset:136 sc1
    s_waitcnt vmcnt(0)
    v_cmp_eq_u32 vcc, 0, v47
    s_sub_u32 s18, s18, 1
    s_cbranch_scc1 L_tagd
    s_cbranch_vccz L_tagd
    s_sleep 1
    s_branch L_tag
L_tagd:
    v_or_b32 v47, 0x80000000, v47
    ds_write_b64 v30, v[46:47] offset:{NONCE-FLAG}
    """)
    a.stamp('tag')
    tags(a)
    a("s_setprio 0")
    spin(a, "L_hq", 30, PC1-FLAG, "ge", 8)
    a(f"""
    s_setprio 3
    ds_read_b96 v[36:38], v30
    ds_read_b128 v[24:27], v5
    """)
    for i in range(8): a(f"ds_read_b128 v[{64+4*i}:{67+4*i}], v9 offset:{i*3072}")
    a(f"""
    s_lshl_b32 s19, s2, 15
    s_add_u32 s19, s19, {OVF-512}
    s_waitcnt lgkmcnt(8)
    v_cmp_gt_u32 s[20:21], v38, v1
    v_cmp_eq_u32 vcc, 0, v36
    v_and_b32 v36, 1, v36
    v_bfi_b32 v36, v44, 0, v36
    v_or_b32 v40, v40, v36
    s_and_b64 exec, s[20:21], vcc
    s_cbranch_scc0 L_psn
    buffer_store_dwordx4 v[24:27], v27, {R(SSEG)}, s19 offen sc1
L_psn:
    s_mov_b64 exec, 1
    ds_add_u32 v30, v2 offset:{(TRASH if 'xsd' in a.opt else XGO)-FLAG}
    s_mov_b64 exec, -1
    """)
    for i in range(8):
        a(f"s_waitcnt lgkmcnt({8-i})")
        for j in range(4): a(f"v_xor_b32 v{64+4*i+j}, v{64+4*i+j}, v{40+j}")
    a("s_waitcnt vmcnt(0)")
    if 'eaf' not in a.opt: spin(a, "L_hr", 30, PC2-FLAG, "ge", 2)
    for i in range(8):
        a(f"buffer_store_dwordx4 v[{64+4*i}:{67+4*i}], v8, {R(SSEG)}, s16 offen offset:256 sc1{' nt' if 'int' in a.opt else ''}")
        if i < 7: a("s_add_u32 s16, s16, 3072")
    if 'xsd' in a.opt: a(f"s_mov_b64 exec, 1\nds_add_u32 v30, v2 offset:{XGO-FLAG}")
    a(f"""
L_pso:
    s_sub_u32 s17, s3, 8
    """)
    a.stamp('sig1')
    if a.HD and 'eh' not in a.opt: spin(a, "L_hd", 30, XD0-FLAG, "ge", a.HD)
    a(f"""
    s_branch L_sw
L_g:
    """)

SD = 48
ACCS = (48, 64, 80, 96)
def phase_g(a):
    a(f"""
    v_and_b32 v20, 31, v1
    v_lshrrev_b32 v21, 5, v1
    s_lshl_b32 s18, s3, 13
    s_add_u32 s18, s18, {XT}
    v_and_b32 v22, 15, v1
    v_xor_b32 v22, v22, v21
    v_lshlrev_b32 v22, 4, v22
    v_lshl_or_b32 v22, v20, 8, v22
    v_add_u32 v4, s18, v22
    v_bfe_u32 v22, v1, 2, 2
    v_lshl_add_u32 v22, v21, 3, v22
    v_lshlrev_b32 v22, 6, v22
    v_and_b32 v23, 16, v1
    v_lshl_add_u32 v22, v23, 1, v22
    v_and_b32 v23, 3, v1
    v_lshl_add_u32 v22, v23, 3, v22
    v_add_u32 v5, {WL}, v22
    v_bfe_u32 v22, v1, 1, 3
    v_xor_b32 v22, v22, v21
    v_lshlrev_b32 v22, 4, v22
    v_lshl_or_b32 v22, v20, 7, v22
    v_add_u32 v6, s18, v22
    v_lshl_add_u32 v7, v1, 4, s18
    v_and_b32 v22, 7, v1
    v_lshrrev_b32 v23, 4, v1
    v_xor_b32 v22, v22, v23
    v_lshlrev_b32 v22, 4, v22
    v_lshrrev_b32 v23, 3, v1
    v_lshl_or_b32 v8, v23, 7, v22
    v_xor_b32 v9, 64, v8
    v_mul_u32_u24 v22, {AUS}, v21
    v_lshl_add_u32 v22, v20, 4, v22
    s_lshl_b32 s18, s3, 9
    s_add_u32 s18, s18, {AU}
    v_add_u32 v10, s18, v22
    v_xor_b32 v11, 32, v6
    v_xor_b32 v12, 64, v6
    v_xor_b32 v13, 0x60, v6
    s_mul_i32 s19, s5, {BN*128}
    s_lshl_b32 s18, s3, 12
    s_add_u32 s19, s19, s18
    s_mov_b32 s20, {NLOG2E:#x}
    s_mov_b32 s21, {NLOG2E:#x}
    s_mov_b32 s22, 0x07060100
    s_mov_b32 s23, 0x07060302
    s_cmp_eq_u32 s3, 12
    s_cselect_b32 s26, 0xff, -1
    s_cselect_b32 s27, 0xff, -1
    """)
    for ks in range(1, 8): a(f"v_xor_b32 v{48+ks}, {ks*32:#x}, v4")
    if a.dup: a(f"s_mov_b64 s[96:97], s[{STABW}:{STABW+1}]\ns_mov_b32 s99, s{STABW+3}\ns_cmp_ge_u32 s3, {a.dupw}\ns_cselect_b32 s98, s{STABW+2}, 0")
    Q = []
    def ds(txt, tag=None):
        a(txt); Q.append(tag)
    def wait(tag):
        if tag in Q:
            i = max(k for k, t in enumerate(Q) if t == tag)
            n = len(Q) - 1 - i
            assert n <= 15
            a(f"s_waitcnt lgkmcnt({n})")
            del Q[:i+1]
    def frag(t):
        p, ks, mm = t >> 4, (t >> 1) & 7, t & 1
        r = 112 + 4*(t & 3); o = (2*p+mm)*8192 + ks*1024
        ds(f"ds_read_b64_tr_b16 v[{r}:{r+1}], v5 offset:{o}", ('f', t))
        ds(f"ds_read_b64_tr_b16 v[{r+2}:{r+3}], v5 offset:{o+256}", ('f', t))
    spin(a, "L_wc", 30, WCNT-FLAG, "ge", 5)
    for t in range(4): frag(t)
    a("s_waitcnt vmcnt(0) lgkmcnt(0)"); Q.clear()
    if a.T:
        a("s_mov_b64 exec, 1"); ds(f"ds_add_u32 v30, v2 offset:{XL-FLAG}"); a("s_mov_b64 exec, -1")
    a.stamp('xl')
    for ks in range(8): ds(f"ds_read_b128 v[{16+4*ks}:{19+4*ks}], v{4 if ks == 0 else 48+ks}", ('x', ks))
    def pack(B, V, i):
        b = B + 4*i; v = V + 4*i
        return [f"v_pk_mul_f32 v[{b}:{b+1}], v[{b}:{b+1}], s[20:21]", f"v_pk_mul_f32 v[{b+2}:{b+3}], v[{b+2}:{b+3}], s[20:21]",
                f"v_cvt_pk_bf16_f32 v{b}, v{b}, v{b+1}", f"v_cvt_pk_bf16_f32 v{b+1}, v{b+2}, v{b+3}",
                f"v_perm_b32 v{v}, v{v}, v{b}, s22", f"v_perm_b32 v{v+1}, v{v+1}, v{b}, s23",
                f"v_perm_b32 v{v+2}, v{v+2}, v{b+1}, s22", f"v_perm_b32 v{v+3}, v{v+3}, v{b+1}, s23"]
    ep = []
    for i in range(4):
        ep += [('v', x) for x in pack(48, 64, i)]
        ep += [('w', i)]
    ep += [('r', i) for i in range(4)] + [('s', i) for i in range(4)]
    def emit(e):
        k, x = e
        if k == 'v': a(x)
        elif k == 'w':
            a("s_mov_b64 exec, s[26:27]")
            ds(f"ds_write_b128 v{(6, 11, 12, 13)[x]}, v[{64+4*x}:{67+4*x}]")
            a("s_mov_b64 exec, -1")
        elif k == 'r': ds(f"ds_read_b128 v[{48+4*x}:{51+4*x}], v7 offset:{x*1024}", ('r', x))
        elif k == 's':
            wait(('r', x))
            if x: a(f"s_cbranch_scc1 L_gs{x}")
            dup = f"buffer_store_dwordx4 v[{48+4*x}:{51+4*x}], v{8+(x&1)}, s[96:99], s19 offen offset:{x*1024}"
            if a.dup == 'b': a(dup)
            a(f"buffer_store_dwordx4 v[{48+4*x}:{51+4*x}], v{8+(x&1)}, {R(STABW)}, s19 offen offset:{x*1024} sc1")
            if a.dup == 'a': a(dup)
            if x: a(f"L_gs{x}:")
    a("s_cmp_eq_u32 s3, 12")
    for t in range(32):
        p, ks, mm = t >> 4, (t >> 1) & 7, t & 1
        wait(('f', t)); wait(('x', ks))
        d = ACCS[2*p+mm]; r = 112 + 4*(t & 3)
        c = "0" if ks == 0 else f"v[{d}:{d+15}]"
        a(f"v_mfma_f32_32x32x16_bf16 v[{d}:{d+15}], v[{r}:{r+3}], v[{16+4*ks}:{19+4*ks}], {c}")
        if t + 4 < 32: frag(t + 4)
        if t >= 18:
            n = 5 if ep and ep[0][0] in 'vw' else (4 if ep and ep[0][0] == 'r' else 1)
            for _ in range(n):
                if ep: emit(ep.pop(0))
    while ep: emit(ep.pop(0))
    a(f"""
    s_cselect_b32 s18, s5, 0
    v_mov_b32 v32, 0x7180
    v_mov_b32 v33, 0x7180
    v_mov_b32 v34, 0x7180
    v_mov_b32 v35, 0x7180
    v_lshlrev_b32 v12, 4, v1
    s_cmp_lg_u32 s18, 63
    s_cbranch_scc1 L_nodum
    s_mov_b32 s18, {DUMMY*128}
    buffer_store_dwordx4 v[32:35], v12, {R(STABW)}, s18 offen sc1
    buffer_store_dwordx4 v[32:35], v12, {R(STABW)}, s18 offen offset:1024 sc1
    buffer_store_dwordx4 v[32:35], v12, {R(STABW)}, s18 offen offset:2048 sc1
    buffer_store_dwordx4 v[32:35], v12, {R(STABW)}, s18 offen offset:3072 sc1
L_nodum:
    s_movk_i32 s18, {XD1}
    s_cmp_lt_u32 s3, 5
    s_cselect_b32 s18, {XD0}, s18
    s_cmp_lt_u32 s3, 9
    s_cselect_b32 s18, s18, {TRASH}
    v_mov_b32 v31, 1
    v_mov_b32 v30, s18
    s_mov_b64 exec, 1
    ds_add_u32 v30, v31
    s_mov_b64 exec, -1
    v_mov_b32 v30, {FLAG}
    """)
    for i in range(4):
        for x in pack(80, 96, i): a(x)
    a.stamp('gd')
    a(f"""
    s_mov_b32 s17, s3
    s_cmp_lt_u32 s3, 5
    s_cbranch_scc1 L_sw
    s_mov_b32 s16, 0
    s_sub_u32 s17, s3, 5
    """)
    consts(a, "L_c1", 30, PC2-FLAG)
    a("s_waitcnt vmcnt(0)")
    sig2(a, "L_sig2a", 30, PC3-FLAG)
    a.stamp('gdr')

def sig2(a, lab, flag, cntoff):
    a(f"""
    s_mov_b64 exec, 1
    ds_add_rtn_u32 v4, v{flag}, v31 offset:{cntoff}
    ds_read_b64 v[6:7], v{flag} offset:{cntoff+NONCE-PC3}
    s_lshl_b32 s18, s4, 9
    s_lshl_b32 s19, s5, 3
    s_add_u32 s18, s18, s19
    s_add_u32 s18, s18, {FL2}
    v_mov_b32 v3, 0
    s_waitcnt lgkmcnt(0)
    v_readfirstlane_b32 s19, v4
    s_cmp_lg_u32 s19, 12
    s_cbranch_scc1 {lab}
    buffer_store_dwordx2 v[6:7], v3, {R(SSEG)}, s18 offen sc1
{lab}:
    s_mov_b64 exec, -1
    """)

RK = 64
def segaddr(a):
    a(f"""
    v_lshrrev_b32 v2, 3, v1
    v_mul_u32_u24 v2, 24576, v2
    v_and_b32 v3, 7, v1
    v_lshl_add_u32 v2, v3, 4, v2
    s_mul_i32 s25, s17, {32*24576}
    s_mul_i32 s19, s5, 384
    s_add_u32 s25, s25, s19
    s_lshl_b32 s28, s17, 12
    v_mov_b32 v34, 1
    """)

def phase_s(a):
    segaddr(a)
    a(f"""
    v_and_b32 v78, {31 if 'dsp' in a.opt else 0}, v1
    v_lshlrev_b32 v78, 16, v78
    v_add_u32 v78, {(DUMMY << 16) | ZSLOT:#x}, v78
    v_lshl_add_u32 v80, s17, 6, v1
    s_movk_i32 s18, {BN}
    v_cmp_gt_u32 s[10:11], s18, v80
    v_lshlrev_b32 v64, 2, v80
    s_branch L_s1
L_sw:
    s_mov_b64 exec, -1
    s_mov_b32 s16, 1
    s_setprio {1 if 'q1' in a.opt else 0}
    """)
    segaddr(a)
    a(f"""
    v_mov_b32 v14, {PC3}
    s_add_u32 s31, s25, {1*8*24576}
    s_add_u32 s32, s25, {2*8*24576}
    s_add_u32 s33, s25, {3*8*24576}
    """)
    if a.HD and 'eh' in a.opt: spin(a, "L_hd", 14, XD0-PC3, "ge", a.HD)
    JD = ([int(o[1:]) for o in a.opt if o[:1] == 'J'] + [0])[0]
    if JD: spin(a, "L_jd", 14, XD1-PC3, "ge", JD)
    SQ = (25, 31, 32, 33)
    def sdl(q): a(f"buffer_load_dwordx4 v[{SD+4*q}:{SD+4*q+3}], v2, {R(SSEG)}, s{SQ[q]} offen offset:256 sc1{' nt' if 'snt' in a.opt else ''}")
    for q in range(4): sdl(q)
    EAF = f"buffer_load_dwordx2 v[28:29], v36, {R(SSEG)}, 0 offen sc1"
    if 'eaf' in a.opt: a(f"""
    s_lshr_b32 s18, s5, 5
    s_lshl_b32 s18, s18, 11
    s_lshl_b32 s19, s17, 8
    s_add_u32 s18, s18, s19
    s_add_u32 s18, s18, {FL2 + 4096}
    v_and_b32 v36, 31, v1
    v_lshl_add_u32 v36, v36, 3, s18
    {EAF}
    """)
    a.stamp('sdi')
    consts(a, "L_c2", 14, PC2-PC3)
    a(f"""
L_nw:
    ds_read_b64 v[46:47], v14 offset:{NONCE-PC3}
    s_waitcnt lgkmcnt(0)
    v_readfirstlane_b32 s18, v47
    s_cmp_lg_u32 s18, 0
    s_cbranch_scc1 L_nwd
    s_sleep 1
    s_branch L_nw
L_nwd:
    """)
    tags(a)
    a(f"""
    v_mov_b32 v26, 0
    v_mov_b32 v3, 0
    v_lshlrev_b32 v38, 4, v1
    s_lshl_b32 s22, s17, 20
    s_lshl_b32 s27, s5, 9
    s_add_u32 s22, s22, s27
    s_add_u32 s22, s22, {OVF}
    s_mov_b64 s[6:7], -1
    s_mov_b64 s[8:9], -1
    s_mov_b64 s[10:11], -1
    s_mov_b64 s[12:13], -1
    s_mov_b32 s26, 0x0f0f0f0f
    s_mov_b32 s27, s26
    s_movk_i32 s21, {RETRY}
    s_mov_b32 s23, {TAGM:#x}
    s_cmp_ge_u32 s3, 5
    s_cbranch_scc1 L_sig2b
    s_waitcnt vmcnt({5 if 'eaf' in a.opt else 4})
    """)
    sig2(a, "L_sig2b", 14, 0)
    for j in range(0, 16, 2): a(f"v_mov_b64 v[{RK+j}:{RK+j+1}], 0")
    a(f"""
L_sv1:
    s_mov_b32 s20, 0
    """)
    if 'eaf' in a.opt: a(f"""
    ds_read_b64 v[46:47], v14 offset:{NONCE-PC3}
    s_waitcnt vmcnt(0) lgkmcnt(0)
    v_cmp_ne_u64 vcc, v[46:47], v[28:29]
    s_cmp_eq_u64 vcc, 0
    s_cbranch_scc1 L_sf
    s_mov_b32 s20, 1
    {EAF}
L_sf:
    """)
    else: a("s_waitcnt vmcnt(0)")
    for q in range(4):
        d = SD + 4*q
        a(f"""
        s_and_b64 exec, s[{6+2*q}:{7+2*q}], s[{6+2*q}:{7+2*q}]
        s_cbranch_scc0 L_sq{q}
        v_xor_b32 v{d}, v{d}, v40
        v_xor_b32 v{d+1}, v{d+1}, v41
        v_xor_b32 v{d+2}, v{d+2}, v42
        v_xor_b32 v{d+3}, v{d+3}, v43
        v_and_b32 v45, v{d}, v44
        v_or3_b32 v46, v{d+1}, v{d+2}, v{d+3}
        v_and_or_b32 v45, v46, s23, v45
        v_cmp_ne_u32 vcc, 0, v45
        s_wqm_b64 s[{6+2*q}:{7+2*q}], vcc
        s_cbranch_scc0 L_sq{q}
        s_lshr_b64 s[14:15], s[{6+2*q}:{7+2*q}], 4
        s_or_b64 s[{6+2*q}:{7+2*q}], s[{6+2*q}:{7+2*q}], s[14:15]
        s_and_b64 s[{6+2*q}:{7+2*q}], s[{6+2*q}:{7+2*q}], s[26:27]
        s_lshl_b64 s[14:15], s[{6+2*q}:{7+2*q}], 4
        s_or_b64 s[{6+2*q}:{7+2*q}], s[{6+2*q}:{7+2*q}], s[14:15]
        s_mov_b64 exec, s[{6+2*q}:{7+2*q}]
        s_mov_b32 s20, 1
        """)
        sdl(q)
        a(f"L_sq{q}:")
    a(f"""
    s_mov_b64 exec, -1
    s_cmp_eq_u32 s20, 0
    s_cbranch_scc1 L_svd
    s_sub_u32 s21, s21, 1
    s_cbranch_scc0 L_sv1
    s_waitcnt vmcnt(0)
    v_mov_b32 v39, {FLAG}
    ds_or_b32 v39, v34
    """)
    for j in range(16): a(f"v_mov_b32 v{SD+j}, {MARK:#x}")
    a(f"""
L_svd:
    """)
    a.stamp('s_sd')
    a("v_bfe_u32 v45, v52, 11, 5\nv_bfe_u32 v46, v56, 11, 5\nv_bfe_u32 v47, v60, 11, 5\nv_bfe_u32 v36, v48, 11, 5")
    for q in range(1, 4):
        a(f"v_mov_b32_dpp v{44+q}, v{44+q} row_shr:{q} row_mask:0xf bank_mask:0xf bound_ctrl:0")
    a("v_or_b32 v36, v36, v45\nv_or3_b32 v36, v36, v46, v47")
    a(f"""
    v_or3_b32 v45, v48, v52, v56
    v_or_b32 v45, v45, v60
    v_cmp_ne_u32 s[14:15], 0, v36
    v_and_b32 v45, 1, v45
    v_mov_b32 v39, {FLAG}
    v_mov_b32 v28, 0
    v_mov_b32 v29, 0
    v_mov_b32 v30, {MARK:#x}
    s_mov_b32 s24, 0
    v_cmpx_ne_u32 vcc, 0, v45
    ds_or_b32 v39, v34
    """)
    def ranks(q):
        for j in range(4*q, 4*q+4):
            a(f"""
            v_and_b32 v{80+j}, 0x7fc, v{SD+j}
            v_cmpx_le_i32 vcc, 0, v{SD+j}
            ds_add_rtn_u32 v{RK+j}, v{80+j}, v34 offset:{CNT}
            s_mov_b64 exec, -1
            """)
    a(f"""
    s_cbranch_vccnz L_ovd
L_ov:
    s_cmp_eq_u64 s[14:15], 0
    s_cbranch_scc1 L_ovd
    s_ff1_i32_b64 s23, s[14:15]
    s_bitset0_b64 s[14:15], s23
    v_readlane_b32 s26, v36, s23
    s_and_b32 s27, s23, 7
    s_lshl_b32 s27, s27, 18
    s_lshr_b32 s23, s23, 3
    s_lshl_b32 s23, s23, 15
    s_add_u32 s23, s23, s27
    s_add_u32 s23, s23, s22
    s_lshl_b32 s27, s24, 4
    s_sub_u32 s23, s23, s27
    s_bfm_b64 exec, s26, s24
    s_add_u32 s24, s24, s26
    s_cmp_gt_u32 s24, 63
    s_cbranch_scc1 L_ovbad
    buffer_load_dwordx4 v[28:31], v38, {R(SSEG)}, s23 offen sc1
    s_branch L_ov
L_ovbad:
    s_mov_b64 exec, 1
    ds_or_b32 v39, v34
L_ovd:
    s_mov_b64 exec, -1
    """)
    a.stamp('s_ov')
    def ead(base, go, i):
        if i % 2 == 0: a(f"s_add_u32 m0, s28, {base}")
        a(f"s_add_u32 s19, s25, {i*8*24576 - i*1024 + go}\nbuffer_load_dwordx4 v2, {R(SSEG)}, s19 offen offset:{i*1024} sc1 lds")
    if 'eafirst' not in a.opt:
        for q in range(4): ranks(q)
    EQ = [(EALO, 0, i) for i in range(4)] + [(EAHI, 128, i) for i in range(4)]
    AL = ([o[1:] for o in a.opt if o[:1] == 'A'] + ['4220'])[0]
    def eaq(n):
        for _ in range(n):
            b, g, i = EQ.pop(0)
            a(f"s_add_u32 m0, s28, {b}\ns_add_u32 s19, s25, {i*8*24576 - i*1024 + g}\nbuffer_load_dwordx4 v2, {R(SSEG)}, s19 offen offset:{i*1024} sc1{' nt' if 'ent' in a.opt else ''} lds")
    nea = int(AL[0])
    if nea: spin(a, "L_e5", 14, XD0-PC3, "ge", 5)
    eaq(nea)
    if 'eapre' in a.opt:
        spin(a, "L_e9", 14, XD1-PC3, "ge", 4)
        for i in range(4): ead(EAHI, 128, i)
        nea = 8
    a.stamp('s_ea')
    if 'eafirst' in a.opt:
        for q in range(4): ranks(q)
    a(f"""
    v_lshlrev_b32 v37, 2, v1
    s_lshl_b32 s18, s17, 8
    s_add_u32 s18, s18, 32768
    v_add_u32 v37, s18, v37
    s_mov_b32 s18, 0xffff0000
    v_lshl_add_u32 v36, v1, 4, s28
    """)
    for j in range(16):
        off = (j >> 2) * 1024 + (j & 3) * 4
        if off:
            a(f"v_add_u32 v38, {off}, v36\nv_and_or_b32 v{SD+j}, v{SD+j}, s18, v38")
        else:
            a(f"v_and_or_b32 v{SD+j}, v{SD+j}, s18, v36")
    a(f"""
    s_waitcnt vmcnt({nea})
    v_and_b32 v27, 0x7fc, v30
    v_cmpx_le_i32 vcc, 0, v30
    ds_add_rtn_u32 v26, v27, v34 offset:{CNT}
    s_mov_b64 exec, -1
    v_and_or_b32 v30, v30, s18, v37
    """)
    a(f"""
L_s1:
    v_lshlrev_b32 v35, 2, v1
    s_lshl_b32 s35, s16, 3
    s_or_b32 s35, s35, s17
    s_cmp_eq_u32 s3, 12
    s_cselect_b32 s26, 0xff, -1
    s_cselect_b32 s27, 0xff, -1
    s_waitcnt lgkmcnt(0)
    """)
    a.stamp('s_pb')
    a("s_barrier")
    a.stamp('s1')
    def auw():
        a("s_mov_b64 exec, s[26:27]")
        for i in range(4): a(f"ds_write_b128 v10, v[{96+4*i}:{99+4*i}] offset:{i*2*AUS}")
        a("s_mov_b64 exec, -1")
    a(f"""
    s_cmp_eq_u32 s16, 1
    s_cbranch_scc1 L_s2e
    ds_read_b32 v66, v64 offset:{CNT}
    """)
    if 'eapre' not in a.opt and 'eas' not in a.opt:
        for i in range(4): ead(EAHI, 128, i)
    a(f"""
    s_waitcnt lgkmcnt(0)
    v_min_u32 v67, 63, v66
    v_sub_u32 v67, 63, v67
    v_lshlrev_b32 v67, 2, v67
    s_mov_b64 exec, s[10:11]
    ds_add_rtn_u32 v68, v67, v34 offset:{HIST}
    """)
    if 'aus' in a.opt: a("s_mov_b64 exec, -1\ns_waitcnt lgkmcnt(0)\ns_barrier\ns_cmp_eq_u32 s3, 12\ns_cbranch_scc1 L_s2g\ns_branch L_s2d")
    else: auw()
    a(f"""
    s_waitcnt lgkmcnt(4)
    s_barrier
    s_branch L_s2d
L_s2e:
    """)
    eaq(int(AL[1]))
    a(f"""
    s_barrier
    """)
    eaq(int(AL[2]))
    def tpf(sb):
        a(f"""
        s_mul_i32 s18, s{sb}, {BN*128}
        s_mul_i32 s19, s17, {98*64}
        s_add_u32 s18, s18, s19
        s_add_u32 s19, s18, 4096
        v_lshlrev_b32 v5, 6, v1
        buffer_load_dword v127, v5, {R(STABW)}, s18 offen sc1
        s_mov_b32 exec_hi, 3
        buffer_load_dword v127, v5, {R(STABW)}, s19 offen sc1
        s_mov_b32 exec_hi, -1
        """)
    if 'pf4' in a.opt: a(f"""
    s_xor_b32 s29, s5, 32
    s_lshl_b32 s18, s4, 9
    s_lshl_b32 s19, s29, 3
    s_add_u32 s18, s18, s19
    s_add_u32 s18, s18, {FL2}
    v_mov_b32 v3, 0
    ds_read_b64 v[8:9], v14 offset:{NONCE-PC3}
    buffer_load_dwordx2 v[12:13], v3, {R(SSEG)}, s18 offen sc1
    """)
    if 'pf3' in a.opt: tpf(5)
    a(f"""
    ds_write2st64_b32 v37, v28, v29 offset0:{EALO//256} offset1:{EAHI//256}
    s_cmp_ge_u32 s3, 13
    s_cbranch_scc1 L_s2f
L_s2g:
    """)
    auw()
    a(f"""
L_s2f:
L_s2d:
    """)
    a.stamp('s2')
    a(f"""
    s_cmp_gt_u32 s35, 6
    s_cbranch_scc1 L_s3d
    {'s_setprio 2' if 'q2' in a.opt else ''}
    ds_read_b32 v69, v35 offset:{HIST}
    s_waitcnt lgkmcnt(0)
    v_mov_b32 v70, v69
    """)
    if 'aus' in a.opt: auw()
    a.scan(70)
    a(f"""
    v_sub_u32 v70, v70, v69
    ds_bpermute_b32 v70, v67, v70
    v_max_u32 v65, 2, v66
    s_waitcnt lgkmcnt(0)
    v_add_u32 v70, v70, v68
    v_and_b32 v71, 7, v70
    """)
    if a.tb: a(f"""
    v_lshrrev_b32 v72, 1, v70
    ds_bpermute_b32 v72, v72, v14
    v_lshlrev_b32 v73, 3, v71
    s_waitcnt lgkmcnt(0)
    v_lshlrev_b32 v74, 2, v72
    v_and_b32 v75, 3, v72
    v_lshl_add_u32 v73, v75, 1, v73
    v_and_b32 v72, 60, v72
    v_lshl_add_u32 v73, v72, 4, v73
    """)
    else: a(f"""
    v_lshrrev_b32 v72, 7, v70
    v_bfe_u32 v73, v70, 3, 4
    v_bfe_i32 v74, v70, 7, 1
    v_and_b32 v74, 15, v74
    v_xor_b32 v73, v73, v74
    v_lshl_add_u32 v74, v73, 2, v72
    v_lshlrev_b32 v74, 2, v74
    v_lshl_add_u32 v73, v73, 3, v71
    v_lshlrev_b32 v73, 3, v73
    v_lshl_add_u32 v73, v72, 1, v73
    """)
    a(f"""
    s_mov_b64 exec, s[10:11]
    ds_max_u32 v74, v65 offset:{LEN}
    ds_write_b16 v73, v80 offset:{PERM}
    s_mov_b64 exec, -1
L_s3d:
    s_waitcnt lgkmcnt(0)
    s_barrier
    """)
    a(f"""
    ds_read_b32 v40, v35 offset:{LEN}
    v_mov_b32 v42, {FLAG}
    ds_read_b32 v42, v42
    s_lshl_b32 s18, s3, 2
    s_add_u32 s19, s18, 1
    s_add_u32 s20, s18, 2
    s_add_u32 s21, s18, 3
    s_waitcnt lgkmcnt(0)
    v_mov_b32 v41, v40
    v_readfirstlane_b32 s22, v42
    """)
    a.scan(41)
    a(f"""
    s_nop 0
    v_readlane_b32 s23, v41, 63
    v_sub_u32 v41, v41, v40
    v_readlane_b32 s30, v40, s18
    v_readlane_b32 s31, v40, s19
    v_readlane_b32 s32, v40, s20
    v_readlane_b32 s33, v40, s21
    v_readlane_b32 s34, v41, s18
    s_cmp_gt_u32 s23, {ROWCAP}
    s_cselect_b32 s22, 1, s22
    s_cmp_lg_u32 s22, 0
    s_cbranch_scc1 L_slow
    """)
    if a.force_slow: a("s_branch L_slow")
    a(f"""
    s_cmp_gt_u32 s35, 6
    s_cbranch_scc1 L_s4e
    ds_bpermute_b32 v70, v74, v41
    ds_bpermute_b32 v75, v74, v40
    v_lshlrev_b32 v71, 2, v71
    v_add_u32 v71, {ELL}, v71
    v_mov_b32 v72, {CNT+0x7fc}
    v_mov_b32 v73, {TRASH}
    ds_write_b32 v72, v73
    s_waitcnt lgkmcnt(0)
    v_lshl_add_u32 v70, v70, 5, v71
    s_mov_b64 exec, s[10:11]
    ds_write_b32 v64, v70 offset:{CNT}
    s_mov_b64 exec, -1
    s_branch L_s4d
L_s4e:
    """)
    if int(AL[3]):
        a("s_cmp_lg_u32 s16, 1\ns_cbranch_scc1 L_s4d")
        eaq(int(AL[3]))
    a(f"""
L_s4d:
    s_waitcnt lgkmcnt(0)
    s_barrier
    """)
    a.stamp('s4')
    a(f"""
    s_cmp_eq_u32 s16, 1
    s_cbranch_scc1 L_s5
    {'s_setprio 0' if 'q2' in a.opt else ''}
    """)
    if 'ep2' in a.opt: poll2i(a, "a")
    a(f"""
    v_lshl_add_u32 v76, v66, 5, v70
    v_lshl_add_u32 v77, v75, 5, v70
    s_mov_b64 exec, s[10:11]
L_pad:
    v_cmpx_lt_u32 vcc, v76, v77
    s_cbranch_execz L_padd
    ds_write_b32 v76, v78
    v_add_u32 v76, 32, v76
    s_branch L_pad
L_padd:
    s_mov_b64 exec, -1
    """)
    if 'pfo2' in a.opt: a(f"""
    s_mul_i32 s18, s5, {BN*128}
    s_mul_i32 s19, s17, {98*64}
    s_add_u32 s18, s18, s19
    s_add_u32 s19, s18, 4096
    v_lshlrev_b32 v5, 6, v1
    buffer_load_dword v127, v5, {R(STABW)}, s18 offen sc1
    s_mov_b32 exec_hi, 3
    buffer_load_dword v127, v5, {R(STABW)}, s19 offen sc1
    s_mov_b32 exec_hi, -1
    """)
    a(f"""
    s_branch L_s5d
L_s5:
    {'s_setprio 1' if 'q2' in a.opt or 'q3' in a.opt else ''}
    """)
    if 'pf4' in a.opt:
        a("s_waitcnt vmcnt(2)\nv_cmp_ne_u64 vcc, v[8:9], v[12:13]\ns_cbranch_vccnz L_s5n")
        tpf(29)
        a("L_s5n:")
    for h in range(2):
        for j in range(8*h, 8*h+8): a(f"ds_read_b32 v{80+j}, v{80+j} offset:{CNT}")
        eaq(len(EQ))
        if h == 1: a(f"ds_read_b32 v27, v27 offset:{CNT}")
        for j in range(8*h, 8*h+8):
            a(f"s_waitcnt lgkmcnt({7+h})\nv_lshl_add_u32 v{80+j}, v{RK+j}, 5, v{80+j}\nds_write_b32 v{80+j}, v{SD+j}")
    a(f"""
    s_waitcnt lgkmcnt(8)
    v_lshl_add_u32 v27, v26, 5, v27
    ds_write_b32 v27, v30
L_s5d:
    """)
    msetup(a)
    xy = 0 if 'xlate' in a.opt else 1
    poll2(a, "a", xy if 'ep2' in a.opt else None)
    if 'pf4' in a.opt: a("s_waitcnt lgkmcnt(0)")
    else: a(f"s_cmp_lg_u32 s16, 1\ns_cbranch_scc1 L_s5w\ns_waitcnt vmcnt({xy + (2 if 'pf3' in a.opt else 0)})\nL_s5w:\ns_waitcnt lgkmcnt(0)")
    sel(a, AP, UR, CK if a.pair else 0)
    a.stamp('s5p')
    a("s_barrier")

def consts(a, lab, va, off):
    spin(a, lab, va, off, 'ge', 2, 84)
    a(f"""
    v_and_b32 v92, 7, v1
    v_lshrrev_b32 v93, 4, v1
    v_lshl_add_u32 v88, v92, 2, v93
    v_lshlrev_b32 v88, 1, v88
    ds_read_u16 v84, v88 offset:{WCL}
    ds_read_u16 v85, v88 offset:{WCL+64}
    ds_read_u16 v86, v88 offset:{WCL+128}
    ds_read_u16 v87, v88 offset:{WCL+192}
    v_bfe_u32 v94, v1, 2, 2
    v_and_b32 v95, 3, v1
    v_cmp_eq_u32 s[36:37], v93, v95
    v_mul_u32_u24 v{CAU}, {AUS}, v92
    v_add_u32 v{CAU}, {AU}, v{CAU}
    s_mul_i32 s18, s5, {BN*256}
    s_lshl_b32 s19, s4, 6
    s_add_u32 s18, s18, s19
    v_lshl_add_u32 v{COUT}, v92, 3, s18
    v_cmp_eq_u32 vcc, v94, v93
    v_mov_b32 v89, 0x3f80
    v_mov_b32 v90, 4
    {'v_mov_b32 v90, v95' if 'f4' in a.opt else 'v_cndmask_b32 v90, v90, v95, vcc'}
    v_cmp_eq_u32 s[18:19], 0, v90
    v_cmp_eq_u32 s[20:21], 1, v90
    v_cmp_eq_u32 vcc, 2, v90
    v_cndmask_b32 v{SEL}, 0, v89, s[18:19]
    v_cmp_eq_u32 s[18:19], 3, v90
    v_cndmask_b32 v{SEL+1}, 0, v89, s[20:21]
    v_cndmask_b32 v{SEL+2}, 0, v89, vcc
    v_cndmask_b32 v{SEL+3}, 0, v89, s[18:19]
    ; identity for 4x4x4: lane i=l&3 holds row i
    v_cmp_gt_u32 vcc, 2, v95
    v_and_b32 v91, 1, v95
    v_lshlrev_b32 v91, 4, v91
    v_lshlrev_b32 v91, v91, v89
    v_cndmask_b32 v{IDM}, 0, v91, vcc
    v_xor_b32 v{IDM+1}, v{IDM}, v91
    s_mov_b32 s20, {NLOG2E:#x}
    s_mov_b32 s21, {NLOG2E:#x}
    v_and_b32 v88, 8, v1
    v_cmp_eq_u32 vcc, 0, v88
    s_waitcnt lgkmcnt(0)
    v_lshlrev_b32 v84, 16, v84
    v_lshlrev_b32 v85, 16, v85
    v_lshlrev_b32 v86, 16, v86
    v_lshlrev_b32 v87, 16, v87
    v_pk_mul_f32 v[84:85], v[84:85], s[20:21]
    v_pk_mul_f32 v[86:87], v[86:87], s[20:21]
    v_cvt_pk_bf16_f32 v84, v84, v85
    v_cvt_pk_bf16_f32 v85, v86, v87
    v_cndmask_b32 v{WC+0}, 0, v84, vcc
    v_cndmask_b32 v{WC+1}, 0, v85, vcc
    v_xor_b32 v{WC+2}, v{WC+0}, v84
    v_xor_b32 v{WC+3}, v{WC+1}, v85
    """)

def msetup(a):
    D = a.D
    eps = f2u(1e-6 * 2.0**KS) if a.pair else EPS
    if a.ch: eps = f2u(1e-6 * 2.0**(KC-SC))
    a(f"""
    v_lshrrev_b32 v2, 3, v1
    s_lshl_b32 s19, s3, 6
    v_lshl_add_u32 v7, v2, 3, s19
    ds_read_b64 {v2(IDS)}, v7 offset:{PERM}
    v_bfe_u32 v4, v1, 2, 2
    v_and_b32 v3, 7, v1
    v_lshlrev_b32 v{IDX+1}, 4, v3
    v_lshlrev_b32 v{IDX+3}, 4, v3
    s_lshl_b32 s18, s34, 5
    s_add_u32 s18, s18, {ELL}
    s_add_u32 s19, s18, 2
    v_lshl_add_u32 v{PTR}, v2, 2, s19
    v_lshl_add_u32 v{PTR+1}, v4, 3, s18
    s_movk_i32 s35, 256
    s_movk_i32 s38, {D*32}
    s_movk_i32 s39, {D*32}
    s_mov_b32 s28, {eps:#x}
    s_mov_b32 s29, {eps:#x}
    s_sub_u32 s24, s30, 2
    """)
    if a.ch:
        a(f"s_mov_b32 s26, {f2u(2.0**SC):#x}\ns_mov_b32 s27, {f2u(2.0**(SC-KC)):#x}\ns_mov_b32 s20, {f2u(-float(KC)):#x}\ns_mov_b32 s21, s20")
    elif a.pair:
        a(f"s_mov_b32 s26, {f2u(2.0**-KS):#x}\ns_mov_b32 s27, s26\ns_mov_b32 s20, {f2u(-float(KS)):#x}\ns_mov_b32 s21, s20")
    a(f"""
    s_waitcnt lgkmcnt(0)
    v_mad_u32_u16 v{VOUT}, v{IDS}, s35, v{COUT}
    v_mad_u32_u16 v{VAU}, v{IDS}, 16, v{CAU}
    {'s_mov_b32 s22, 0' if 'xlate' in a.opt else xrl(a)}
    ds_read_b128 {v4(UR)}, v{VAU}
    v_mad_u32_u16 v{VAU}, v{IDS}, 16, v{CAU} op_sel:[1,0,0,0]
    ds_read_b128 {v4(AUN)}, v{VAU}
    v_mov_b64 {v2(EA0)}, 0
    v_mov_b64 {v2(EA0+2)}, 0
    v_mov_b64 {v2(EA0+4)}, 0
    v_mov_b64 {v2(EA0+6)}, 0
    v_mov_b64 {v2(DEN)}, s[28:29]
    v_mov_b64 {v2(DEN+2)}, s[28:29]
    v_mov_b64 {v2(NUM)}, 0
    v_mov_b64 {v2(NUM+2)}, 0
    """)
    if a.pair: a(f"v_mov_b64 {v2(CK)}, s[20:21]\nv_mov_b64 {v2(CK+2)}, s[20:21]")

def poll2i(a, sfx):
    a(f"""
    s_cmp_lg_u32 s3, 12
    s_cbranch_scc1 L_ni2{sfx}
    v_lshlrev_b32 v20, 3, v1
    s_lshl_b32 s12, s4, 9
    s_add_u32 s12, s12, {FL2}
    buffer_load_dwordx2 v[22:23], v20, {R(SSEG)}, s12 offen sc1
    v_mov_b32 v18, {NONCE}
    ds_read_b64 v[18:19], v18
    s_mov_b32 s13, 0x40000
L_ni2{sfx}:
    """)

def poll2(a, sfx, younger=None):
    if younger is None: poll2i(a, sfx)
    a(f"""
    s_cmp_lg_u32 s3, 12
    s_cbranch_scc1 L_np2{sfx}
    v_lshlrev_b32 v20, 3, v1
    s_waitcnt vmcnt({younger or 0}) lgkmcnt(0)
L_poll2{sfx}:
    v_cmpx_ne_u64 vcc, v[18:19], v[22:23]
    s_sub_u32 s13, s13, 1
    s_cbranch_scc1 L_poll2d{sfx}
    s_cbranch_vccz L_poll2d{sfx}
    s_sleep 1
    buffer_load_dwordx2 v[22:23], v20, {R(SSEG)}, s12 offen sc1
    s_waitcnt vmcnt(0)
    s_branch L_poll2{sfx}
L_poll2d{sfx}:
    s_mov_b64 exec, -1
L_np2{sfx}:
    """)

DEN, NUM, AP, T0, EA0, UR, AUN, GR, WC, SEL, IDM, XR = 28, 32, 36, 40, 48, 56, 60, 64, 112, 116, 120, 96
A1, PP, NN, T3, CK = 8, 12, 16, 20, 24
IDX, EAD, PTR, IDS, VAU, VOUT, CAU, COUT, OT = 98, 102, 104, 106, 108, 109, 122, 123, 12
def v4(r): return f"v[{r}:{r+3}]"
def v2(r): return f"v[{r}:{r+1}]"
EAOFF = f"offset0:{EALO//256} offset1:{EAHI//256}"

def xrl(a): return ("; " if 'noxr' in a.opt else "") + f"buffer_load_dwordx2 {v2(XR)}, v{VOUT}, {R(SX)}, 0 offen" + (' nt' if 'xnt' in a.opt else '')

def TB(a, j):
    if a.ch: return T0 + 4*(j & 1)
    return (T0, T0+4, A1, T3)[j & 3] if a.pair else T0 + 4*(j & 1)

def mm(d, x, y, c): return f"v_mfma_f32_16x16x32_bf16 {v4(d)}, {v4(x)}, {v4(y)}, {v4(c) if c else 0}"

def m4(d, h, y, c): return f"v_mfma_f32_4x4x4_16b_bf16 {v4(d)}, {v2(SEL+2*h)}, {v2(y+2*h)}, {v4(c) if c else 0}"
def sel(a, d, y, c):
    if 'f4' in a.opt: a(m4(d, 0, y, c) + "\ns_nop 1\n" + m4(d, 1, y, d))
    else: a(mm(d, SEL, y, c))

def tblock(a, k):
    D = a.D; cl = " clamp" if a.pair else ""
    T = TB(a, k); Tn = TB(a, k+1)
    if 'f4' in a.opt:
        G1 = GR + 4*((k+1) % D)
        a(f"""
        {mm(Tn, EA0 + 4*((k+1) & 1), WC, AP)}
        v_exp_f32 v{T}, v{T}{cl}
        {m4(Tn, 0, G1, Tn)}
        v_exp_f32 v{T+1}, v{T+1}{cl}
        v_exp_f32 v{T+2}, v{T+2}{cl}
        {m4(Tn, 1, G1, Tn)}
        v_exp_f32 v{T+3}, v{T+3}{cl}
        """)
        return
    a(f"""
    {mm(Tn, EA0 + 4*((k+1) & 1), WC, AP)}
    v_exp_f32 v{T}, v{T}{cl}
    {mm(Tn, SEL, GR + 4*((k+1) % D), Tn)}
    v_exp_f32 v{T+1}, v{T+1}{cl}
    v_exp_f32 v{T+2}, v{T+2}{cl}
    v_exp_f32 v{T+3}, v{T+3}{cl}
    """)

def unit(a, k, kind, sw):
    D = a.D; lag = 2 if a.pair else 1; NL = D - lag
    T = TB(a, k); Tp = TB(a, k-1)
    EAw = EA0 + 4*((k+1) & 1)
    Gc = GR + 4*k; Gl = GR + 4*((k-lag) % D); Gp = GR + 4*((k-1) % D)
    Iu = IDX + 2*((k+1) & 1); Iw = IDX + 2*(k & 1)
    one = "s[26:27]" if a.pair else "1.0 op_sel_hi:[1,0]"
    def pk(op, d, x, y, z=None):
        for h in (0, 2):
            a(f"v_pk_{op}_f32 {v2(d+h)}, {v2(x+h)}, " + (v2(y+h) if isinstance(y, int) else y) + (f", {v2(z+h)}" if z is not None else ""))
    def rcp(r):
        for i in range(4): a(f"v_rcp_f32 v{r+i}, v{r+i}")
    a("s_waitcnt lgkmcnt(0)")
    if sw: sel(a, AP, AUN, CK if a.pair else 0)
    a(f"""
    {"; " if 'xl' in a.opt else ""}buffer_load_dwordx4 {v4(Gl)}, {v2(Iu)}, {R(STAB)}, 0 idxen offen sc1
    s_mov_b64 exec, s[36:37]
    ds_read2st64_b32 {v2(EAw)}, v{EAD} {EAOFF}
    ds_read2st64_b32 {v2(EAw+2)}, v{EAD+1} {EAOFF}
    ds_read_u16 v{EAD}, v{PTR+1} offset:{(k+4)*32}
    ds_read_u16 v{EAD+1}, v{PTR+1} offset:{(k+4)*32+4}
    s_mov_b64 exec, -1
    ds_read_u16 v{Iw}, v{PTR} offset:{(k+NL+1)*32}
    s_waitcnt vmcnt({NL-2})
    """)
    if sw and 'xlate' in a.opt: a(f"s_cmp_lg_u32 s22, 0\ns_cbranch_scc1 L_xl{kind}{k}\n{xrl(a)}\nL_xl{kind}{k}:")
    if k == D-1: a(f"v_lshl_add_u64 {v2(PTR)}, {v2(PTR)}, 0, s[38:39]")
    if a.ch:
        P, Nn, Dn, Q = PP, NN, A1, T3
        def av(d):
            for h in (0, 2): a(f"v_pk_fma_f32 {v2(d+h)}, {v2(T+h)}, s[26:27], s[26:27] op_sel:[0,0,1] op_sel_hi:[1,0,1]")
        def f1(d, x):
            for h in (0, 2): a(f"v_pk_fma_f32 {v2(d+h)}, {v2(d+h)}, {v2(x+h)}, 1.0 op_sel_hi:[1,1,0]")
        m, p = kind[0], int(kind[1])
        if m == 'l':
            av(T)
            if p == 0: f1(DEN, T); pk('fma', NUM, NUM, T, Gc)
            else: pk('mul', NUM, NUM, T); pk('fma', DEN, DEN, T, P); pk('fma', NUM, Gc, P, NUM)
            return
        if p == 0:
            av(P)
            if m == 'p': f1(DEN, P); pk('fma', NUM, NUM, P, Gc)
        elif p == 1:
            av(T); pk('mul', Nn, T, Gp); pk('add', Dn, P, T); pk('fma', Nn, P, Gc, Nn); pk('mul', P, P, T)
        elif p == 2:
            av(T); pk('mul', Nn, Nn, T); pk('fma', Dn, Dn, T, P); pk('fma', Nn, Gc, P, Nn); pk('mul', P, P, T)
        else:
            av(T); pk('mul', Q, P, T); rcp(Q)
            pk('mul', Nn, Nn, T); pk('fma', Dn, Dn, T, P); pk('fma', Nn, Gc, P, Nn)
            pk('fma', DEN, Dn, Q, DEN); pk('fma', NUM, Nn, Q, NUM)
        if m == 'p' and p in (1, 2):
            pk('fma', DEN, DEN, P, Dn); pk('fma', NUM, NUM, P, Nn)
        return
    if kind == 'U':
        pk('add', T, T, one); rcp(T); pk('add', DEN, DEN, T); pk('fma', NUM, T, Gc, NUM)
    elif kind == 'S':
        pk('add', Tp, Tp, one); pk('add', T, T, one); pk('mul', PP, Tp, T); rcp(PP)
        pk('mul', NN, T, Gp); pk('add', T, T, Tp); pk('fma', NN, Tp, Gc, NN)
        pk('fma', DEN, T, PP, DEN); pk('fma', NUM, NN, PP, NUM)

def phase_m(a):
    D = a.D; lag = 2 if a.pair else 1; NL = D - lag
    a.stamp(9)
    if a.prof:
        a("v_mov_b32 v126, v15\ns_memtime s[86:87]\ns_waitcnt lgkmcnt(0)\ns_sub_u32 s92, s86, s92\nv_writelane_b32 v126, s92, 30"); a.sreg = 126
    if 'prio' in a.opt: a("s_setprio 3\ns_mov_b32 s23, 3")
    if 'em0' in a.opt:
        if 'map2' in a.opt: a(f"""
        s_and_b32 s18, s4, 1
        s_mul_i32 s18, s18, {TABSL - 37*128}
        s_bfe_u32 s94, s2, 0x10001
        s_mul_i32 s19, s94, {TABSL}
        s_sub_u32 s18, s19, s18
        s_ashr_i32 s19, s18, 31
        s_add_u32 s{STAB}, s{STAB}, s18
        s_addc_u32 s{STAB+1}, s{STAB+1}, s19
        s_add_u32 s{STABW}, s{STABW}, s18
        s_addc_u32 s{STABW+1}, s{STABW+1}, s19
        """)
        else: a("s_and_b32 s94, s4, 1")
        a(f"s_cmp_eq_u32 s94, 0\ns_mov_b32 s95, {-TABSL}\ns_cselect_b32 s94, {TABSL}, s95\ns_ashr_i32 s95, s94, 31")
    if 'emu' in a.opt: a(f"""
    s_and_b32 s18, s4, 1
    s_mul_i32 s18, s18, {TABSL - 37*128}
    s_sub_u32 s{STAB}, s{STAB}, s18
    s_subb_u32 s{STAB+1}, s{STAB+1}, 0
    s_sub_u32 s{STABW}, s{STABW}, s18
    s_subb_u32 s{STABW+1}, s{STABW+1}, 0
    """)
    for q in range(NL): a(f"ds_read_u16 v{8+q}, v{PTR} offset:{q*32}")
    a(f"""
    ds_read_u16 v16, v{PTR+1}
    ds_read_u16 v17, v{PTR+1} offset:4
    ds_read_u16 v18, v{PTR+1} offset:32
    ds_read_u16 v19, v{PTR+1} offset:36
    ds_read_u16 v{IDX+2}, v{PTR} offset:{NL*32}
    """)
    for q in range(NL):
        a(f"s_waitcnt lgkmcnt({NL-1-q+5})\nv_lshl_add_u32 v{8+q}, v{8+q}, 7, v{IDX+1}\nbuffer_load_dwordx4 {v4(GR+4*q)}, v{8+q}, {R(STABW)}, 0 offen sc1")
        if q == 0: a(f"""
        s_waitcnt lgkmcnt(1)
        s_mov_b64 exec, s[36:37]
        ds_read2st64_b32 {v2(EA0)}, v16 {EAOFF}
        ds_read2st64_b32 {v2(EA0+2)}, v17 {EAOFF}
        ds_read2st64_b32 {v2(EA0+4)}, v18 {EAOFF}
        ds_read2st64_b32 {v2(EA0+6)}, v19 {EAOFF}
        ds_read_u16 v{EAD}, v{PTR+1} offset:64
        ds_read_u16 v{EAD+1}, v{PTR+1} offset:68
        s_mov_b64 exec, -1
        """)
    a(f"""
    s_waitcnt lgkmcnt(0)
    {mm(TB(a, 0), EA0, WC, AP)}
    s_waitcnt vmcnt({NL-1})
    s_nop 4
    """)
    sel(a, TB(a, 0), GR, TB(a, 0))
    a(f"""
    s_mov_b64 exec, s[36:37]
    ds_read2st64_b32 {v2(EA0)}, v{EAD} {EAOFF}
    ds_read2st64_b32 {v2(EA0+2)}, v{EAD+1} {EAOFF}
    ds_read_u16 v{EAD}, v{PTR+1} offset:96
    ds_read_u16 v{EAD+1}, v{PTR+1} offset:100
    s_mov_b64 exec, -1
    s_waitcnt vmcnt({NL-2})
    s_nop 1
    """)
    a.stamp(10)
    tblock(a, 0)
    if a.prof:
        a(f"s_mov_b32 s90, {len(a.names)}"); a.names += ['g1', 'g2', 'g3', 'g4']
    CS = list(range(0, 4, 4 // a.ch)) if a.ch else []
    for c in CS:
        for j in range(D):
            k = (j + c) % D
            a(f"L_m{c}_{k}:\ns_sub_u32 s24, s24, 1\ns_cbranch_scc1 L_b{c}_{k}")
            unit(a, k, f"n{j & 3}", False)
            tblock(a, k+1)
        a(f"s_branch L_m{c}_{c}")
    for c in (() if a.ch else (0, 1) if a.pair else (0,)):
        for j in range(D):
            k = (j + c) % D; kind = 'FS'[j & 1] if a.pair else 'U'
            lab = kind if a.pair else 'F'
            a(f"L_m{lab}{k}:\ns_sub_u32 s24, s24, 1\ns_cbranch_scc1 L_b{lab}{k}")
            unit(a, k, kind, False)
            tblock(a, k+1)
        a(f"s_branch L_mF{c}")
    for k0 in range(D):
      for kd in (CS if a.ch else 'FS' if a.pair else 'F'):
        k = (k0 + 1) % D
        OT = T3 if a.ch else 12
        if a.ch:
            a(f"L_b{kd}_{k0}:")
            unit(a, k0, f"p{(k0-kd) & 3}", True)
            tblock(a, k0+1)
            unit(a, k, f"l{(k0+1-kd) & 3}", False)
            if kd != CS[-1]:
                a(f"s_branch L_ep{k}"); continue
        else:
          a(f"L_b{kd}{k0}:")
          unit(a, k0, kd if a.pair else 'U', True)
          tblock(a, k0+1)
          unit(a, k, 'S' if a.pair and kd == 'F' else 'U', False)
          if a.pair and kd == 'F':
            a(f"s_branch L_ep{k}"); continue
        a(f"""
L_ep{k}:
        v_rcp_f32 v{DEN}, v{DEN}
        v_rcp_f32 v{DEN+1}, v{DEN+1}
        v_rcp_f32 v{DEN+2}, v{DEN+2}
        v_rcp_f32 v{DEN+3}, v{DEN+3}
        s_cmp_ge_u32 s{22 if 'xlate' in a.opt else 30}, {NL-2}
        s_cbranch_scc1 L_bx{k}
        s_waitcnt vmcnt(1)
L_bx{k}:
        v_pk_fma_f32 {v2(NUM)}, {v2(NUM)}, {v2(DEN)}, {v2(UR)}
        v_pk_fma_f32 {v2(NUM+2)}, {v2(NUM+2)}, {v2(DEN+2)}, {v2(UR+2)}
        ds_read_b128 {v4(UR)}, v{VAU}
        v_max_f32 v{NUM}, 0, v{NUM}
        v_max_f32 v{NUM+1}, 0, v{NUM+1}
        v_max_f32 v{NUM+2}, 0, v{NUM+2}
        v_max_f32 v{NUM+3}, 0, v{NUM+3}
        v_lshrrev_b64 {v2(IDS)}, 16, {v2(IDS)}
        v_mov_b64 {v2(DEN)}, s[28:29]
        v_mfma_f32_4x4x4_16b_bf16 {v4(OT)}, {v2(IDM)}, {v2(XR)}, {v4(NUM)}
        v_mov_b64 {v2(DEN+2)}, s[28:29]
        v_mad_u32_u16 v{VAU}, v{IDS}, 16, v{CAU} op_sel:[1,0,0,0]
        v_mov_b64 {v2(NUM)}, 0
        v_mov_b64 {v2(NUM+2)}, 0
        ds_read_b128 {v4(AUN)}, v{VAU}
        v_cvt_pk_bf16_f32 v{OT}, v{OT}, v{OT+1}
        v_cvt_pk_bf16_f32 v{OT+1}, v{OT+2}, v{OT+3}
        {f"s_cmp_eq_u32 s22, 0{chr(10)}s_cselect_b32 s18, {TABSL}, 0{chr(10)}s_add_u32 s{STAB}, s{STAB}, s18{chr(10)}s_addc_u32 s{STAB+1}, s{STAB+1}, 0" if 'emu' in a.opt else ''}
        {f"s_cmp_eq_u32 s22, 0{chr(10)}s_cselect_b64 s[18:19], s[94:95], 0{chr(10)}s_add_u32 s{STAB}, s{STAB}, s18{chr(10)}s_addc_u32 s{STAB+1}, s{STAB+1}, s19" if 'em0' in a.opt else ''}
        s_mov_b32 s30, s31
        {'s_mov_b32 s22, s31' if 'xlate' in a.opt else ''}
        s_mov_b32 s31, s32
        s_mov_b32 s32, s33
        s_mov_b32 s33, 0
        {f"s_cmp_lg_u32 s30, 0{chr(10)}s_cbranch_scc1 L_ns{k}" if 'nost' in a.opt else ''}
        buffer_store_dwordx2 {v2(OT)}, v{VOUT}, {R(SOUT)}, 0 offen{' sc1' if 'osc1' in a.opt and 'nosc' not in a.opt else ''}{' nt' if 'ont' in a.opt else ''}
L_ns{k}:
        """)
        if a.prof: a("s_memrealtime s[100:101]\ns_waitcnt lgkmcnt(0)\ns_add_u32 s90, s90, 1\ns_mov_b32 m0, s90\nv_writelane_b32 v126, s100, m0")
        a(f"""
        v_mad_u32_u16 v{VOUT}, v{IDS}, s35, v{COUT}
        s_sub_u32 s24, s30, 2
        s_cbranch_scc1 L_fin
        {xrl(a)}
        """)
        if 'p4' in a.opt: a(f"""
        s_cmp_lg_u32 s32, 0
        s_cbranch_scc1 L_pt{k}
        s_setprio 2
        s_cmp_lg_u32 s31, 0
        s_cbranch_scc1 L_pt{k}
        s_setprio 1
L_pt{k}:
        """)
        elif 'prio' in a.opt: a(f"""
        s_sub_u32 s23, s23, 1
        s_cmp_eq_u32 s23, 2
        s_cbranch_scc0 L_pr{k}
        s_setprio 2
L_pr{k}:
        s_cmp_eq_u32 s23, 1
        s_cbranch_scc0 L_ps{k}
        s_setprio 1
L_ps{k}:
        s_cmp_eq_u32 s23, 0
        s_cbranch_scc0 L_pt{k}
        s_setprio 0
L_pt{k}:
        """)
        if a.ch:
            p = ((k+1) & 3) % (4 // a.ch); c = ((k+1) & 3) - p
            if p == 1:
                a(f"v_mov_b32 v{PP}, {f2u(2.0**35):#x}\nv_mov_b32 v{PP+1}, v{PP}\nv_mov_b64 {v2(PP+2)}, {v2(PP)}\nv_mov_b64 {v2(GR+4*k)}, 0\nv_mov_b64 {v2(GR+4*k+2)}, 0")
            elif p > 1:
                a(f"v_mov_b32 v{PP}, 1.0\nv_mov_b32 v{PP+1}, 1.0\nv_mov_b64 {v2(PP+2)}, {v2(PP)}")
                for r in (NN, NN+2, A1, A1+2): a(f"v_mov_b64 {v2(r)}, 0")
            tblock(a, k+1)
            a(f"s_branch L_m{c}_{(k+1) % D}")
            continue
        tblock(a, k+1)
        a(f"s_branch L_mF{(k+1) % D}")

def slow(a):
    a(f"""
L_slow:
    s_waitcnt vmcnt(0) lgkmcnt(0)
    s_barrier
    v_mov_b64 v[4:5], 0
    v_mov_b64 v[6:7], 0
    v_lshlrev_b32 v2, 4, v0
    v_add_u32 v2, {ACC}, v2
    s_mov_b32 s18, 0
L_sz:
    v_cmp_gt_u32 vcc, {ACC+100352}, v2
    s_mov_b64 exec, vcc
    ds_write_b128 v2, v[4:7]
    s_mov_b64 exec, -1
    v_add_u32 v2, 16384, v2
    s_add_u32 s18, s18, 1
    s_cmp_lt_u32 s18, 7
    s_cbranch_scc1 L_sz
    s_cmp_gt_u32 s3, 1
    s_cbranch_scc1 L_swc
    v_lshrrev_b32 v3, 4, v0
    v_bfe_u32 v4, v0, 2, 2
    v_and_b32 v5, 3, v0
    v_lshl_add_u32 v3, v3, 2, v5
    v_lshlrev_b32 v3, 1, v3
    v_lshl_add_u32 v3, v4, 8, v3
    s_lshl_b32 s20, s4, 6
    buffer_load_ushort v3, v3, {R(SWC)}, s20 offen
    v_lshlrev_b32 v4, 2, v0
    v_add_u32 v4, {WCF}, v4
    s_waitcnt vmcnt(0)
    v_lshlrev_b32 v3, 16, v3
    v_mul_f32 v3, {NLOG2E:#x}, v3
    ds_write_b32 v4, v3
L_swc:
    """)
    poll2(a, "b")
    a(f"""
    s_waitcnt vmcnt(0) lgkmcnt(0)
    s_barrier
    s_mul_i32 s20, s5, {BN}
    s_mov_b32 s21, {E}
    s_movk_i32 s22, {BN}
    v_mov_b32 v2, v0
    s_mov_b32 s18, 0
L_se:
    v_lshlrev_b32 v3, 2, v2
    v_lshlrev_b32 v4, 3, v2
    buffer_load_dword v5, v3, {R(SDST)}, 0 offen
    v_cmp_gt_u32 s[24:25], s21, v2
    s_waitcnt vmcnt(0)
    v_subrev_u32 v5, s20, v5
    v_cmp_gt_u32 vcc, s22, v5
    s_and_b64 exec, vcc, s[24:25]
    s_cbranch_execz L_sn
    buffer_load_dword v6, v3, {R(SSRC)}, 0 offen
    buffer_load_dwordx2 v[8:9], v4, {R(SEA)}, 0 offen
    v_lshlrev_b32 v7, 4, v5
    v_add_u32 v7, {AU}, v7
    v_lshlrev_b32 v14, 8, v5
    v_add_u32 v14, {ACC}, v14
    v_mov_b32 v15, {WCF}
    s_mov_b32 s19, 0
    s_waitcnt vmcnt(0)
    v_lshlrev_b32 v6, 7, v6
    v_lshlrev_b32 v10, 16, v8
    v_and_b32 v11, 0xffff0000, v8
    v_lshlrev_b32 v12, 16, v9
    v_and_b32 v13, 0xffff0000, v9
L_sc:
    buffer_load_dwordx4 v[16:19], v6, {R(STABW)}, s19 offen sc1
    ds_read_b128 v[20:23], v7
    ds_read_b128 v[24:27], v15
    ds_read_b128 v[28:31], v15 offset:16
    ds_read_b128 v[32:35], v15 offset:32
    ds_read_b128 v[36:39], v15 offset:48
    s_waitcnt vmcnt(0) lgkmcnt(0)
    """)
    for r in range(4):
        a(f"""
        v_lshlrev_b32 v40, 16, v{16+r}
        v_lshlrev_b32 v41, 16, v{20+r}
        v_add_f32 v40, v40, v41
        v_fmac_f32 v40, v10, v{24+r}
        v_fmac_f32 v40, v11, v{28+r}
        v_fmac_f32 v40, v12, v{32+r}
        v_fmac_f32 v40, v13, v{36+r}
        v_exp_f32 v40, v40
        s_nop 0
        v_add_f32 v40, 1.0, v40
        v_rcp_f32 v40, v40
        s_nop 0
        v_mul_f32 v41, v40, v{16+r}
        ds_add_f32 v14, v40 offset:{4*r}
        ds_add_f32 v14, v41 offset:{128+4*r}
        """)
    a(f"""
    v_add_u32 v7, {AUS}, v7
    v_add_u32 v14, 16, v14
    v_add_u32 v15, 64, v15
    s_add_u32 s19, s19, 16
    s_cmp_lt_u32 s19, 128
    s_cbranch_scc1 L_sc
L_sn:
    s_mov_b64 exec, -1
    v_add_u32 v2, 1024, v2
    s_add_u32 s18, s18, 1
    s_cmp_lt_u32 s18, {(E+1023)//1024}
    s_cbranch_scc1 L_se
    s_waitcnt lgkmcnt(0)
    s_barrier
    s_mul_i32 s20, s5, {BN*256}
    s_lshl_b32 s19, s4, 6
    s_add_u32 s20, s20, s19
    v_mov_b32 v2, v0
    s_mov_b32 s18, 0
L_so:
    v_cmp_gt_u32 vcc, {BN*8}, v2
    s_mov_b64 exec, vcc
    s_cbranch_execz L_fin
    v_lshrrev_b32 v3, 3, v2
    v_and_b32 v4, 7, v2
    v_lshlrev_b32 v5, 8, v3
    v_lshl_add_u32 v6, v4, 3, v5
    buffer_load_dwordx2 v[8:9], v6, {R(SX)}, s20 offen
    v_lshl_add_u32 v5, v4, 4, v5
    v_add_u32 v5, {ACC}, v5
    ds_read_b128 v[16:19], v5
    ds_read_b128 v[20:23], v5 offset:128
    v_mul_u32_u24 v7, {AUS}, v4
    v_lshl_add_u32 v7, v3, 4, v7
    v_add_u32 v7, {AU}, v7
    ds_read_b128 v[24:27], v7
    s_waitcnt vmcnt(0) lgkmcnt(0)
    v_lshlrev_b32 v10, 16, v8
    v_and_b32 v11, 0xffff0000, v8
    v_lshlrev_b32 v12, 16, v9
    v_and_b32 v13, 0xffff0000, v9
    """)
    for r in range(4):
        a(f"""
        v_add_f32 v{16+r}, {EPS:#x}, v{16+r}
        v_rcp_f32 v{16+r}, v{16+r}
        s_nop 0
        v_fmac_f32 v{24+r}, v{16+r}, v{20+r}
        v_max_f32 v{24+r}, 0, v{24+r}
        v_add_f32 v{24+r}, v{24+r}, v{10+r}
        """)
    a(f"""
    v_cvt_pk_bf16_f32 v8, v24, v25
    v_cvt_pk_bf16_f32 v9, v26, v27
    buffer_store_dwordx2 v[8:9], v6, {R(SOUT)}, s20 offen
    v_add_u32 v2, 1024, v2
    s_add_u32 s18, s18, 1
    s_cmp_lt_u32 s18, 4
    s_cbranch_scc1 L_so
    """)

def fin(a):
    a("L_fin:")
    if a.prof:
        a("s_mov_b64 exec, -1\ns_waitcnt vmcnt(0)")
        a.stamp(11)
        a(f"""
        v_writelane_b32 v126, s84, 0
        s_memtime s[88:89]
        s_waitcnt lgkmcnt(0)
        s_sub_u32 s88, s88, s86
        v_writelane_b32 v126, s88, 31
        s_lshl_b32 s18, s2, 11
        s_lshl_b32 s19, s3, 7
        s_add_u32 s18, s18, s19
        s_add_u32 s18, s18, {PROFOFF}
        v_lshlrev_b32 v3, 2, v1
        s_mov_b32 exec_lo, -1
        s_mov_b32 exec_hi, 0
        buffer_store_dword v126, v3, {R(SSEG)}, s18 offen
        """)
        a("; STAMPS " + ",".join(["start"] + [str(x) for x in a.names]))
    a("L_end:\ns_endpgm")

def build(D=8, prof=False, force_slow=False, opt=()):
    a = G(D, prof, force_slow, opt)
    prologue(a); phase_p(a); phase_g(a); phase_s(a); phase_m(a); slow(a); fin(a)
    errs = hz.check(a.L)
    for e in errs: print("WARN", e, file=sys.stderr)
    ref = open(f"cdna_kernels/{NAME}.s.ref").read().split('\n')
    head = [l for l in ref if l.startswith(';') and '@launch' not in l]
    out = head + [f"; @launch grid=(256,1,1) block=(1024,1,1) lds={LDS_SIZE}",
        '.amdgcn_target "amdgcn-amd-amdhsa--gfx950"', '.text', f'.globl {NAME}_kernel', '.p2align 8',
        f'.type {NAME}_kernel,@function', f'{NAME}_kernel:'] + a.L + [
        '.section .rodata,"a"', '.p2align 6', f'.amdhsa_kernel {NAME}_kernel',
        '  .amdhsa_next_free_vgpr 128', '  .amdhsa_next_free_sgpr 102', '  .amdhsa_accum_offset 128',
        '  .amdhsa_group_segment_fixed_size 0', '  .amdhsa_kernarg_size 96', '  .amdhsa_user_sgpr_count 2',
        '  .amdhsa_user_sgpr_kernarg_segment_ptr 1', '  .amdhsa_system_sgpr_workgroup_id_x 1', '.end_amdhsa_kernel', '']
    return '\n'.join(out)

if __name__ == '__main__':
    ap = argparse.ArgumentParser()
    ap.add_argument('-o', default=f"cdna_kernels/{NAME}.s")
    ap.add_argument('-D', type=int, default=8)
    ap.add_argument('--prof', action='store_true')
    ap.add_argument('--slow', action='store_true')
    ap.add_argument('--opt', default='')
    x = ap.parse_args()
    open(x.o, 'w').write(build(x.D, x.prof, x.slow, x.opt.split(',')))
```
